```python
import torch

def _softmax(x, axis=-1):
    return torch.softmax(x, dim=axis)
def _gelu(x):
    return torch.nn.functional.gelu(x, approximate="tanh")
def _silu(x):
    return torch.nn.functional.silu(x)
def _sigmoid(x):
    return torch.sigmoid(x)
def _layernorm(x, axis=-1, eps=1e-5):
    m = x.mean(dim=axis, keepdim=True)
    v = x.var(dim=axis, keepdim=True, unbiased=False)
    return (x - m) / torch.sqrt(v + eps)
def _scatter_add(tgt, idx, src, axis=0):
    return tgt.clone().index_add_(axis, idx, src)
def _segment_sum(src, seg, n):
    out = torch.zeros((n,) + src.shape[1:], dtype=src.dtype)
    return out.index_add_(0, seg, src)
def _pad(x, pw):
    flat = tuple(v for pair in reversed(pw) for v in pair)
    return torch.nn.functional.pad(x, flat)

kernel_name = 'gated_mix__linear_kernel_hedgehog__mha_block__prompt'

def setup_inputs():

    _w = (lambda a: (lambda t: t.to(torch.bfloat16) if t.is_floating_point() else t)(torch.as_tensor(a)))
    def _A_setup():
        B, S, D, H = 1, 2048, 1024, 32
        Dh = D // H
        return {
            "x": _w((lambda *s: torch.randn(*s, dtype=torch.bfloat16) * 0.05)(B, S, D)),
            "wqkv": _w((lambda *s: torch.randn(*s, dtype=torch.bfloat16) * 3.2)(D, 3 * D)),
            "w_phi": _w((lambda *s: torch.randn(*s, dtype=torch.bfloat16) * 3.2)(H, Dh, Dh) * (Dh ** -0.5)),
            "wo": _w((lambda *s: torch.randn(*s, dtype=torch.bfloat16) * 1.6)(D, D)),
        }
    _A_in = _A_setup()

    def _B_setup():
        B, S, D, H = 1, 2048, 1024, 32
        return {
            "x": _w((lambda *s: torch.randn(*s, dtype=torch.bfloat16) * 0.05)(B, S, D)),
            "wqkv": _w((lambda *s: torch.randn(*s, dtype=torch.bfloat16) * 3.2)(D, 3 * D)),
            "wo": _w((lambda *s: torch.randn(*s, dtype=torch.bfloat16) * 0.1)(D, D)),
        }
    _B_in = _B_setup()

    return {
        "A_x": _A_in["x"],
        "A_wqkv": _A_in["wqkv"],
        "A_w_phi": _A_in["w_phi"],
        "A_wo": _A_in["wo"],
        "B_x": _B_in["x"],
        "B_wqkv": _B_in["wqkv"],
        "B_wo": _B_in["wo"],
        "gate_w": _w((lambda *s: torch.randn(*s, dtype=torch.bfloat16) * 0.4)(1024) * 16.0),
    }

def reference(A_x, A_wqkv, A_w_phi, A_wo, B_x, B_wqkv, B_wo, gate_w):
    def _A_ref(x, wqkv, w_phi, wo):
        B, S, D = x.shape
        H = 32; Dh = D // H
        qkv = (lambda x, *d: x.permute(*d))((x @ wqkv).reshape(B, S, 3, H, Dh), 2, 0, 3, 1, 4)
        q, k, v = qkv[0], qkv[1], qkv[2]
        pq = torch.einsum("bhsd,hdf->bhsf", q, w_phi)
        pk = torch.einsum("bhsd,hdf->bhsf", k, w_phi)
        phi_q = torch.concatenate([_softmax(pq, axis=-1), _softmax(-pq, axis=-1)], axis=-1)
        phi_k = torch.concatenate([_softmax(pk, axis=-1), _softmax(-pk, axis=-1)], axis=-1)
        kv = torch.einsum("bhsf,bhsd->bhfd", phi_k, v)
        z  = torch.einsum("bhsf->bhf", phi_k)
        num = torch.einsum("bhqf,bhfd->bhqd", phi_q, kv)
        den = torch.einsum("bhqf,bhf->bhq", phi_q, z)[..., None] + 1e-6
        o = num / den
        return (lambda x, *d: x.permute(*d))(o, 0, 2, 1, 3).reshape(B, S, D) @ wo

    def _B_ref(x, wqkv, wo):
        B, S, D = x.shape
        H = 32
        Dh = D // H
        qkv = (lambda x, *d: x.permute(*d))((x @ wqkv).reshape(B, S, 3, H, Dh), 2, 0, 3, 1, 4)
        q, k, v = qkv[0], qkv[1], qkv[2]
        scores = torch.einsum("bhqd,bhkd->bhqk", q, k) * (Dh ** -0.5)
        p = _softmax(scores, axis=-1)
        o = torch.einsum("bhqk,bhkd->bhqd", p, v)
        return (lambda x, *d: x.permute(*d))(o, 0, 2, 1, 3).reshape(B, S, D) @ wo

    x = A_x
    g = _sigmoid((x * gate_w).sum(-1, keepdims=True))
    a = _A_ref(x, A_wqkv, A_w_phi, A_wo)
    b = _B_ref(x, B_wqkv, B_wo)
    return g * a + (1 - g) * b
```

```python
import re

REG_RE = re.compile(r'^(-|\|)?([vs])(\d+)\|?$')
RNG_RE = re.compile(r'^(-|\|)?([vs])\[(\d+):(\d+)\]\|?$')
TRANS = ('v_exp_f32', 'v_log_f32', 'v_rcp_f32', 'v_rsq_f32', 'v_sqrt_f32', 'v_sin_f32', 'v_cos_f32')


def regs_of(tok):
    tok = tok.strip()
    m = REG_RE.match(tok)
    if m:
        return {(m.group(2), int(m.group(3)))}
    m = RNG_RE.match(tok)
    if m:
        return {(m.group(2), i) for i in range(int(m.group(3)), int(m.group(4)) + 1)}
    if tok in ('vcc', '-vcc'):
        return {('s', 'vcc_lo'), ('s', 'vcc_hi')}
    if tok in ('vcc_lo', 'vcc_hi'):
        return {('s', tok)}
    if tok == 'exec':
        return {('s', 'exec_lo'), ('s', 'exec_hi')}
    if tok in ('exec_lo', 'exec_hi'):
        return {('s', tok)}
    if tok == 'm0':
        return {('s', 'm0')}
    return set()


def split_ops(rest):
    ops = []
    depth = 0
    cur = ''
    for ch in rest:
        if ch == '[':
            depth += 1
        if ch == ']':
            depth -= 1
        if ch == ',' and depth == 0:
            ops.append(cur.strip())
            cur = ''
        else:
            cur += ch
    if cur.strip():
        ops.append(cur.strip())
    return ops


class Ins:
    __slots__ = ('text', 'op', 'kind', 'defs', 'uses', 'A', 'B', 'C', 'D', 'passes', 'states',
                 'target', 'label', 'mods', 'data', 'wide', 'vuse', 'suse')

    def __init__(self, text):
        self.text = text
        self.label = None
        self.target = None
        self.defs = set()
        self.uses = set()
        self.A = self.B = self.C = self.D = set()
        self.passes = 0
        self.states = 1
        self.mods = ''
        self.data = set()
        self.wide = False
        t = text.split(';')[0].strip()
        if t.endswith(':'):
            self.label = t[:-1]
            self.kind = 'label'
            self.op = ''
            self.states = 0
            return
        if t == '' or t.startswith('.'):
            self.kind = 'dir'
            self.op = ''
            self.states = 0
            return
        parts = t.split(None, 1)
        op = parts[0]
        self.op = op
        rest = parts[1] if len(parts) > 1 else ''
        ops = split_ops(rest)
        if ops:
            last = ops[-1].split()
            self.mods = ' '.join(last[1:])
            ops[-1] = last[0]
        R = [regs_of(o) for o in ops]
        if op.startswith('v_mfma'):
            self.kind = 'mfma'
            self.D, self.A, self.B, self.C = R[0], R[1], R[2], R[3]
            self.defs = set(R[0])
            self.uses = R[1] | R[2] | R[3]
            self.passes = 8 if '32x32x16' in op else 4
        elif op.startswith('v_'):
            self.kind = 'valu'
            if op.startswith('v_permlane') or op.startswith('v_swap'):
                self.defs = R[0] | R[1]
                self.uses = R[0] | R[1]
            elif op.startswith('v_cmp'):
                self.defs = R[0]
                self.uses = set().union(*R[1:])
            else:
                self.defs = R[0]
                self.uses = set().union(*R[1:]) if len(R) > 1 else set()
                if op.startswith('v_fmac') or op.startswith('v_dot2c') or op.startswith('v_mac') \
                        or op.startswith('v_pk_fmac'):
                    self.uses |= R[0]
                if op.startswith('v_cndmask_b32') and len(R) == 3:
                    self.uses |= regs_of('vcc')
                if op.startswith('v_writelane'):
                    self.uses |= R[0]
        elif op.startswith('ds_'):
            self.kind = 'ds'
            if op.startswith('ds_read') or '_rtn_' in op or op.startswith('ds_bpermute') \
                    or op.startswith('ds_permute') or op.startswith('ds_swizzle'):
                self.defs = R[0]
                self.uses = set().union(*R[1:]) if len(R) > 1 else set()
            else:
                self.uses = set().union(*R)
        elif op.startswith('buffer_') or op.startswith('global_'):
            self.kind = 'vmem'
            islds = ' lds' in (' ' + self.mods)
            if op.startswith('buffer_load') or op.startswith('global_load'):
                if islds:
                    self.uses = set().union(*R) | {('s', 'm0')}
                    self.kind = 'ldsdma'
                else:
                    self.defs = R[0]
                    self.uses = set().union(*R[1:])
            elif 'atomic' in op and ('sc0' in self.mods):
                self.defs = R[0]
                self.uses = set().union(*R)
            else:
                self.uses = set().union(*R)
                self.data = R[0]
                self.wide = op.endswith('x4') or op.endswith('x3')
        elif op.startswith('s_'):
            self.kind = 'salu'
            if op == 's_nop':
                self.states = int(ops[0], 0) + 1
            elif op in ('s_branch',) or op.startswith('s_cbranch'):
                self.target = ops[0]
            elif op.startswith('s_cmp') or op in ('s_waitcnt', 's_barrier', 's_endpgm', 's_sleep', 's_setprio'):
                self.uses = set().union(*R) if R else set()
            else:
                self.defs = R[0] if R else set()
                self.uses = set().union(*R[1:]) if len(R) > 1 else set()
                if 'saveexec' in op:
                    self.defs = self.defs | regs_of('exec')
        else:
            raise ValueError('unknown instruction: ' + text)


def V(s):
    return {r for r in s if r[0] == 'v'}


def S(s):
    return {r for r in s if r[0] == 's'}


def required(p, c):
    need = 0
    pk, ck = p.kind, c.kind
    if pk == 'valu':
        pv = V(p.defs)
        ps = S(p.defs)
        if ck == 'mfma' and pv & c.uses:
            need = max(need, 2)
        if ck == 'valu':
            if p.op in TRANS and c.op not in TRANS and pv & c.uses:
                need = max(need, 1)
            if c.op.startswith('v_permlane') and pv & c.uses:
                need = max(need, 2)
            if (c.op.startswith('v_readlane') or c.op.startswith('v_readfirstlane')) and pv & c.uses:
                need = max(need, 1)
            if ('row_' in c.mods or 'quad_perm' in c.mods or 'wave_' in c.mods) and pv & c.uses:
                need = max(need, 2)
            if ps & c.uses:
                need = max(need, 4 if c.op.startswith(('v_readlane', 'v_writelane')) else 2)
            if p.op.startswith('v_dot') and pv & (c.uses | c.defs):
                same_c = c.op == p.op
                if not same_c:
                    need = max(need, 3)
        if p.op.startswith('v_dot') and ck != 'valu' and pv & (c.uses | c.defs):
            need = max(need, 3)
        if p.op in TRANS and ck in ('ds', 'vmem') and pv & c.uses:
            need = max(need, 1)
        if ck in ('vmem', 'ldsdma') and ps & c.uses:
            need = max(need, 5)
    elif pk == 'mfma':
        D = p.D
        big = p.passes == 8
        if ck == 'mfma':
            if D & c.C:
                if not (D == c.C and p.passes == c.passes):
                    need = max(need, 10 if big else 6)
            if D & (c.A | c.B):
                need = max(need, 12 if big else 8)
            if D & c.D and not (D & c.C):
                if p.passes != c.passes:
                    need = max(need, 10 if big else 6)
        elif ck in ('valu', 'ds', 'vmem', 'ldsdma'):
            if D & (c.uses | c.defs):
                need = max(need, 12 if big else 8)
            if ck == 'valu' and (p.C & V(c.defs)):
                need = max(need, 7 if big else 3)
    elif pk == 'salu':
        if ('s', 'm0') in p.defs and ck == 'ldsdma':
            need = max(need, 1)
    elif pk == 'vmem':
        if p.wide and p.data & V(c.defs):
            need = max(need, 2 if ck == 'valu' else 1)
    return need


MAXLOOK = 14


class Asm:
    def __init__(self):
        self.lines = []

    def __call__(self, text):
        for ln in text.split('\n'):
            ln = ln.strip()
            if ln:
                self.lines.append(ln)

    def label(self, name):
        self.lines.append(name + ':')

    def finalize(self, report=False):
        ins = [Ins(l) for l in self.lines]
        labels = {x.label: i for i, x in enumerate(ins) if x.label}
        assert len(labels) == sum(1 for x in ins if x.label), 'duplicate label'
        preds = [[] for _ in ins]
        for i, x in enumerate(ins):
            if x.target is not None:
                preds[labels[x.target]].append(i)
            if i + 1 < len(ins) and x.op not in ('s_branch', 's_endpgm'):
                preds[i + 1].append(i)
        pre = [0] * len(ins)
        inserted = []
        for i, c in enumerate(ins):
            if c.kind in ('label', 'dir'):
                continue
            worst = 0
            why = None
            stack = [(q, 0) for q in preds[i]]
            seen = {}
            while stack:
                j, d = stack.pop()
                if j in seen and seen[j] <= d:
                    continue
                seen[j] = d
                p = ins[j]
                if p.kind not in ('label', 'dir'):
                    r = required(p, c)
                    if r - d > worst:
                        worst = r - d
                        why = p
                nd = d + p.states + pre[j]
                if nd < MAXLOOK:
                    for q in preds[j]:
                        stack.append((q, nd))
            if worst > 0:
                pre[i] = worst
                inserted.append((worst, why.text, c.text))
        if report:
            for w, a, b in inserted:
                print('  nop %d  between [%s] and [%s]' % (w, a, b))
        self.inserted = inserted
        out = []
        self.count = 0
        for i, x in enumerate(ins):
            if pre[i]:
                out.append('    s_nop %d' % (pre[i] - 1))
                self.count += 1
            if x.kind == 'label':
                out.append(x.text)
            else:
                out.append('    ' + x.text)
                self.count += 1
        return '\n'.join(out) + '\n'
```

```python
import sys, struct, os
sys.path.insert(0, os.path.dirname(os.path.abspath(__file__)))
from asmlib import Asm

NAME = 'gated_mix__linear_kernel_hedgehog__mha_block__prompt'
L2E = 1.4426950408889634
QS = L2E / (32 ** 0.5)


def f2u(x):
    return struct.unpack('<I', struct.pack('<f', x))[0]


def hx(x):
    return '0x%x' % x


KV_OFF = 0
O_OFF = 8 << 20
KVP_OFF = 16 << 20
ZP_OFF = 18 << 20
FLG_OFF = 19 << 20
F1_OFF = FLG_OFF
F1B_OFF = FLG_OFF + 2048
F2_OFF = FLG_OFF + 4096
WS_SIZE = 20 << 20
XS = 0
WSL = 49152
WPHI = 147456
GW = 151552
LOG = 153600
CNT = 154112
QX = 0
PHI = 16384
KVX = 49152
KVZ = 65536
MRG = 66560
MRG_STRIDE = 9216
ZT = 140288
XCH = 131072
LDS_SIZE = 163840
SPIN = 1 << 16
BIGOFF = 0x7000000
MOFF = 100.0

sX, sW, sWS, sOUT, sDBG, sT = 4, 8, 12, 16, 20, 24
S_W, S_BR, S_HD, S_TT, S_HP, S_MB, S_C, S_HEAD = 48, 49, 50, 51, 52, 53, 54, 55
S_DWL, S_DXL, S_WC, S_XC, S_XN, S_XNN, S_WK, S_U = 56, 57, 58, 59, 60, 61, 62, 63
S_T0, S_T1, S_T2, S_T3, S_T4 = 64, 65, 66, 67, 68
S_L2E, S_QS, S_SPIN, S_RETRY, S_J, S_ROT, S_IT = 69, 70, 71, 72, 73, 74, 75
S_4096 = 76
S_EX = 78


def srd(b):
    return 's[%d:%d]' % (b, b + 3)


def vr(b, n=4):
    return 'v[%d:%d]' % (b, b + n - 1)


def mf32(d, A, B, C=None):
    c = vr(d, 16) if C is None else ('0' if C == 'z' else vr(C, 16))
    return 'v_mfma_f32_32x32x16_bf16 %s, %s, %s, %s' % (vr(d, 16), vr(A), vr(B), c)


def mf16(d, A, B, C=None):
    c = vr(d, 4) if C is None else ('0' if C == 'z' else vr(C, 4))
    return 'v_mfma_f32_16x16x32_bf16 %s, %s, %s, %s' % (vr(d, 4), vr(A), vr(B), c)


def cvt(d, a, b):
    return 'v_cvt_pk_bf16_f32 v%d, v%d, v%d' % (d, a, b)


def interleave(mf, other, per=None):
    out = []
    n = len(mf)
    k = len(other)
    pos = 0
    for i, m in enumerate(mf):
        out.append(m)
        end = (k * (i + 1)) // n if per is None else min(k, pos + per[i])
        out += other[pos:end]
        pos = end
    out += other[pos:]
    return out


class Gen:
    def __init__(self, cfg):
        self.cfg = cfg
        self.a = Asm()
        self.uid = 0

    def lab(self, s):
        self.uid += 1
        return 'L_%s_%d' % (s, self.uid)

    def emit(self, lines):
        if isinstance(lines, str):
            self.a(lines)
        else:
            for l in lines:
                self.a(l)

    def make_srd(self, b, lo, hi, size):
        self.emit(f'''
        s_mov_b32 s{b}, s{lo}
        s_mov_b32 s{b+1}, s{hi}
        s_mov_b32 s{b+2}, {hx(size)}
        s_mov_b32 s{b+3}, 0x20000''')

    def poll(self, voff, soff_imm, vtmp, srdb=sWS, want=1):
        l0 = self.lab('poll')
        l1 = self.lab('polled')
        self.emit(f'''
        s_mov_b32 s{S_SPIN}, 0
        s_mov_b32 s{S_T4}, {hx(soff_imm)}
        {l0}:
        buffer_load_dword v{vtmp}, v{voff}, {srd(srdb)}, s{S_T4} offen sc1
        s_waitcnt vmcnt(0)
        v_cmp_ne_u32 vcc, {want}, v{vtmp}
        s_cbranch_vccz {l1}
        s_add_u32 s{S_SPIN}, s{S_SPIN}, 1
        s_cmp_ge_u32 s{S_SPIN}, {hx(SPIN)}
        s_cbranch_scc1 {l1}
        s_sleep 1
        s_branch {l0}
        {l1}:''')

    def count_and_flag(self, cnt_idx, last, flag_soff_expr, vt0, vt1):
        l1 = self.lab('noflag')
        self.emit(f'''
        s_mov_b64 exec, 1
        v_mov_b32 v{vt0}, {hx(CNT + 4 * cnt_idx)}
        v_mov_b32 v{vt1}, 1
        ds_add_rtn_u32 v{vt1}, v{vt0}, v{vt1}
        s_waitcnt lgkmcnt(0)
        v_cmp_ne_u32 vcc, {last}, v{vt1}
        s_cbranch_vccnz {l1}''')
        self.emit(flag_soff_expr)
        self.emit(f'''
        v_mov_b32 v{vt1}, 1
        v_mov_b32 v{vt0}, 0
        buffer_store_dword v{vt1}, v{vt0}, {srd(sWS)}, s{S_T0} offen sc1
        {l1}:
        s_mov_b64 exec, -1''')

    Q0, Q1, K0, K1, V0, V1 = 0, 16, 32, 48, 64, 80
    F = [dict(x0=96, x1=100, wq=104, wk=108, wv=112), dict(x0=116, x1=120, wq=124, wk=128, wv=132)]
    GWF, GACC = 136, 140
    vWr, vWa, vXr, vXa, vDW, vDX, vGa = 142, 143, 144, 148, 149, 150, 151
    vL, vL16, vHf = 253, 254, 255
    vT = 155
    vDummy = 164
    vDb = 165

    def prologue(self):
        e = self.emit
        vL, vL16, vHf, vT = self.vL, self.vL16, self.vHf, self.vT
        e(f'''
        s_cmp_ge_u32 s2, 256
        s_cbranch_scc1 L_end
        s_load_dwordx4 s[28:31], s[0:1], 0
        s_load_dwordx4 s[32:35], s[0:1], 16
        s_load_dwordx4 s[36:39], s[0:1], 40
        s_load_dwordx4 s[40:43], s[0:1], 56
        s_load_dwordx4 s[44:47], s[0:1], 72
        s_getpc_b64 s[24:25]
        L_pcbase:
        s_mov_b32 s26, L_codeend-L_pcbase
        s_mov_b32 s27, 0x20000
        v_and_b32 v{vL}, 63, v0
        v_lshrrev_b32 v{vT}, 6, v0
        v_lshlrev_b32 v{vT+1}, 7, v0
        v_readfirstlane_b32 s{S_W}, v{vT}''')
        if self.cfg.get('code_prefetch', True):
            e(f'buffer_load_dword v{self.vDummy}, v{vT+1}, {srd(sT)}, 0 offen')
        e(f'''
        v_lshlrev_b32 v{vT+1}, 2, v0
        v_add_u32 v{vT+1}, {hx(LOG)}, v{vT+1}
        v_mov_b32 v{vT+2}, 0
        ds_write_b32 v{vT+1}, v{vT+2}
        v_lshlrev_b32 v{vL16}, 4, v{vL}
        v_lshrrev_b32 v{vHf}, 5, v{vL}
        s_lshr_b32 s{S_BR}, s{S_W}, 2
        s_lshr_b32 s{S_C}, s{S_W}, 1
        s_and_b32 s{S_HD}, s{S_C}, 1
        s_and_b32 s{S_TT}, s{S_W}, 1
        s_and_b32 s{S_T0}, s2, 7
        s_lshr_b32 s{S_T1}, s2, 3
        s_and_b32 s{S_T2}, s{S_T1}, 1
        s_lshl_b32 s{S_HP}, s{S_T0}, 1
        s_add_u32 s{S_HP}, s{S_HP}, s{S_T2}
        s_lshr_b32 s{S_MB}, s{S_T1}, 1
        s_lshl_b32 s{S_HEAD}, s{S_HP}, 1
        s_add_u32 s{S_HEAD}, s{S_HEAD}, s{S_HD}
        s_mov_b32 s{S_L2E}, {hx(f2u(L2E))}
        s_mov_b32 s{S_QS}, {hx(f2u(QS))}
        s_mov_b32 s{S_4096}, 4096''')
        t0, t1, t2 = vT, vT + 1, vT + 2
        e(f'''
        v_bfe_u32 v{t0}, v{vL}, 2, 2
        v_lshlrev_b32 v{t0}, 6, v{t0}
        v_bfe_u32 v{t1}, v{vL}, 4, 1
        v_lshl_add_u32 v{t0}, v{t1}, 5, v{t0}
        v_and_b32 v{t1}, 3, v{vL}
        v_lshl_add_u32 v{t0}, v{t1}, 3, v{t0}
        v_lshl_add_u32 v{self.vWr}, v{vHf}, 10, v{t0}
        s_mul_i32 s{S_T0}, s{S_BR}, 12288
        s_lshl_b32 s{S_T1}, s{S_HD}, 9
        s_add_u32 s{S_T0}, s{S_T0}, s{S_T1}
        s_add_u32 s{S_T0}, s{S_T0}, {hx(WSL)}
        v_add_u32 v{self.vWr}, s{S_T0}, v{self.vWr}''')
        e(f'''
        v_and_b32 v{t0}, 31, v{vL}
        s_lshl_b32 s{S_T0}, s{S_TT}, 6
        v_add_u32 v{t0}, s{S_T0}, v{t0}
        v_lshlrev_b32 v{t0}, 7, v{t0}
        v_bfe_u32 v{t1}, v{vL}, 1, 3
        v_xor_b32 v{t1}, v{t1}, v{vHf}''')
        for sg in range(4):
            e(f'''
            v_xor_b32 v{t2}, {2*sg}, v{t1}
            v_lshl_add_u32 v{self.vXr+sg}, v{t2}, 4, v{t0}''')
        e(f'''
        s_and_b32 s{S_T0}, s{S_W}, 3
        s_lshl_b32 s{S_T1}, s{S_T0}, 3
        v_bfe_u32 v{t0}, v{vL}, 2, 3
        v_add_u32 v{t0}, s{S_T1}, v{t0}
        v_mul_u32_u24 v{t0}, 6144, v{t0}
        v_lshl_add_u32 v{t0}, v{vHf}, 6, v{t0}
        v_and_b32 v{t1}, 3, v{vL}
        v_lshl_add_u32 v{t0}, v{t1}, 4, v{t0}
        s_lshl_b32 s{S_T1}, s{S_HP}, 7
        v_add_u32 v{self.vDW}, s{S_T1}, v{t0}
        s_lshl_b32 s{S_T0}, s{S_T0}, 10
        s_mul_i32 s{S_T1}, s{S_BR}, 12288
        s_add_u32 s{S_DWL}, s{S_T0}, s{S_T1}
        s_add_u32 s{S_DWL}, s{S_DWL}, {hx(WSL)}''')
        e(f'''
        s_lshl_b32 s{S_T0}, s{S_MB}, 7
        s_lshl_b32 s{S_T1}, s{S_W}, 3
        s_add_u32 s{S_T0}, s{S_T0}, s{S_T1}
        v_lshrrev_b32 v{t0}, 3, v{vL}
        v_add_u32 v{t0}, s{S_T0}, v{t0}
        v_lshlrev_b32 v{t0}, 11, v{t0}
        s_lshl_b32 s{S_T1}, s{S_TT}, 2
        v_lshrrev_b32 v{t1}, 4, v{vL}
        v_add_u32 v{t1}, s{S_T1}, v{t1}
        v_xor_b32 v{t1}, v{t1}, v{vL}
        v_and_b32 v{t1}, 7, v{t1}
        v_lshl_add_u32 v{self.vDX}, v{t1}, 4, v{t0}
        s_lshl_b32 s{S_DXL}, s{S_W}, 10
        s_add_u32 s{S_DXL}, s{S_DXL}, {hx(XS)}''')
        e(f'''
        s_lshl_b32 s{S_T0}, s{S_C}, 5
        s_add_u32 s{S_T0}, s{S_T0}, {hx(GW)}
        v_lshlrev_b32 v{t0}, 4, v{vHf}
        v_add_u32 v{self.vGa}, s{S_T0}, v{t0}
        v_mov_b32 v{self.GACC}, 0
        v_mov_b32 v{self.GACC+1}, 0''')
        for r in range(0, 96):
            e(f'v_mov_b32 v{r}, 0')
        e('s_waitcnt lgkmcnt(0)')
        self.make_srd(sX, 28, 29, 4 << 20)
        e(f'''
        s_cmp_eq_u32 s{S_BR}, 1
        s_cselect_b32 s{sW}, s36, s30
        s_cselect_b32 s{sW+1}, s37, s31
        s_mov_b32 s{sW+2}, {hx(6 << 20)}
        s_mov_b32 s{sW+3}, 0x20000''')
        self.make_srd(sWS, 46, 47, WS_SIZE)
        self.make_srd(sOUT, 42, 43, 4 << 20)
        self.make_srd(sDBG, 44, 45, 256)
        lc = self.lab('noclear')
        e(f'''
        s_or_b32 s{S_T0}, s2, s{S_W}
        s_cmp_lg_u32 s{S_T0}, 0
        s_cbranch_scc1 {lc}''')
        e('''
        v_mov_b32 v156, 0
        v_mov_b32 v157, 0
        v_mov_b32 v158, 0
        v_mov_b32 v159, 0''')
        for i in range(6):
            e(f'''
            s_mov_b32 s{S_T1}, {hx(FLG_OFF + i * 1024)}
            buffer_store_dwordx4 v[156:159], v{vL16}, {srd(sWS)}, s{S_T1} offen sc1''')
        e(f'{lc}:')
        e(f'''
        s_cmp_eq_u32 s{S_BR}, 1
        s_cselect_b32 s{sT}, s40, s32
        s_cselect_b32 s{sT+1}, s41, s33
        s_movk_i32 s{sT+2}, 2048
        s_cselect_b32 s{sT+2}, s{sT+2}, 0x10000
        s_mov_b32 s{sT+3}, 0x20000
        s_and_b32 s{S_T0}, s{S_W}, 3
        s_lshl_b32 s{S_T0}, s{S_T0}, 10
        s_lshl_b32 s{S_T1}, s{S_HP}, 12
        s_add_u32 s{S_T1}, s{S_T1}, s{S_T0}
        s_add_u32 s{S_T0}, s{S_T0}, {hx(WPHI)}
        s_lshl_b32 s{S_T2}, s{S_TT}, 10
        s_add_u32 s{S_T3}, s{S_T2}, {hx(GW)}
        s_cmp_eq_u32 s{S_BR}, 1
        s_cselect_b32 s{S_T1}, s{S_T2}, s{S_T1}
        s_cselect_b32 m0, s{S_T3}, s{S_T0}
        s_nop 0
        buffer_load_dwordx4 v{vL16}, {srd(sT)}, s{S_T1} offen lds''')
        self.dma_x_const(0, 0)
        for sp in range(-4, 0):
            self.dma_w_const(sp + 4)
            u = (sp + 5) >> 1
            h = (sp + 1) & 1
            self.dma_x_const(u, h)
        e(f'''
        s_mov_b32 s{S_WC}, 0
        s_mov_b32 s{S_XC}, 0
        s_mov_b32 s{S_XN}, 16384
        s_mov_b32 s{S_XNN}, 32768
        s_mov_b32 s{S_WK}, {hx(4 * 196608)}
        s_mov_b32 s{S_U}, 0
        s_waitcnt vmcnt(12) lgkmcnt(0)
        s_barrier''')
        lc = self.lab('nopub')
        e(f'''
        s_or_b32 s{S_T0}, s2, s{S_W}
        s_cmp_lg_u32 s{S_T0}, 0
        s_cbranch_scc1 {lc}
        v_mov_b32 v{t0}, 1
        buffer_store_dword v{t0}, off, {srd(sDBG)}, 0 sc1
        s_waitcnt vmcnt(12)
        {lc}:''')
        F0 = self.F[0]
        e(f'v_mov_b32 v{self.vWa}, v{self.vWr}')
        e(f'v_mov_b32 v{self.vXa}, v{self.vXr}')
        e(self.frag_reads(F0, 0))
        e(f'ds_read_b128 {vr(self.GWF)}, v{self.vGa}')
        e('s_waitcnt lgkmcnt(0)')

    def dma_x_const(self, u, h):
        self.emit(f'''
        s_add_u32 m0, s{S_DXL}, {hx((u % 3) * 16384 + h * 8192)}
        s_mov_b32 s{S_T0}, {hx(h * 131072 + u * 128)}
        buffer_load_dwordx4 v{self.vDX}, {srd(sX)}, s{S_T0} offen lds''')

    def dma_w_const(self, st):
        for i in range(3):
            self.emit(f'''
            s_add_u32 m0, s{S_DWL}, {hx((st % 4) * 24576 + i * 4096)}
            s_mov_b32 s{S_T0}, {hx(st * 196608 + i * 2048)}
            buffer_load_dwordx4 v{self.vDW}, {srd(sW)}, s{S_T0} offen lds''')

    def frag_reads(self, F, step):
        o = step * 2048
        L = [f'ds_read_b128 {vr(F["x0"])}, v{self.vXa}',
             f'ds_read_b64_tr_b16 {vr(F["wq"], 2)}, v{self.vWa} offset:{o}',
             f'ds_read_b64_tr_b16 {vr(F["wq"] + 2, 2)}, v{self.vWa} offset:{o + 256}',
             f'ds_read_b128 {vr(F["x1"])}, v{self.vXa} offset:4096',
             f'ds_read_b64_tr_b16 {vr(F["wk"], 2)}, v{self.vWa} offset:{o + 4096}',
             f'ds_read_b64_tr_b16 {vr(F["wk"] + 2, 2)}, v{self.vWa} offset:{o + 4096 + 256}',
             f'ds_read_b64_tr_b16 {vr(F["wv"], 2)}, v{self.vWa} offset:{o + 8192}',
             f'ds_read_b64_tr_b16 {vr(F["wv"] + 2, 2)}, v{self.vWa} offset:{o + 8192 + 256}']
        return L

    def gemm_mfmas(self, F):
        return [mf32(self.Q0, F['wq'], F['x0']), mf32(self.Q1, F['wq'], F['x1']),
                mf32(self.K0, F['wk'], F['x0']), mf32(self.K1, F['wk'], F['x1']),
                mf32(self.V0, F['x0'], F['wv']), mf32(self.V1, F['x1'], F['wv'])]

    def gate_dots(self, F, sigma):
        l = self.lab('nogate')
        L = [f's_cmp_eq_u32 s{S_C}, {sigma}', f's_cbranch_scc0 {l}']
        for i in range(4):
            L.append(f'v_dot2_f32_bf16 v{self.GACC}, v{F["x0"]+i}, v{self.GWF+i}, v{self.GACC}')
            L.append(f'v_dot2_f32_bf16 v{self.GACC+1}, v{F["x1"]+i}, v{self.GWF+i}, v{self.GACC+1}')
        L.append(f'{l}:')
        return L

    def gemm_step(self, sigma):
        e = self.emit
        cur = self.F[sigma & 1]
        nxt = self.F[(sigma + 1) & 1]
        mf = self.gemm_mfmas(cur)
        second = sigma & 1
        pre = []
        if second:
            pre += [f's_add_u32 s{S_T1}, s{S_WC}, 24576',
                    f's_cmp_eq_u32 s{S_T1}, 98304',
                    f's_cselect_b32 s{S_T1}, 0, s{S_T1}',
                    f'v_add_u32 v{self.vWa}, s{S_T1}, v{self.vWr}']
        xs = S_XN if sigma == 3 else S_XC
        pre += [f'v_add_u32 v{self.vXa}, s{xs}, v{self.vXr + ((sigma + 1) & 3)}']
        reads = self.frag_reads(nxt, 0 if second else 1)
        dma = []
        if second:
            dma += [f's_add_u32 s{S_T2}, s{S_DWL}, s{S_WC}']
            for i in range(3):
                dma += [f's_add_u32 m0, s{S_T2}, {i * 4096}',
                        f's_add_u32 s{S_T0}, s{S_WK}, {i * 2048}',
                        f'buffer_load_dwordx4 v{self.vDW}, {srd(sW)}, s{S_T0} offen lds']
            if sigma == 1:
                dma += [f's_add_u32 s{S_T2}, s{S_DXL}, s{S_XNN}',
                        f's_add_u32 m0, s{S_T2}, 8192',
                        f's_lshl_b32 s{S_T0}, s{S_U}, 7',
                        f's_add_u32 s{S_T0}, s{S_T0}, {hx(131072 + 256)}',
                        f's_cmp_ge_u32 s{S_U}, 14']
            else:
                dma += [f's_add_u32 m0, s{S_DXL}, s{S_XC}',
                        f's_lshl_b32 s{S_T0}, s{S_U}, 7',
                        f's_add_u32 s{S_T0}, s{S_T0}, 384',
                        f's_cmp_ge_u32 s{S_U}, 13']
            dma += [f's_cselect_b32 s{S_T0}, {hx(BIGOFF)}, s{S_T0}',
                    f'buffer_load_dwordx4 v{self.vDX}, {srd(sX)}, s{S_T0} offen lds',
                    f's_add_u32 s{S_WK}, s{S_WK}, {hx(196608)}',
                    f's_mov_b32 s{S_WC}, s{S_T1}']
        e(pre)
        e(mf[0]); e(reads[0:3])
        e(mf[1]); e(reads[3:6])
        e(mf[2]); e(reads[6:8])
        e(self.gate_dots(cur, sigma))
        if sigma == 3:
            e(f'v_add_u32 v{self.vGa}, 128, v{self.vGa}')
            e(f'ds_read_b128 {vr(self.GWF)}, v{self.vGa}')
        if second:
            cut = [i for i, x in enumerate(dma) if x.startswith('buffer_load')]
            e(mf[3]); e(dma[:cut[1] + 1])
            e(mf[4]); e(dma[cut[1] + 1:])
            e(mf[5])
            e('s_waitcnt lgkmcnt(0)')
        else:
            e(mf[3]); e(mf[4]); e(mf[5])
            e('s_waitcnt vmcnt(8) lgkmcnt(0)')
            e('s_barrier')

    def gemm_loop(self):
        e = self.emit
        e('L_gemm:')
        for sg in range(4):
            self.gemm_step(sg)
        e(f'''
        s_mov_b32 s{S_T0}, s{S_XC}
        s_mov_b32 s{S_XC}, s{S_XN}
        s_mov_b32 s{S_XN}, s{S_XNN}
        s_mov_b32 s{S_XNN}, s{S_T0}
        s_add_u32 s{S_U}, s{S_U}, 1
        s_cmp_lt_u32 s{S_U}, 16
        s_cbranch_scc1 L_gemm''')
        t0 = self.vT
        e(f'''
        v_and_b32 v{t0}, 31, v{self.vL}
        s_lshl_b32 s{S_T0}, s{S_TT}, 6
        v_add_u32 v{t0}, s{S_T0}, v{t0}
        v_lshlrev_b32 v{t0}, 2, v{t0}
        v_add_u32 v{t0}, {hx(LOG)}, v{t0}
        ds_add_f32 v{t0}, v{self.GACC}
        ds_add_f32 v{t0}, v{self.GACC+1} offset:128
        v_mov_b32 v{t0+1}, 0''')
        self.poll(t0 + 1, 0, self.vDb, srdb=sDBG)
        e('''
        s_waitcnt lgkmcnt(0)
        s_barrier''')

    Sa, Sb, Ca, Cb, Oa, Ob = 0, 16, 32, 48, 64, 80
    QF = 96
    Pa, Pb = 112, 120
    la, lb = 128, 132
    ONES = 136
    KVB = [140, 156, 172, 188]
    vKV = 204
    vMa, vMb = 205, 206
    vA = 207

    def epi_B(self):
        e = self.emit
        t0 = self.vT
        e('L_epiB:')
        e(f'''
        s_lshl_b32 s{S_T0}, s{S_HEAD}, 18
        s_lshl_b32 s{S_T1}, s{S_MB}, 14
        s_add_u32 s{S_T0}, s{S_T0}, s{S_T1}
        s_lshl_b32 s{S_T1}, s{S_TT}, 13
        s_add_u32 s{S_T0}, s{S_T0}, s{S_T1}
        v_add_u32 v{t0}, s{S_T0}, v{self.vL16}''')
        kf, vf = 112, 128
        for tau, acc in ((0, self.K0), (1, self.K1)):
            for i in range(8):
                e(cvt(kf + tau * 8 + i, acc + 2 * i, acc + 2 * i + 1))
            so = '0' if tau == 0 else f's{S_4096}'
            e(f'buffer_store_dwordx4 {vr(kf + tau * 8)}, v{t0}, {srd(sWS)}, {so} offen sc1')
            e(f'buffer_store_dwordx4 {vr(kf + tau * 8 + 4)}, v{t0}, {srd(sWS)}, {so} offen offset:1024 sc1')
        for tau, acc in ((0, self.V0), (1, self.V1)):
            for i in range(8):
                e(cvt(vf + tau * 8 + i, acc + 2 * i, acc + 2 * i + 1))
            so = '0' if tau == 0 else f's{S_4096}'
            e(f'buffer_store_dwordx4 {vr(vf + tau * 8)}, v{t0}, {srd(sWS)}, {so} offen offset:2048 sc1')
            e(f'buffer_store_dwordx4 {vr(vf + tau * 8 + 4)}, v{t0}, {srd(sWS)}, {so} offen offset:3072 sc1')
        e(f'''
        s_lshl_b32 s{S_T0}, s{S_HD}, 1
        s_add_u32 s{S_T0}, s{S_T0}, s{S_TT}
        s_lshl_b32 s{S_T0}, s{S_T0}, 12
        s_add_u32 s{S_T0}, s{S_T0}, {QX}
        v_add_u32 v{t0+1}, s{S_T0}, v{self.vL16}''')
        for tau, acc in ((1, self.Q1), (0, self.Q0)):
            dst = self.QF + (0 if tau == 1 else 8)
            for r in range(16):
                e(f'v_mul_f32 v{acc+r}, s{S_QS}, v{acc+r}')
            for i in range(8):
                e(cvt(dst + i, acc + 2 * i, acc + 2 * i + 1))
            e(f'ds_write_b128 v{t0+1}, {vr(dst)} offset:{tau * 2048}')
            e(f'ds_write_b128 v{t0+1}, {vr(dst + 4)} offset:{tau * 2048 + 1024}')
        e('s_waitcnt vmcnt(0)')
        self.count_and_flag(0, 3, f'''
        s_lshl_b32 s{S_T0}, s{S_HP}, 7
        s_lshl_b32 s{S_T1}, s{S_MB}, 2
        s_add_u32 s{S_T0}, s{S_T0}, s{S_T1}
        s_add_u32 s{S_T0}, s{S_T0}, {hx(F1_OFF)}''', t0 + 2, t0 + 3)
        e('''
        s_waitcnt lgkmcnt(0)
        s_barrier
        s_branch L_attn''')

    def make_ident(self, I0, t):
        e = self.emit
        e(f'''
        v_and_b32 v{t}, 31, v{self.vL}
        v_lshlrev_b32 v{t+1}, 2, v{self.vHf}
        v_sub_u32 v{t}, v{t}, v{t+1}
        v_and_b32 v{t+1}, 1, v{t}
        v_lshlrev_b32 v{t+1}, 4, v{t+1}
        v_mov_b32 v{t+2}, 0x3f80
        v_lshlrev_b32 v{t+1}, v{t+1}, v{t+2}
        v_ashrrev_i32 v{t}, 1, v{t}''')
        for s in range(2):
            for i in range(4):
                key = 8 * s + (i & 1) + 4 * (i >> 1)
                e(f'v_cmp_eq_u32 vcc, {key}, v{t}')
                e(f'v_cndmask_b32 v{I0 + 4 * s + i}, 0, v{t+1}, vcc')

    def make_ones16(self, d, t):
        e = self.emit
        e(f'''
        v_lshrrev_b32 v{t}, 2, v{self.vL}
        v_lshrrev_b32 v{t+1}, 4, v{self.vL}
        v_xor_b32 v{t}, v{t}, v{t+1}
        v_and_b32 v{t}, 1, v{t}
        v_mov_b32 v{t+1}, 0x3f803f80
        v_cmp_eq_u32 vcc, 0, v{t}''')
        for i in range(4):
            e(f'v_cndmask_b32 v{d+i}, 0, v{t+1}, vcc')

    def dual_softmax(self, X, E, P1, P2, t):
        e = self.emit
        mx, nm, u, w = t, t + 1, t + 2, t + 3
        e(f'v_max3_f32 v{mx}, v{X}, v{X+1}, v{X+2}')
        e(f'v_max3_f32 v{nm}, -v{X}, -v{X+1}, -v{X+2}')
        for i in range(3, 15, 2):
            e(f'v_max3_f32 v{mx}, v{mx}, v{X+i}, v{X+i+1}')
            e(f'v_max3_f32 v{nm}, v{nm}, -v{X+i}, -v{X+i+1}')
        e(f'v_max_f32 v{mx}, v{mx}, v{X+15}')
        e(f'v_max_f32 v{nm}, v{nm}, -v{X+15}'.replace('v_max_f32', 'v_max_f32_e64'))
        e(f'''
        v_permlane32_swap_b32 v{mx}, v{nm}
        v_max_f32 v{mx}, v{mx}, v{nm}
        v_mov_b32 v{nm}, v{mx}
        v_permlane32_swap_b32 v{mx}, v{nm}
        v_mul_f32 v{mx}, s{S_L2E}, v{mx}
        v_mul_f32 v{nm}, s{S_L2E}, v{nm}''')
        for r in range(16):
            e(f'v_fma_f32 v{E+r}, v{X+r}, s{S_L2E}, -v{mx}')
            e(f'v_fma_f32 v{X+r}, v{X+r}, -s{S_L2E}, -v{nm}')
        for r in range(16):
            e(f'v_exp_f32 v{E+r}, v{E+r}')
            e(f'v_exp_f32 v{X+r}, v{X+r}')
        e(f'v_add_f32 v{u}, v{E}, v{E+1}')
        e(f'v_add_f32 v{w}, v{X}, v{X+1}')
        for r in range(2, 16):
            e(f'v_add_f32 v{u}, v{u}, v{E+r}')
            e(f'v_add_f32 v{w}, v{w}, v{X+r}')
        e(f'''
        v_permlane32_swap_b32 v{u}, v{w}
        v_add_f32 v{u}, v{u}, v{w}
        v_mov_b32 v{w}, v{u}
        v_permlane32_swap_b32 v{u}, v{w}
        v_rcp_f32 v{u}, v{u}
        v_rcp_f32 v{w}, v{w}''')
        for r in range(16):
            e(f'v_mul_f32 v{E+r}, v{E+r}, v{u}')
            e(f'v_mul_f32 v{X+r}, v{X+r}, v{w}')
        for i in range(8):
            e(cvt(P1 + i, E + 2 * i, E + 2 * i + 1))
            e(cvt(P2 + i, X + 2 * i, X + 2 * i + 1))

    def epi_A(self):
        e = self.emit
        t0 = self.vT
        qf, kf, vf, wf, I0, ones = 96, 112, 128, 144, 166, 174
        zf, zs = 178, 182
        E, P1, P2, T1, T2, tt = 186, 202, 210, 218, 234, 159
        kv1, kv2 = self.V0, self.V1
        e('L_epiA:')
        e(f'''
        v_bfe_u32 v{t0}, v{self.vL}, 2, 2
        v_lshlrev_b32 v{t0}, 6, v{t0}
        v_bfe_u32 v{t0+1}, v{self.vL}, 4, 1
        v_lshl_add_u32 v{t0}, v{t0+1}, 5, v{t0}
        v_and_b32 v{t0+1}, 3, v{self.vL}
        v_lshl_add_u32 v{t0}, v{t0+1}, 3, v{t0}
        v_lshl_add_u32 v{t0}, v{self.vHf}, 8, v{t0}
        s_lshl_b32 s{S_T0}, s{S_HD}, 11
        s_add_u32 s{S_T0}, s{S_T0}, {hx(WPHI)}
        v_add_u32 v{t0}, s{S_T0}, v{t0}''')
        for s in range(2):
            e(f'ds_read_b64_tr_b16 {vr(wf + 4 * s, 2)}, v{t0} offset:{s * 1024}')
            e(f'ds_read_b64_tr_b16 {vr(wf + 4 * s + 2, 2)}, v{t0} offset:{s * 1024 + 512}')
        for base, accs in ((kf, (self.K0, self.K1)), (vf, (self.V0, self.V1)), (qf, (self.Q0, self.Q1))):
            for tau in range(2):
                for i in range(8):
                    e(cvt(base + tau * 8 + i, accs[tau] + 2 * i, accs[tau] + 2 * i + 1))
        self.make_ident(I0, tt)
        self.make_ones16(ones, tt)
        e(f'''
        s_mul_i32 s{S_T0}, s{S_TT}, 0x80008000
        s_waitcnt lgkmcnt(0)''')
        for i in range(8):
            e(f'v_xor_b32 v{wf+i}, s{S_T0}, v{wf+i}')
        for acc, fr in ((self.K0, kf), (self.K1, kf + 8), (self.Q0, qf), (self.Q1, qf + 8)):
            e(mf32(acc, wf, fr, 'z'))
            e(mf32(acc, wf + 4, fr + 4))
        for tau, acc in ((0, self.K0), (1, self.K1)):
            self.dual_softmax(acc, E, P1, P2, tt)
            e(mf32(T1, P1, I0, 'z')); e(mf32(T2, P2, I0, 'z'))
            e(mf32(T1, P1 + 4, I0 + 4)); e(mf32(T2, P2 + 4, I0 + 4))
            for i in range(8):
                e(cvt(P1 + i, T1 + 2 * i, T1 + 2 * i + 1))
            for i in range(8):
                e(cvt(P2 + i, T2 + 2 * i, T2 + 2 * i + 1))
            z = 'z' if tau == 0 else None
            e(mf32(kv1, vf + tau * 8, P1, z)); e(mf32(kv2, vf + tau * 8, P2, z))
            e(mf32(kv1, vf + tau * 8 + 4, P1 + 4)); e(mf32(kv2, vf + tau * 8 + 4, P2 + 4))
            e(mf16(zf, ones, P1, z)); e(mf16(zs, ones, P2, z))
            e(mf16(zf, ones, P1 + 4)); e(mf16(zs, ones, P2 + 4))
        e(f'''
        s_lshl_b32 s{S_T0}, s{S_HD}, 1
        s_xor_b32 s{S_T1}, s{S_TT}, 1
        s_add_u32 s{S_T0}, s{S_T0}, s{S_T1}
        s_lshl_b32 s{S_T1}, s{S_T0}, 12
        s_add_u32 s{S_T1}, s{S_T1}, {hx(KVX)}
        v_add_u32 v{t0}, s{S_T1}, v{self.vL16}
        s_lshl_b32 s{S_T0}, s{S_T0}, 8
        s_add_u32 s{S_T0}, s{S_T0}, {hx(KVZ)}
        v_lshlrev_b32 v{t0+1}, 2, v{self.vL}
        v_add_u32 v{t0+1}, s{S_T0}, v{t0+1}''')
        for q in range(4):
            e(f'ds_write_b128 v{t0}, {vr(kv2 + 4 * q)} offset:{q * 1024}')
        e(f'ds_write_b32 v{t0+1}, v{zs}')
        e(f'''
        s_lshl_b32 s{S_T0}, s{S_HD}, 1
        s_add_u32 s{S_T0}, s{S_T0}, s{S_TT}
        s_lshl_b32 s{S_T0}, s{S_T0}, 13
        s_add_u32 s{S_T0}, s{S_T0}, {hx(PHI)}
        s_lshl_b32 s{S_T1}, s{S_TT}, 11
        s_add_u32 s{S_T1}, s{S_T1}, s{S_T0}
        v_add_u32 v{t0+2}, s{S_T1}, v{self.vL16}
        v_xor_b32 v{t0+3}, 2048, v{t0+2}''')
        for tau, acc in ((0, self.Q0), (1, self.Q1)):
            self.dual_softmax(acc, E, P1, P2, tt)
            for s in range(2):
                e(f'ds_write_b128 v{t0+2}, {vr(P1 + 4 * s)} offset:{tau * 4096 + s * 1024}')
                e(f'ds_write_b128 v{t0+3}, {vr(P2 + 4 * s)} offset:{tau * 4096 + s * 1024}')
        e('''
        s_waitcnt lgkmcnt(0)
        s_barrier''')
        e(f'''
        s_lshl_b32 s{S_T0}, s{S_HD}, 1
        s_add_u32 s{S_T0}, s{S_T0}, s{S_TT}
        s_lshl_b32 s{S_T1}, s{S_T0}, 12
        s_add_u32 s{S_T1}, s{S_T1}, {hx(KVX)}
        v_add_u32 v{t0}, s{S_T1}, v{self.vL16}
        s_lshl_b32 s{S_T1}, s{S_T0}, 8
        s_add_u32 s{S_T1}, s{S_T1}, {hx(KVZ)}
        v_lshlrev_b32 v{t0+1}, 2, v{self.vL}
        v_add_u32 v{t0+1}, s{S_T1}, v{t0+1}
        s_lshl_b32 s{S_T1}, s{S_T0}, 12
        s_add_u32 s{S_T1}, s{S_T1}, {QX}
        v_add_u32 v{t0+2}, s{S_T1}, v{self.vL16}''')
        for q in range(4):
            e(f'ds_read_b128 {vr(T1 + 4 * q)}, v{t0} offset:{q * 1024}')
        e(f'ds_read_b32 v{zs}, v{t0+1}')
        for q in range(4):
            e(f'ds_read_b128 {vr(self.QF + 4 * q)}, v{t0+2} offset:{q * 1024}')
        e('s_waitcnt lgkmcnt(4)')
        for r in range(16):
            e(f'v_add_f32 v{kv1+r}, v{kv1+r}, v{T1+r}')
        e(f'v_add_f32 v{zf}, v{zf}, v{zs}')
        for i in range(8):
            e(cvt(P1 + i, kv1 + 2 * i, kv1 + 2 * i + 1))
        e(f'''
        s_lshl_b32 s{S_T1}, s{S_HP}, 4
        s_add_u32 s{S_T1}, s{S_T1}, s{S_MB}
        s_lshl_b32 s{S_T1}, s{S_T1}, 2
        s_add_u32 s{S_T1}, s{S_T1}, s{S_T0}
        s_lshl_b32 s{S_T1}, s{S_T1}, 11
        s_add_u32 s{S_T1}, s{S_T1}, {hx(KVP_OFF)}
        buffer_store_dwordx4 {vr(P1)}, v{self.vL16}, {srd(sWS)}, s{S_T1} offen sc1
        buffer_store_dwordx4 {vr(P1 + 4)}, v{self.vL16}, {srd(sWS)}, s{S_T1} offen offset:1024 sc1
        s_lshl_b32 s{S_T1}, s{S_HP}, 2
        s_add_u32 s{S_T1}, s{S_T1}, s{S_T0}
        s_lshl_b32 s{S_T1}, s{S_T1}, 4
        s_add_u32 s{S_T1}, s{S_T1}, s{S_MB}
        s_lshl_b32 s{S_T1}, s{S_T1}, 7
        s_add_u32 s{S_T1}, s{S_T1}, {hx(ZP_OFF)}
        v_lshlrev_b32 v{t0}, 2, v{self.vL}
        s_mov_b32 exec_hi, 0
        buffer_store_dword v{zf}, v{t0}, {srd(sWS)}, s{S_T1} offen sc1
        s_mov_b64 exec, -1
        s_waitcnt lgkmcnt(0)''')

    def kv_loads(self, slot, so):
        b = self.KVB[slot]
        return [f'buffer_load_dwordx4 {vr(b + 4 * q)}, v{self.vKV}, {srd(sWS)}, {so} offen offset:{q * 1024} sc1'
                .replace(' offset:0 ', ' ') for q in range(4)]

    def tile_off(self, dst, j_expr_sreg):
        return [f's_add_u32 s{dst}, s{j_expr_sreg}, s{S_ROT}',
                f's_and_b32 s{dst}, s{dst}, 31',
                f's_lshl_b32 s{dst}, s{dst}, 12',
                f's_cmp_ge_u32 s{j_expr_sreg}, 32',
                f's_cselect_b32 s{dst}, {hx(BIGOFF)}, s{dst}']

    def first_loads(self):
        e = self.emit
        for j in range(3):
            e(f's_mov_b32 s{S_J}, {j}')
            e(self.tile_off(S_T0, S_J))
            e(self.kv_loads(j, f's{S_T0}'))
        e(f's_mov_b32 s{S_J}, 3')

    def exp_block(self, S, P):
        L = []
        for q in range(4):
            for j in range(4):
                L.append(f'v_exp_f32 v{S + 4 * q + j}, v{S + 4 * q + j}')
            L.append(cvt(P + 2 * q, S + 4 * q, S + 4 * q + 1))
            L.append(cvt(P + 2 * q + 1, S + 4 * q + 2, S + 4 * q + 3))
        return L

    def wave_rowmax(self, S, dst, t):
        e = self.emit
        e(f'v_max3_f32 v{dst}, v{S}, v{S+1}, v{S+2}')
        for i in range(3, 15, 2):
            e(f'v_max3_f32 v{dst}, v{dst}, v{S+i}, v{S+i+1}')
        e(f'v_max_f32 v{dst}, v{dst}, v{S+15}')

    def cross_half_max(self, d, t):
        self.emit(f'''
        v_mov_b32 v{t}, v{d}
        v_permlane32_swap_b32 v{d}, v{t}
        v_max_f32 v{d}, v{d}, v{t}''')

    def attention(self):
        e = self.emit
        Sa, Sb, Ca, Cb, Oa, Ob = self.Sa, self.Sb, self.Ca, self.Cb, self.Oa, self.Ob
        Qa, Qb = self.QF, self.QF + 8
        Pa, Pb, la, lb, ONES = self.Pa, self.Pb, self.la, self.lb, self.ONES
        KVB = self.KVB
        tA = self.vA
        e('L_attn:')
        self.make_ones16(ONES, tA)
        e(f'''
        s_lshl_b32 s{S_T0}, s{S_HEAD}, 18
        s_lshl_b32 s{S_T1}, s{S_BR}, 17
        s_add_u32 s{S_T0}, s{S_T0}, s{S_T1}
        v_add_u32 v{self.vKV}, s{S_T0}, v{self.vL16}
        s_lshl_b32 s{S_ROT}, s{S_MB}, 1
        s_mov_b32 s{S_RETRY}, 0
        v_and_b32 v{tA}, 15, v{self.vL}
        v_lshlrev_b32 v{tA}, 2, v{tA}
        s_lshl_b32 s{S_T0}, s{S_HP}, 7
        v_add_u32 v{tA}, s{S_T0}, v{tA}''')
        self.poll(tA, F1_OFF, tA + 1)
        ln = self.lab('noF1b')
        e(f'''
        s_cmp_eq_u32 s{S_BR}, 0
        s_cbranch_scc0 {ln}''')
        self.count_and_flag(1, 3, f'''
        s_lshl_b32 s{S_T0}, s{S_HP}, 7
        s_lshl_b32 s{S_T1}, s{S_MB}, 2
        s_add_u32 s{S_T0}, s{S_T0}, s{S_T1}
        s_add_u32 s{S_T0}, s{S_T0}, {hx(F1B_OFF)}''', tA, tA + 1)
        e(f'{ln}:')
        self.first_loads()
        K0 = KVB[0]
        e('s_waitcnt vmcnt(10)')
        e(mf32(Sa, K0, Qa, 'z')); e(mf32(Sb, K0, Qb, 'z'))
        e(mf32(Sa, K0 + 4, Qa + 4)); e(mf32(Sb, K0 + 4, Qb + 4))
        self.wave_rowmax(Sa, self.vMa, tA)
        self.wave_rowmax(Sb, self.vMb, tA)
        self.cross_half_max(self.vMa, tA)
        self.cross_half_max(self.vMb, tA)
        e(f'v_add_f32 v{self.vMa}, {hx(f2u(MOFF))}, v{self.vMa}')
        e(f'v_add_f32 v{self.vMb}, {hx(f2u(MOFF))}, v{self.vMb}')
        e('L_attn_go:')
        V3 = KVB[3] + 8
        for r in range(8):
            e(f'v_mov_b32 v{V3 + r}, 0')
            e(f'v_mov_b32 v{Pb + r}, 0')
        for r in range(4):
            e(f'v_mov_b32 v{la + r}, 0')
            e(f'v_mov_b32 v{lb + r}, 0')
        for r in range(16):
            e(f'v_sub_f32 v{Ca + r}, 0, v{self.vMa}')
        e(mf32(Oa, V3, V3, 'z')); e(mf32(Ob, V3, V3, 'z'))
        for r in range(16):
            e(f'v_sub_f32 v{Cb + r}, 0, v{self.vMb}')
        e(mf32(Sa, K0, Qa, Ca)); e(mf32(Sa, K0 + 4, Qa + 4))
        e(f's_mov_b32 s{S_IT}, 0')
        e('L_attn_loop:')
        for i4 in range(4):
            cur, prev, nxt = KVB[i4], KVB[(i4 - 1) % 4], KVB[(i4 + 1) % 4]
            mfA = [mf32(Sb, cur, Qb, Cb), mf32(Sb, cur + 4, Qb + 4),
                   mf32(Ob, prev + 8, Pb), mf16(lb, ONES, Pb),
                   mf32(Ob, prev + 12, Pb + 4), mf16(lb, ONES, Pb + 4)]
            e(interleave(mfA, self.exp_block(Sa, Pa)))
            e(self.tile_off(S_T0, S_J))
            e(f's_add_u32 s{S_J}, s{S_J}, 1')
            e('s_waitcnt vmcnt(6)')
            mfB = [mf32(Sa, nxt, Qa, Ca), mf32(Sa, nxt + 4, Qa + 4),
                   mf32(Oa, cur + 8, Pa), mf16(la, ONES, Pa),
                   mf32(Oa, cur + 12, Pa + 4), mf16(la, ONES, Pa + 4)]
            body = interleave(mfB, self.exp_block(Sb, Pb))
            loads = self.kv_loads((i4 + 3) % 4, f's{S_T0}')
            out = []
            li = 0
            for n, x in enumerate(body):
                out.append(x)
                if n in (4, 9, 14, 19):
                    out.append(loads[li]); li += 1
            e(out)
        e(f'''
        s_add_u32 s{S_IT}, s{S_IT}, 1
        s_cmp_lt_u32 s{S_IT}, 8
        s_cbranch_scc1 L_attn_loop''')
        prev = KVB[3]
        e(mf32(Ob, prev + 8, Pb)); e(mf16(lb, ONES, Pb))
        e(mf32(Ob, prev + 12, Pb + 4)); e(mf16(lb, ONES, Pb + 4))
        e('s_waitcnt vmcnt(0)')
        e(f'v_add_f32 v{tA}, v{la}, v{lb}')
        e(f'v_pk_add_f32 {vr(Sa, 2)}, {vr(Oa, 2)}, {vr(Oa + 2, 2)}')
        for r in range(4, 32, 2):
            e(f'v_pk_add_f32 {vr(Sa, 2)}, {vr(Sa, 2)}, {vr(Oa + r, 2)}')
        e(f'''
        v_add_f32 v{tA}, v{tA}, v{Sa}
        v_add_f32 v{tA}, v{tA}, v{Sa+1}
        v_mov_b32 v{tA+1}, 0x207
        v_cmp_class_f32 vcc, v{tA}, v{tA+1}
        s_cbranch_vccz L_attn_done
        s_cmp_lg_u32 s{S_RETRY}, 0
        s_cbranch_scc1 L_attn_done
        s_mov_b32 s{S_RETRY}, 1''')
        e(f'''
        v_mov_b32 v{self.vMa}, 0xff800000
        v_mov_b32 v{self.vMb}, 0xff800000
        s_mov_b32 s{S_J}, 0
        L_truemax:''')
        e(self.tile_off(S_T0, S_J))
        e(self.kv_loads(0, f's{S_T0}')[:2])
        e('s_waitcnt vmcnt(0)')
        e(mf32(Sa, K0, Qa, 'z')); e(mf32(Sb, K0, Qb, 'z'))
        e(mf32(Sa, K0 + 4, Qa + 4)); e(mf32(Sb, K0 + 4, Qb + 4))
        for S, M in ((Sa, self.vMa), (Sb, self.vMb)):
            for i in range(0, 16, 2):
                e(f'v_max3_f32 v{M}, v{M}, v{S+i}, v{S+i+1}')
        e(f'''
        s_add_u32 s{S_J}, s{S_J}, 1
        s_cmp_lt_u32 s{S_J}, 32
        s_cbranch_scc1 L_truemax''')
        self.cross_half_max(self.vMa, tA)
        self.cross_half_max(self.vMb, tA)
        self.first_loads()
        e('''
        s_waitcnt vmcnt(10)
        s_branch L_attn_go
        L_attn_done:''')

    def finalize_attn(self):
        e = self.emit
        Oa, Ob, la, lb = self.Oa, self.Ob, self.la, self.lb
        tA = self.vA
        I0 = 240
        ACC = 224
        ZL = 208
        vAd = 216
        bufs = list(range(0, 64, 4)) + list(range(140, 204, 4))
        e(f'''
        v_and_b32 v{vAd}, 15, v{self.vL}
        v_lshlrev_b32 v{vAd}, 2, v{vAd}
        s_lshl_b32 s{S_T0}, s{S_HP}, 7
        v_add_u32 v{vAd}, s{S_T0}, v{vAd}''')
        self.poll(vAd, F1B_OFF, vAd + 1)
        e(f'''
        s_lshl_b32 s{S_T0}, s{S_HP}, 6
        s_lshl_b32 s{S_T1}, s{S_HD}, 1
        s_add_u32 s{S_T1}, s{S_T1}, s{S_BR}
        s_add_u32 s{S_T0}, s{S_T0}, s{S_T1}
        s_lshl_b32 s{S_T0}, s{S_T0}, 11
        s_add_u32 s{S_T0}, s{S_T0}, {hx(KVP_OFF)}''')
        for m in range(16):
            for s in range(2):
                b = bufs[m * 2 + s]
                e(f'buffer_load_dwordx4 {vr(b)}, v{self.vL16}, {srd(sWS)}, s{S_T0} offen' +
                  (f' offset:{s * 1024}' if s else '') + ' sc1')
            e(f's_add_u32 s{S_T0}, s{S_T0}, 8192')
        e(f'''
        s_lshl_b32 s{S_T0}, s{S_HP}, 2
        s_add_u32 s{S_T0}, s{S_T0}, s{S_T1}
        s_lshl_b32 s{S_T0}, s{S_T0}, 11
        s_add_u32 s{S_T0}, s{S_T0}, {hx(ZP_OFF)}
        v_and_b32 v{vAd}, 31, v{self.vL}
        v_lshlrev_b32 v{vAd}, 2, v{vAd}
        v_lshl_add_u32 v{vAd}, v{self.vHf}, 7, v{vAd}''')
        for i in range(8):
            e(f'buffer_load_dword v{ZL + i}, v{vAd}, {srd(sWS)}, s{S_T0} offen' +
              (f' offset:{i * 256}' if i else '') + ' sc1')
        self.make_ident(I0, vAd + 1)
        PH = 112
        e(f'''
        s_lshl_b32 s{S_T0}, s{S_HD}, 1
        s_add_u32 s{S_T0}, s{S_T0}, s{S_TT}
        s_lshl_b32 s{S_T0}, s{S_T0}, 13
        s_add_u32 s{S_T0}, s{S_T0}, {hx(PHI)}
        s_mul_i32 s{S_T1}, s{S_BR}, 6144
        s_add_u32 s{S_T0}, s{S_T0}, s{S_T1}
        v_add_u32 v{vAd}, s{S_T0}, v{self.vL16}
        s_lshl_b32 s{S_T1}, s{S_BR}, 13
        s_sub_u32 s{S_T0}, s{S_T0}, s{S_T1}
        s_add_u32 s{S_T0}, s{S_T0}, 4096
        v_add_u32 v{vAd+1}, s{S_T0}, v{self.vL16}
        ds_read_b128 {vr(PH)}, v{vAd}
        ds_read_b128 {vr(PH+4)}, v{vAd} offset:1024
        ds_read_b128 {vr(PH+8)}, v{vAd+1}
        ds_read_b128 {vr(PH+12)}, v{vAd+1} offset:1024''')
        e(f'''
        s_lshl_b32 s{S_T0}, s{S_TT}, 6
        s_lshl_b32 s{S_T1}, s{S_BR}, 5
        s_add_u32 s{S_T0}, s{S_T0}, s{S_T1}
        s_lshl_b32 s{S_T0}, s{S_T0}, 2
        s_add_u32 s{S_T0}, s{S_T0}, {hx(LOG)}
        v_and_b32 v{vAd+2}, 31, v{self.vL}
        v_lshlrev_b32 v{vAd+2}, 2, v{vAd+2}
        v_add_u32 v{vAd+2}, s{S_T0}, v{vAd+2}
        ds_read_b32 v{vAd+3}, v{vAd+2}''')
        vG = vAd + 3
        for O, l, M in ((Oa, la, self.vMa), (Ob, lb, self.vMb)):
            e(f'v_rcp_f32 v{l+1}, v{l}')
            e(f'v_log_f32 v{l+2}, v{l}')
            e(f'v_add_f32 v{l+2}, v{l+2}, v{M}')
            for r in range(16):
                e(f'v_mul_f32 v{O+r}, v{O+r}, v{l+1}')
        La, Lb = la + 2, lb + 2
        for n in range(32):
            e(f's_waitcnt vmcnt({8 + 31 - n})')
            e(mf32(ACC, bufs[n], I0 + 4 * (n & 1), 'z' if n == 0 else None))
        e('s_waitcnt vmcnt(0)')
        e(f'v_add_f32 v{ZL}, v{ZL}, v{ZL+1}')
        for i in range(2, 8):
            e(f'v_add_f32 v{ZL}, v{ZL}, v{ZL+i}')
        e(f'''
        v_mov_b32 v{ZL+1}, v{ZL}
        v_permlane32_swap_b32 v{ZL}, v{ZL+1}
        v_add_f32 v{ZL}, v{ZL}, v{ZL+1}
        v_cvt_pk_bf16_f32 v{ZL}, v{ZL}, v{ZL}
        s_lshl_b32 s{S_T0}, s{S_W}, 7
        s_add_u32 s{S_T0}, s{S_T0}, {hx(ZT)}
        v_and_b32 v{ZL+1}, 31, v{self.vL}
        v_lshlrev_b32 v{ZL+1}, 1, v{ZL+1}
        v_add_u32 v{ZL+1}, s{S_T0}, v{ZL+1}
        ds_write_b16 v{ZL+1}, v{ZL}
        v_lshlrev_b32 v{ZL+2}, 3, v{self.vHf}
        v_add_u32 v{ZL+2}, s{S_T0}, v{ZL+2}
        s_waitcnt lgkmcnt(0)''')
        ZF = 0
        for s in range(2):
            e(f'ds_read_b64 {vr(ZF + 4 * s, 2)}, v{ZL+2} offset:{s * 32}')
            e(f'ds_read_b64 {vr(ZF + 4 * s + 2, 2)}, v{ZL+2} offset:{s * 32 + 16}')
        KT = 8
        for i in range(8):
            e(cvt(KT + i, ACC + 2 * i, ACC + 2 * i + 1))
        e(f'''
        v_cmp_ne_u32 vcc, 0, v{self.ONES}
        s_waitcnt lgkmcnt(0)''')
        for i in range(8):
            e(f'v_cndmask_b32 v{ZF+i}, 0, v{ZF+i}, vcc')
        Na, Nb, Da, Db = 16, 32, 48, 52
        for N, D, P in ((Nb, Db, PH + 8), (Na, Da, PH)):
            e(mf32(N, KT, P, 'z')); e(mf32(N, KT + 4, P + 4))
            e(mf16(D, ZF, P, 'z')); e(mf16(D, ZF + 4, P + 4))
        e(f'''
        s_mul_i32 s{S_T0}, s{S_W}, {MRG_STRIDE}
        s_add_u32 s{S_T0}, s{S_T0}, {hx(MRG)}
        v_add_u32 v{vAd}, s{S_T0}, v{self.vL16}
        v_lshlrev_b32 v{vAd+1}, 3, v{self.vL}
        v_add_u32 v{vAd+1}, s{S_T0}, v{vAd+1}
        s_xor_b32 s{S_T1}, s{S_W}, 4
        s_mul_i32 s{S_T0}, s{S_T1}, {MRG_STRIDE}
        s_add_u32 s{S_T0}, s{S_T0}, {hx(MRG)}
        v_add_u32 v{vAd+4}, s{S_T0}, v{self.vL16}
        v_lshlrev_b32 v{vAd+5}, 3, v{self.vL}
        v_add_u32 v{vAd+5}, s{S_T0}, v{vAd+5}''')
        for q in range(4):
            e(f'ds_write_b128 v{vAd}, {vr(Ob + 4 * q)} offset:{q * 1024}')
        for q in range(4):
            e(f'ds_write_b128 v{vAd}, {vr(Nb + 4 * q)} offset:{4096 + q * 1024}')
        e(f'''
        v_mov_b32 v56, v{Lb}
        v_mov_b32 v57, v{Db}
        ds_write_b64 v{vAd+1}, v[56:57] offset:8192''')
        e(f'''
        v_mul_f32 v{vG}, s{S_L2E}, v{vG}
        v_exp_f32 v58, -v{vG}
        v_add_f32 v58, 1.0, v58
        v_rcp_f32 v58, v58
        v_sub_f32 v59, 1.0, v58
        s_waitcnt lgkmcnt(0)
        s_barrier''')
        RO, RN = 140, 156
        for q in range(4):
            e(f'ds_read_b128 {vr(RO + 4 * q)}, v{vAd+4} offset:{q * 1024}')
        e(f'ds_read_b64 v[56:57], v{vAd+5} offset:8192')
        for q in range(4):
            e(f'ds_read_b128 {vr(RN + 4 * q)}, v{vAd+4} offset:{4096 + q * 1024}')
        e(f'''
        s_waitcnt lgkmcnt(4)
        v_max_f32 v60, v{La}, v56
        v_sub_f32 v61, v{La}, v60
        v_sub_f32 v62, v56, v60
        v_exp_f32 v61, v61
        v_exp_f32 v62, v62
        v_add_f32 v63, v61, v62
        v_rcp_f32 v63, v63
        v_mul_f32 v63, v63, v59
        v_mul_f32 v61, v61, v63
        v_mul_f32 v62, v62, v63
        v_add_f32 v57, v57, v{Da}
        v_add_f32 v57, {hx(f2u(1e-6))}, v57
        v_rcp_f32 v57, v57
        v_mul_f32 v57, v57, v58''')
        for r in range(16):
            e(f'v_mul_f32 v{Oa+r}, v{Oa+r}, v61')
            e(f'v_fma_f32 v{Oa+r}, v{RO+r}, v62, v{Oa+r}')
        OBF, OAF = 96, 104
        for i in range(8):
            e(cvt(OBF + i, Oa + 2 * i, Oa + 2 * i + 1))
        e(f'''
        s_lshl_b32 s{S_T0}, s{S_MB}, 2
        s_lshl_b32 s{S_T1}, s{S_TT}, 1
        s_add_u32 s{S_T0}, s{S_T0}, s{S_T1}
        s_add_u32 s{S_T0}, s{S_T0}, s{S_BR}
        s_lshl_b32 s{S_T0}, s{S_T0}, 17
        s_lshl_b32 s{S_T1}, s{S_HEAD}, 11
        s_add_u32 s{S_T0}, s{S_T0}, s{S_T1}
        s_add_u32 s{S_T0}, s{S_T0}, {hx(O_OFF)}
        s_add_u32 s{S_T1}, s{S_T0}, 65536
        buffer_store_dwordx4 {vr(OBF)}, v{self.vL16}, {srd(sWS)}, s{S_T1} offen sc1
        buffer_store_dwordx4 {vr(OBF+4)}, v{self.vL16}, {srd(sWS)}, s{S_T1} offen offset:1024 sc1
        s_waitcnt lgkmcnt(0)''')
        for r in range(16):
            e(f'v_add_f32 v{Na+r}, v{Na+r}, v{RN+r}')
            e(f'v_mul_f32 v{Na+r}, v{Na+r}, v57')
        for i in range(8):
            e(cvt(OAF + i, Na + 2 * i, Na + 2 * i + 1))
        e(f'''
        buffer_store_dwordx4 {vr(OAF)}, v{self.vL16}, {srd(sWS)}, s{S_T0} offen sc1
        buffer_store_dwordx4 {vr(OAF+4)}, v{self.vL16}, {srd(sWS)}, s{S_T0} offen offset:1024 sc1''')

    def outproj(self):
        e = self.emit
        ACC0, ACC1 = 0, 16
        WB = [32, 40, 48, 56]
        OB = [64, 128]
        vD3, vR3, vR3b, vO3, vE = 200, 201, 202, 203, 204
        S_MB3, S_CT = S_MB, S_HP
        e('s_barrier')
        e(f'''
        s_lshl_b32 s{S_T2}, s{S_MB}, 7
        s_lshl_b32 s{S_T3}, s{S_HP}, 2
        s_add_u32 s{S_J}, s{S_T2}, s{S_T3}
        s_add_u32 s{S_J}, s{S_J}, {hx(F2_OFF)}
        s_and_b32 s{S_T0}, s2, 7
        s_lshr_b32 s{S_T1}, s2, 3
        s_and_b32 s{S_T2}, s{S_T0}, 3
        s_lshl_b32 s{S_T2}, s{S_T2}, 2
        s_and_b32 s{S_T3}, s{S_T1}, 3
        s_add_u32 s{S_MB3}, s{S_T2}, s{S_T3}
        s_lshr_b32 s{S_T2}, s{S_T0}, 2
        s_lshl_b32 s{S_T2}, s{S_T2}, 3
        s_lshr_b32 s{S_T3}, s{S_T1}, 2
        s_add_u32 s{S_CT}, s{S_T2}, s{S_T3}
        s_cmp_eq_u32 s{S_BR}, 1
        s_cselect_b32 s{sW}, s38, s34
        s_cselect_b32 s{sW+1}, s39, s35
        s_mov_b32 s{sW+2}, {hx(2 << 20)}
        s_mov_b32 s{sW+3}, 0x20000
        s_and_b32 s{S_T0}, s{S_W}, 3
        s_lshl_b32 s{S_T1}, s{S_T0}, 4
        v_bfe_u32 v{vD3}, v{self.vL}, 2, 3
        v_add_u32 v{vD3}, s{S_T1}, v{vD3}
        v_lshlrev_b32 v{vD3}, 11, v{vD3}
        v_lshl_add_u32 v{vD3}, v{self.vHf}, 6, v{vD3}
        v_and_b32 v{vE}, 3, v{self.vL}
        v_lshl_add_u32 v{vD3}, v{vE}, 4, v{vD3}
        s_lshl_b32 s{S_T1}, s{S_CT}, 7
        v_add_u32 v{vD3}, s{S_T1}, v{vD3}
        s_lshl_b32 s{S_DWL}, s{S_BR}, 13
        s_lshl_b32 s{S_T0}, s{S_T0}, 11
        s_add_u32 s{S_DWL}, s{S_DWL}, s{S_T0}''')

        def dma(stage):
            L = []
            for i in range(2):
                L += [f's_add_u32 m0, s{S_DWL}, {hx((stage % 8) * 16384 + i * 1024)}',
                      f's_mov_b32 s{S_T0}, {hx(stage * 131072 + i * 16384)}',
                      f'buffer_load_dwordx4 v{vD3}, {srd(sW)}, s{S_T0} offen lds']
            return L
        for st in range(8):
            e(dma(st))
        e('s_waitcnt vmcnt(16)')
        self.count_and_flag(2, 7, f's_mov_b32 s{S_T0}, s{S_J}', vE, vE + 1)
        e(f'''
        v_bfe_u32 v{vR3}, v{self.vL}, 2, 2
        v_lshlrev_b32 v{vR3}, 6, v{vR3}
        v_bfe_u32 v{vE}, v{self.vL}, 4, 1
        v_lshl_add_u32 v{vR3}, v{vE}, 5, v{vR3}
        v_and_b32 v{vE}, 3, v{self.vL}
        v_lshl_add_u32 v{vR3}, v{vE}, 3, v{vR3}
        v_lshl_add_u32 v{vR3}, v{self.vHf}, 8, v{vR3}
        s_lshl_b32 s{S_T0}, s{S_BR}, 13
        v_add_u32 v{vR3}, s{S_T0}, v{vR3}
        v_add_u32 v{vR3b}, 0x10000, v{vR3}
        s_lshl_b32 s{S_T0}, s{S_MB3}, 2
        s_and_b32 s{S_T1}, s{S_W}, 3
        s_add_u32 s{S_T0}, s{S_T0}, s{S_T1}
        s_lshl_b32 s{S_T0}, s{S_T0}, 17
        s_lshl_b32 s{S_T1}, s{S_BR}, 16
        s_add_u32 s{S_T0}, s{S_T0}, s{S_T1}
        s_add_u32 s{S_T0}, s{S_T0}, {hx(O_OFF)}
        v_add_u32 v{vO3}, s{S_T0}, v{self.vL16}
        v_and_b32 v{vE}, 15, v{self.vL}
        v_lshlrev_b32 v{vE}, 2, v{vE}
        s_lshl_b32 s{S_T0}, s{S_MB3}, 7
        v_add_u32 v{vE}, s{S_T0}, v{vE}''')
        self.poll(vE, F2_OFF, vE + 1)

        def oloads(m):
            L = []
            for g in range(4):
                L.append(f's_mov_b32 s{S_T0}, {hx((m * 16 + g * 4) * 1024)}')
                for q in range(4):
                    L.append(f'buffer_load_dwordx4 {vr(OB[m & 1] + 16 * g + 4 * q)}, v{vO3}, {srd(sWS)}, s{S_T0} offen' +
                             (f' offset:{q * 1024}' if q else '') + ' sc1')
            return L

        def wreads(m, n):
            q, h2, s = n >> 2, (n >> 1) & 1, n & 1
            slot = (4 * m + q) % 8
            base = vR3 if slot < 4 else vR3b
            o = (slot & 3) * 16384 + (h2 * 4 + 2 * s) * 1024
            b = WB[n & 3]
            return [f'ds_read_b64_tr_b16 {vr(b, 2)}, v{base} offset:{o}',
                    f'ds_read_b64_tr_b16 {vr(b + 2, 2)}, v{base} offset:{o + 1024}',
                    f'ds_read_b64_tr_b16 {vr(b + 4, 2)}, v{base} offset:{o + 512}',
                    f'ds_read_b64_tr_b16 {vr(b + 6, 2)}, v{base} offset:{o + 1536}']

        def macro(m):
            e(wreads(m, 0)); e(wreads(m, 1))
            for n in range(16):
                if n + 2 < 16:
                    e(wreads(m, n + 2))
                    e('s_waitcnt lgkmcnt(8)')
                elif n == 14:
                    e('s_waitcnt lgkmcnt(4)')
                else:
                    e('s_waitcnt lgkmcnt(0)')
                b = WB[n & 3]
                of = OB[m & 1] + 4 * n
                first = 'z' if (m == 0 and n == 0) else None
                e(mf32(ACC0, b, of, first))
                e(mf32(ACC1, b + 4, of, first))
        e(oloads(0)); e(oloads(1))
        e('s_waitcnt vmcnt(16)')
        e('s_barrier')
        macro(0)
        e('s_barrier')
        for st in range(8, 12):
            e(dma(st))
        e(oloads(2))
        e('s_waitcnt vmcnt(24)')
        macro(1)
        e('s_waitcnt vmcnt(16)')
        e('s_barrier')
        for st in range(12, 16):
            e(dma(st))
        e(oloads(3))
        e('s_waitcnt vmcnt(24)')
        macro(2)
        e('s_waitcnt vmcnt(16)')
        e('s_barrier')
        e('s_waitcnt vmcnt(0)')
        macro(3)
        lA = self.lab('keep1')
        lB = self.lab('kept')
        e(f'''
        s_lshl_b32 s{S_T0}, s{S_W}, 12
        s_add_u32 s{S_T0}, s{S_T0}, {hx(XCH)}
        v_add_u32 v{vE}, s{S_T0}, v{self.vL16}
        s_xor_b32 s{S_T1}, s{S_W}, 4
        s_lshl_b32 s{S_T0}, s{S_T1}, 12
        s_add_u32 s{S_T0}, s{S_T0}, {hx(XCH)}
        v_add_u32 v{vE+1}, s{S_T0}, v{self.vL16}
        s_cmp_eq_u32 s{S_BR}, 1
        s_cbranch_scc1 {lA}''')
        for q in range(4):
            e(f'ds_write_b128 v{vE}, {vr(ACC1 + 4 * q)} offset:{q * 1024}')
        e(f's_branch {lB}')
        e(f'{lA}:')
        for q in range(4):
            e(f'ds_write_b128 v{vE}, {vr(ACC0 + 4 * q)} offset:{q * 1024}')
        for r in range(16):
            e(f'v_mov_b32 v{ACC0+r}, v{ACC1+r}')
        e(f'{lB}:')
        e('''
        s_waitcnt lgkmcnt(0)
        s_barrier''')
        R = 32
        for q in range(4):
            e(f'ds_read_b128 {vr(R + 4 * q)}, v{vE+1} offset:{q * 1024}')
        e(f'''
        s_lshl_b32 s{S_T0}, s{S_MB3}, 7
        s_and_b32 s{S_T1}, s{S_W}, 3
        s_lshl_b32 s{S_T1}, s{S_T1}, 5
        s_add_u32 s{S_T0}, s{S_T0}, s{S_T1}
        v_and_b32 v{vE}, 31, v{self.vL}
        v_add_u32 v{vE}, s{S_T0}, v{vE}
        v_lshlrev_b32 v{vE}, 11, v{vE}
        v_lshl_add_u32 v{vE}, v{self.vHf}, 4, v{vE}
        s_lshl_b32 s{S_T0}, s{S_CT}, 7
        s_lshl_b32 s{S_T1}, s{S_BR}, 6
        s_add_u32 s{S_T0}, s{S_T0}, s{S_T1}
        v_add_u32 v{vE}, s{S_T0}, v{vE}
        s_waitcnt lgkmcnt(0)''')
        for r in range(16):
            e(f'v_add_f32 v{ACC0+r}, v{ACC0+r}, v{R+r}')
        P = 48
        for i in range(8):
            e(cvt(P + i, ACC0 + 2 * i, ACC0 + 2 * i + 1))
        for u in range(2):
            e(f'v_permlane32_swap_b32 v{P+4*u}, v{P+4*u+2}')
            e(f'v_permlane32_swap_b32 v{P+4*u+1}, v{P+4*u+3}')
        for u in range(2):
            e(f'buffer_store_dwordx4 {vr(P + 4 * u)}, v{vE}, {srd(sOUT)}, 0 offen' + (f' offset:{u * 32}' if u else ''))
        e('s_waitcnt vmcnt(0)')

    def build(self):
        e = self.emit
        stop = self.cfg.get('stop', 'full')
        self.prologue()
        self.gemm_loop()
        e(f'''
        s_cmp_eq_u32 s{S_BR}, 1
        s_cbranch_scc1 L_epiB''')
        self.epi_A()
        e('s_branch L_attn')
        self.epi_B()
        self.attention()
        if stop != 'attn':
            self.finalize_attn()
            if stop != 'fin':
                self.outproj()
        e('''
        s_waitcnt vmcnt(0) lgkmcnt(0)
        L_end:
        s_endpgm
        L_codeend:''')
        body = self.a.finalize(report=self.cfg.get('report', False))
        return body


HEADER = open(os.path.join(os.path.dirname(os.path.abspath(__file__)), 'header.txt')).read()


def make(cfg):
    g = Gen(cfg)
    body = g.build()
    k = NAME + '_kernel'
    src = HEADER + f'''; @launch grid=(256,1,1) block=(512,1,1) lds={LDS_SIZE}
.amdgcn_target "amdgcn-amd-amdhsa--gfx950"
.text
.globl {k}
.p2align 8
.type {k},@function
{k}:
{body}.section .rodata,"a"
.p2align 6
.amdhsa_kernel {k}
  .amdhsa_next_free_vgpr 256
  .amdhsa_next_free_sgpr 96
  .amdhsa_accum_offset 256
  .amdhsa_group_segment_fixed_size 0
  .amdhsa_kernarg_size 88
  .amdhsa_user_sgpr_count 2
  .amdhsa_user_sgpr_kernarg_segment_ptr 1
  .amdhsa_system_sgpr_workgroup_id_x 1
  .amdhsa_float_denorm_mode_32 3
.end_amdhsa_kernel
'''
    return src, g


if __name__ == '__main__':
    import argparse, json
    ap = argparse.ArgumentParser()
    ap.add_argument('-o', default='cdna_kernels/' + NAME + '.s')
    ap.add_argument('--cfg', default='{}')
    args = ap.parse_args()
    cfg = json.loads(args.cfg)
    src, g = make(cfg)
    open(args.o, 'w').write(src)
    print('wrote', args.o, 'instructions', g.a.count, 'nops inserted', len(g.a.inserted))
```

```python
import sys, struct, os
sys.path.insert(0, os.path.dirname(os.path.abspath(__file__)))
from asmlib import Asm

NAME = 'gated_mix__linear_kernel_hedgehog__mha_block__prompt'
L2E = 1.4426950408889634
QS = L2E / (32 ** 0.5)


def f2u(x):
    return struct.unpack('<I', struct.pack('<f', x))[0]


def hx(x):
    return '0x%x' % x


KV_OFF = 0
O_OFF = 8 << 20
KVP_OFF = 16 << 20
ZP_OFF = 18 << 20
FLG_OFF = 19 << 20
F1_OFF = FLG_OFF
F1B_OFF = FLG_OFF + 2048
F2_OFF = FLG_OFF + 4096
WS_SIZE = 20 << 20
XS = 0
WSL = 49152
WPHI = 147456
GW = 151552
LOG = 153600
CNT = 154112
QX = 0
PHI = 16384
KVX = 49152
KVZ = 65536
MRG = 66560
MRG_STRIDE = 9216
ZT = 140288
XCH = 131072
LDS_SIZE = 163840
SPIN = 1 << 16
BIGOFF = 0x7000000
MOFF = 100.0

sX, sW, sWS, sOUT, sDBG, sT = 4, 8, 12, 16, 20, 24
S_W, S_BR, S_HD, S_TT, S_HP, S_MB, S_C, S_HEAD = 48, 49, 50, 51, 52, 53, 54, 55
S_DWL, S_DXL, S_WC, S_XC, S_XN, S_XNN, S_WK, S_U = 56, 57, 58, 59, 60, 61, 62, 63
S_T0, S_T1, S_T2, S_T3, S_T4 = 64, 65, 66, 67, 68
S_L2E, S_QS, S_SPIN, S_RETRY, S_J, S_ROT, S_IT = 69, 70, 71, 72, 73, 74, 75
S_4096 = 76
S_EX = 78


def srd(b):
    return 's[%d:%d]' % (b, b + 3)


def vr(b, n=4):
    return 'v[%d:%d]' % (b, b + n - 1)


def mf32(d, A, B, C=None):
    c = vr(d, 16) if C is None else ('0' if C == 'z' else vr(C, 16))
    return 'v_mfma_f32_32x32x16_bf16 %s, %s, %s, %s' % (vr(d, 16), vr(A), vr(B), c)


def mf16(d, A, B, C=None):
    c = vr(d, 4) if C is None else ('0' if C == 'z' else vr(C, 4))
    return 'v_mfma_f32_16x16x32_bf16 %s, %s, %s, %s' % (vr(d, 4), vr(A), vr(B), c)


def cvt(d, a, b):
    return 'v_cvt_pk_bf16_f32 v%d, v%d, v%d' % (d, a, b)


def interleave(mf, other, per=None):
    out = []
    n = len(mf)
    k = len(other)
    pos = 0
    for i, m in enumerate(mf):
        out.append(m)
        end = (k * (i + 1)) // n if per is None else min(k, pos + per[i])
        out += other[pos:end]
        pos = end
    out += other[pos:]
    return out


class Gen:
    def __init__(self, cfg):
        self.cfg = cfg
        self.a = Asm()
        self.uid = 0
        self.par16 = 0

    def lab(self, s):
        self.uid += 1
        return 'L_%s_%d' % (s, self.uid)

    def emit(self, lines):
        if isinstance(lines, str):
            self.a(lines)
        else:
            for l in lines:
                self.a(l)

    def stamp(self, i):
        if self.cfg.get('stamps'):
            self.emit(f'''
            s_memrealtime s[94:95]
            s_memtime s[92:93]
            s_waitcnt lgkmcnt(0)
            v_writelane_b32 v252, s94, {i}
            v_writelane_b32 v252, s92, {16 + i}''')

    def dump_stamps(self):
        if not self.cfg.get('stamps'):
            return
        e = self.emit
        e(f'''
        s_mov_b32 s{sT}, s46
        s_mov_b32 s{sT+1}, s47
        s_mov_b32 s{sT+2}, {hx(64 << 20)}
        s_mov_b32 s{sT+3}, 0x20000
        s_lshl_b32 s{S_T0}, s2, 3
        s_add_u32 s{S_T0}, s{S_T0}, s{S_W}
        s_lshl_b32 s{S_T0}, s{S_T0}, 7
        s_add_u32 s{S_T0}, s{S_T0}, {hx(32 << 20)}
        v_lshlrev_b32 v1, 2, v{self.vL}
        s_mov_b32 exec_hi, 0
        buffer_store_dword v252, v1, {srd(sT)}, s{S_T0} offen
        s_mov_b64 exec, -1''')

    def make_srd(self, b, lo, hi, size):
        self.emit(f'''
        s_mov_b32 s{b}, s{lo}
        s_mov_b32 s{b+1}, s{hi}
        s_mov_b32 s{b+2}, {hx(size)}
        s_mov_b32 s{b+3}, 0x20000''')

    def poll(self, voff, soff_imm, vtmp, srdb=sWS, want=1):
        l0 = self.lab('poll')
        l1 = self.lab('polled')
        self.emit(f'''
        s_mov_b32 s{S_SPIN}, 0
        s_mov_b32 s{S_T4}, {hx(soff_imm)}
        {l0}:
        buffer_load_dword v{vtmp}, v{voff}, {srd(srdb)}, s{S_T4} offen sc1
        s_waitcnt vmcnt(0)
        v_cmp_ne_u32 vcc, {want}, v{vtmp}
        s_cbranch_vccz {l1}
        s_add_u32 s{S_SPIN}, s{S_SPIN}, 1
        s_cmp_ge_u32 s{S_SPIN}, {hx(SPIN)}
        s_cbranch_scc1 {l1}
        s_sleep 1
        s_branch {l0}
        {l1}:''')

    def count_and_flag(self, cnt_idx, last, flag_soff_expr, vt0, vt1):
        l1 = self.lab('noflag')
        self.emit(f'''
        s_mov_b64 exec, 1
        v_mov_b32 v{vt0}, {hx(CNT + 4 * cnt_idx)}
        v_mov_b32 v{vt1}, 1
        ds_add_rtn_u32 v{vt1}, v{vt0}, v{vt1}
        s_waitcnt lgkmcnt(0)
        v_cmp_ne_u32 vcc, {last}, v{vt1}
        s_cbranch_vccnz {l1}''')
        self.emit(flag_soff_expr)
        self.emit(f'''
        v_mov_b32 v{vt1}, 1
        v_mov_b32 v{vt0}, 0
        buffer_store_dword v{vt1}, v{vt0}, {srd(sWS)}, s{S_T0} offen sc1
        {l1}:
        s_mov_b64 exec, -1''')

    Q0, Q1, K0, K1, V0, V1 = 0, 16, 32, 48, 64, 80
    F = [dict(x0=96, x1=100, wq=104, wk=108, wv=112), dict(x0=116, x1=120, wq=124, wk=128, wv=132)]
    GWF, GACC = 136, 140
    vWr, vWa, vXr, vXa, vDW, vDX, vGa = 142, 143, 144, 148, 149, 150, 151
    vL, vL16, vHf = 253, 254, 255
    vT = 155
    vDummy = 164
    vDb = 165

    def prologue(self):
        e = self.emit
        vL, vL16, vHf, vT = self.vL, self.vL16, self.vHf, self.vT
        e(f'''
        s_cmp_ge_u32 s2, 256
        s_cbranch_scc1 L_end
        s_load_dwordx4 s[28:31], s[0:1], 0
        s_load_dwordx4 s[32:35], s[0:1], 16
        s_load_dwordx4 s[36:39], s[0:1], 40
        s_load_dwordx4 s[40:43], s[0:1], 56
        s_load_dwordx4 s[44:47], s[0:1], 72
        s_getpc_b64 s[24:25]
        L_pcbase:
        s_mov_b32 s26, L_codeend-L_pcbase
        s_mov_b32 s27, 0x20000
        v_and_b32 v{vL}, 63, v0
        v_lshrrev_b32 v{vT}, 6, v0
        v_lshlrev_b32 v{vT+1}, 7, v0
        v_readfirstlane_b32 s{S_W}, v{vT}''')
        self.stamp(0)
        if self.cfg.get('code_prefetch', True):
            e(f'buffer_load_dword v{self.vDummy}, v{vT+1}, {srd(sT)}, 0 offen')
        e(f'''
        v_lshlrev_b32 v{vT+1}, 2, v0
        v_add_u32 v{vT+1}, {hx(LOG)}, v{vT+1}
        v_mov_b32 v{vT+2}, 0
        ds_write_b32 v{vT+1}, v{vT+2}
        v_lshlrev_b32 v{vL16}, 4, v{vL}
        v_lshrrev_b32 v{vHf}, 5, v{vL}
        s_lshr_b32 s{S_BR}, s{S_W}, 2
        s_lshr_b32 s{S_C}, s{S_W}, 1
        s_and_b32 s{S_HD}, s{S_C}, 1
        s_and_b32 s{S_TT}, s{S_W}, 1
        s_and_b32 s{S_T0}, s2, 7
        s_lshr_b32 s{S_T1}, s2, 3
        s_and_b32 s{S_T2}, s{S_T1}, 1
        s_lshl_b32 s{S_HP}, s{S_T0}, 1
        s_add_u32 s{S_HP}, s{S_HP}, s{S_T2}
        s_xor_b32 s{S_HP}, s{S_HP}, {self.cfg.get('hpx', 0)}
        s_lshr_b32 s{S_MB}, s{S_T1}, 1
        s_lshl_b32 s{S_HEAD}, s{S_HP}, 1
        s_add_u32 s{S_HEAD}, s{S_HEAD}, s{S_HD}
        s_mov_b32 s{S_L2E}, {hx(f2u(L2E))}
        s_mov_b32 s{S_QS}, {hx(f2u(QS))}
        s_mov_b32 s{S_4096}, 4096''')
        t0, t1, t2 = vT, vT + 1, vT + 2
        e(f'''
        v_bfe_u32 v{t0}, v{vL}, 2, 2
        v_lshlrev_b32 v{t0}, 6, v{t0}
        v_bfe_u32 v{t1}, v{vL}, 4, 1
        v_lshl_add_u32 v{t0}, v{t1}, 5, v{t0}
        v_and_b32 v{t1}, 3, v{vL}
        v_lshl_add_u32 v{t0}, v{t1}, 3, v{t0}
        v_lshl_add_u32 v{self.vWr}, v{vHf}, 10, v{t0}
        s_mul_i32 s{S_T0}, s{S_BR}, 12288
        s_lshl_b32 s{S_T1}, s{S_HD}, 9
        s_add_u32 s{S_T0}, s{S_T0}, s{S_T1}
        s_add_u32 s{S_T0}, s{S_T0}, {hx(WSL)}
        v_add_u32 v{self.vWr}, s{S_T0}, v{self.vWr}''')
        e(f'''
        v_and_b32 v{t0}, 31, v{vL}
        s_lshl_b32 s{S_T0}, s{S_TT}, 6
        v_add_u32 v{t0}, s{S_T0}, v{t0}
        v_lshlrev_b32 v{t0}, 7, v{t0}
        v_bfe_u32 v{t1}, v{vL}, 1, 3
        v_xor_b32 v{t1}, v{t1}, v{vHf}''')
        for sg in range(4):
            e(f'''
            v_xor_b32 v{t2}, {2*sg}, v{t1}
            v_lshl_add_u32 v{self.vXr+sg}, v{t2}, 4, v{t0}''')
        e(f'''
        s_and_b32 s{S_T0}, s{S_W}, 3
        s_lshl_b32 s{S_T1}, s{S_T0}, 3
        v_bfe_u32 v{t0}, v{vL}, 2, 3
        v_add_u32 v{t0}, s{S_T1}, v{t0}
        v_mul_u32_u24 v{t0}, 6144, v{t0}
        v_lshl_add_u32 v{t0}, v{vHf}, 6, v{t0}
        v_and_b32 v{t1}, 3, v{vL}
        v_lshl_add_u32 v{t0}, v{t1}, 4, v{t0}
        s_lshl_b32 s{S_T1}, s{S_HP}, 7
        v_add_u32 v{self.vDW}, s{S_T1}, v{t0}
        s_lshl_b32 s{S_T0}, s{S_T0}, 10
        s_mul_i32 s{S_T1}, s{S_BR}, 12288
        s_add_u32 s{S_DWL}, s{S_T0}, s{S_T1}
        s_add_u32 s{S_DWL}, s{S_DWL}, {hx(WSL)}''')
        e(f'''
        s_lshl_b32 s{S_T0}, s{S_MB}, 7
        s_lshl_b32 s{S_T1}, s{S_W}, 3
        s_add_u32 s{S_T0}, s{S_T0}, s{S_T1}
        v_lshrrev_b32 v{t0}, 3, v{vL}
        v_add_u32 v{t0}, s{S_T0}, v{t0}
        v_lshlrev_b32 v{t0}, 11, v{t0}
        s_lshl_b32 s{S_T1}, s{S_TT}, 2
        v_lshrrev_b32 v{t1}, 4, v{vL}
        v_add_u32 v{t1}, s{S_T1}, v{t1}
        v_xor_b32 v{t1}, v{t1}, v{vL}
        v_and_b32 v{t1}, 7, v{t1}
        v_lshl_add_u32 v{self.vDX}, v{t1}, 4, v{t0}
        s_lshl_b32 s{S_DXL}, s{S_W}, 10
        s_add_u32 s{S_DXL}, s{S_DXL}, {hx(XS)}''')
        e(f'''
        s_lshl_b32 s{S_T0}, s{S_C}, 5
        s_add_u32 s{S_T0}, s{S_T0}, {hx(GW)}
        v_lshlrev_b32 v{t0}, 4, v{vHf}
        v_add_u32 v{self.vGa}, s{S_T0}, v{t0}
        v_mov_b32 v{self.GACC}, 0
        v_mov_b32 v{self.GACC+1}, 0''')
        for r in range(0, 96):
            e(f'v_mov_b32 v{r}, 0')
        e('s_waitcnt lgkmcnt(0)')
        self.make_srd(sX, 28, 29, 4 << 20)
        e(f'''
        s_cmp_eq_u32 s{S_BR}, 1
        s_cselect_b32 s{sW}, s36, s30
        s_cselect_b32 s{sW+1}, s37, s31
        s_mov_b32 s{sW+2}, {hx(6 << 20)}
        s_mov_b32 s{sW+3}, 0x20000''')
        self.make_srd(sWS, 46, 47, WS_SIZE)
        self.make_srd(sOUT, 42, 43, 4 << 20)
        self.make_srd(sDBG, 44, 45, 256)
        lc = self.lab('noclear')
        e(f'''
        s_or_b32 s{S_T0}, s2, s{S_W}
        s_cmp_lg_u32 s{S_T0}, 0
        s_cbranch_scc1 {lc}''')
        e('''
        v_mov_b32 v156, 0
        v_mov_b32 v157, 0
        v_mov_b32 v158, 0
        v_mov_b32 v159, 0''')
        for i in range(6):
            e(f'''
            s_mov_b32 s{S_T1}, {hx(FLG_OFF + i * 1024)}
            buffer_store_dwordx4 v[156:159], v{vL16}, {srd(sWS)}, s{S_T1} offen sc1''')
        e(f'{lc}:')
        e(f'''
        s_cmp_eq_u32 s{S_BR}, 1
        s_cselect_b32 s{sT}, s40, s32
        s_cselect_b32 s{sT+1}, s41, s33
        s_movk_i32 s{sT+2}, 2048
        s_cselect_b32 s{sT+2}, s{sT+2}, 0x10000
        s_mov_b32 s{sT+3}, 0x20000
        s_and_b32 s{S_T0}, s{S_W}, 3
        s_lshl_b32 s{S_T0}, s{S_T0}, 10
        s_lshl_b32 s{S_T1}, s{S_HP}, 12
        s_add_u32 s{S_T1}, s{S_T1}, s{S_T0}
        s_add_u32 s{S_T0}, s{S_T0}, {hx(WPHI)}
        s_lshl_b32 s{S_T2}, s{S_TT}, 10
        s_add_u32 s{S_T3}, s{S_T2}, {hx(GW)}
        s_cmp_eq_u32 s{S_BR}, 1
        s_cselect_b32 s{S_T1}, s{S_T2}, s{S_T1}
        s_cselect_b32 m0, s{S_T3}, s{S_T0}
        s_nop 0
        buffer_load_dwordx4 v{vL16}, {srd(sT)}, s{S_T1} offen lds''')
        self.dma_x_const(0, 0)
        for sp in range(-4, 0):
            self.dma_w_const(sp + 4)
            u = (sp + 5) >> 1
            h = (sp + 1) & 1
            self.dma_x_const(u, h)
        if self.cfg.get('pf', 0):
            self.input_prefetch()
        e(f'''
        s_mov_b32 s{S_WC}, 0
        s_mov_b32 s{S_XC}, 0
        s_mov_b32 s{S_XN}, 16384
        s_mov_b32 s{S_XNN}, 32768
        s_mov_b32 s{S_WK}, {hx(4 * 196608)}
        s_mov_b32 s{S_U}, 0
        s_waitcnt vmcnt(12) lgkmcnt(0)
        s_barrier''')
        self.stamp(1)
        lc = self.lab('nopub')
        e(f'''
        s_or_b32 s{S_T0}, s2, s{S_W}
        s_cmp_lg_u32 s{S_T0}, 0
        s_cbranch_scc1 {lc}
        v_mov_b32 v{t0}, 1
        buffer_store_dword v{t0}, off, {srd(sDBG)}, 0 sc1
        s_waitcnt vmcnt(12)
        {lc}:''')
        F0 = self.F[0]
        e(f'v_mov_b32 v{self.vWa}, v{self.vWr}')
        e(f'v_mov_b32 v{self.vXa}, v{self.vXr}')
        e(self.frag_reads(F0, 0))
        e(f'ds_read_b128 {vr(self.GWF)}, v{self.vGa}')
        e('s_waitcnt lgkmcnt(0)')

    def input_prefetch(self):
        e = self.emit
        t0 = self.vT
        mode = self.cfg.get('pf')
        e(f'''
        s_lshl_b32 s{S_T0}, s2, 3
        s_add_u32 s{S_T0}, s{S_T0}, s{S_W}''')
        if mode == 2:
            e(f'''
            s_lshl_b32 s{S_T0}, s{S_W}, 8
            s_add_u32 s{S_T0}, s{S_T0}, s2''')
        e(f'''
        s_mov_b32 s{sT}, s28
        s_mov_b32 s{sT+1}, s29
        s_mov_b32 s{sT+2}, {hx(4 << 20)}
        s_cmp_ge_u32 s{S_T0}, 512
        s_cselect_b32 s{sT}, s30, s{sT}
        s_cselect_b32 s{sT+1}, s31, s{sT+1}
        s_cselect_b32 s{sT+2}, {hx(6 << 20)}, s{sT+2}
        s_cselect_b32 s{S_T1}, 512, 0
        s_cmp_ge_u32 s{S_T0}, 1280
        s_cselect_b32 s{sT}, s36, s{sT}
        s_cselect_b32 s{sT+1}, s37, s{sT+1}
        s_cselect_b32 s{S_T1}, 1280, s{S_T1}
        s_sub_u32 s{S_T0}, s{S_T0}, s{S_T1}
        s_lshl_b32 s{S_T0}, s{S_T0}, 13
        v_lshlrev_b32 v{t0}, 7, v{self.vL}
        buffer_load_dword v{self.vDummy}, v{t0}, {srd(sT)}, s{S_T0} offen''')

    def dma_x_const(self, u, h):
        self.emit(f'''
        s_add_u32 m0, s{S_DXL}, {hx((u % 3) * 16384 + h * 8192)}
        s_mov_b32 s{S_T0}, {hx(h * 131072 + u * 128)}
        buffer_load_dwordx4 v{self.vDX}, {srd(sX)}, s{S_T0} offen lds''')

    def dma_w_const(self, st):
        for i in range(3):
            self.emit(f'''
            s_add_u32 m0, s{S_DWL}, {hx((st % 4) * 24576 + i * 4096)}
            s_mov_b32 s{S_T0}, {hx(st * 196608 + i * 2048)}
            buffer_load_dwordx4 v{self.vDW}, {srd(sW)}, s{S_T0} offen lds''')

    def frag_reads(self, F, step):
        o = step * 2048
        L = [f'ds_read_b128 {vr(F["x0"])}, v{self.vXa}',
             f'ds_read_b64_tr_b16 {vr(F["wq"], 2)}, v{self.vWa} offset:{o}',
             f'ds_read_b64_tr_b16 {vr(F["wq"] + 2, 2)}, v{self.vWa} offset:{o + 256}',
             f'ds_read_b128 {vr(F["x1"])}, v{self.vXa} offset:4096',
             f'ds_read_b64_tr_b16 {vr(F["wk"], 2)}, v{self.vWa} offset:{o + 4096}',
             f'ds_read_b64_tr_b16 {vr(F["wk"] + 2, 2)}, v{self.vWa} offset:{o + 4096 + 256}',
             f'ds_read_b64_tr_b16 {vr(F["wv"], 2)}, v{self.vWa} offset:{o + 8192}',
             f'ds_read_b64_tr_b16 {vr(F["wv"] + 2, 2)}, v{self.vWa} offset:{o + 8192 + 256}']
        return L

    def gemm_mfmas(self, F):
        if 'mf16' in self.cfg.get('exp', ''):
            pairs = [(self.Q0, F['wq'], F['x0']), (self.Q1, F['wq'], F['x1']), (self.K0, F['wk'], F['x0']),
                     (self.K1, F['wk'], F['x1']), (self.V0, F['x0'], F['wv']), (self.V1, F['x1'], F['wv'])]
            L = []
            for i, (d, A, B) in enumerate(pairs):
                d2, A2, B2 = pairs[(i + 3) % 6]
                o = 4 * self.par16
                L.append(mf16(d + o, A, B) + '\n' + mf16(d2 + 8 + o, A2, B2))
            self.par16 ^= 1
            return L
        return [mf32(self.Q0, F['wq'], F['x0']), mf32(self.Q1, F['wq'], F['x1']),
                mf32(self.K0, F['wk'], F['x0']), mf32(self.K1, F['wk'], F['x1']),
                mf32(self.V0, F['x0'], F['wv']), mf32(self.V1, F['x1'], F['wv'])]

    def gate_dots(self, F, sigma):
        l = self.lab('nogate')
        L = [f's_cmp_eq_u32 s{S_C}, {sigma}', f's_cbranch_scc0 {l}']
        for i in range(4):
            L.append(f'v_dot2_f32_bf16 v{self.GACC}, v{F["x0"]+i}, v{self.GWF+i}, v{self.GACC}')
            L.append(f'v_dot2_f32_bf16 v{self.GACC+1}, v{F["x1"]+i}, v{self.GWF+i}, v{self.GACC+1}')
        L.append(f'{l}:')
        return L

    def gemm_step(self, sigma):
        e = self.emit
        cur = self.F[sigma & 1]
        nxt = self.F[(sigma + 1) & 1]
        mf = self.gemm_mfmas(cur)
        second = sigma & 1
        pre = []
        if second:
            pre += [f's_add_u32 s{S_T1}, s{S_WC}, 24576',
                    f's_cmp_eq_u32 s{S_T1}, 98304',
                    f's_cselect_b32 s{S_T1}, 0, s{S_T1}',
                    f'v_add_u32 v{self.vWa}, s{S_T1}, v{self.vWr}']
        xs = S_XN if sigma == 3 else S_XC
        pre += [f'v_add_u32 v{self.vXa}, s{xs}, v{self.vXr + ((sigma + 1) & 3)}']
        reads = self.frag_reads(nxt, 0 if second else 1)
        dma = []
        if second:
            dma += [f's_add_u32 s{S_T2}, s{S_DWL}, s{S_WC}']
            for i in range(3):
                dma += [f's_add_u32 m0, s{S_T2}, {i * 4096}',
                        f's_add_u32 s{S_T0}, s{S_WK}, {i * 2048}',
                        f'buffer_load_dwordx4 v{self.vDW}, {srd(sW)}, s{S_T0} offen lds']
            if sigma == 1:
                dma += [f's_add_u32 s{S_T2}, s{S_DXL}, s{S_XNN}',
                        f's_add_u32 m0, s{S_T2}, 8192',
                        f's_lshl_b32 s{S_T0}, s{S_U}, 7',
                        f's_add_u32 s{S_T0}, s{S_T0}, {hx(131072 + 256)}',
                        f's_cmp_ge_u32 s{S_U}, 14']
            else:
                dma += [f's_add_u32 m0, s{S_DXL}, s{S_XC}',
                        f's_lshl_b32 s{S_T0}, s{S_U}, 7',
                        f's_add_u32 s{S_T0}, s{S_T0}, 384',
                        f's_cmp_ge_u32 s{S_U}, 13']
            dma += [f's_cselect_b32 s{S_T0}, {hx(BIGOFF)}, s{S_T0}',
                    f'buffer_load_dwordx4 v{self.vDX}, {srd(sX)}, s{S_T0} offen lds',
                    f's_add_u32 s{S_WK}, s{S_WK}, {hx(196608)}',
                    f's_mov_b32 s{S_WC}, s{S_T1}']
        ex = self.cfg.get('exp', '')
        if 'nodma' in ex:
            dma = [x for x in dma if not x.startswith('buffer_load')] + ['buffer_XX'] * 0
            dma = ['s_nop 0', 's_nop 0'] if not second else [x for x in dma]
        if 'noread' in ex:
            reads = ['s_nop 0'] * 8
        if 'noxrd' in ex:
            reads = [('s_nop 0' if 'b128' in r else r) for r in reads]
        if 'nowrd' in ex:
            reads = [('s_nop 0' if '_tr_' in r else r) for r in reads]
        if 'snake' in ex:
            mf = [mf[0], mf[1], mf[3], mf[2], mf[4], mf[5]]
        if 'snake2' in ex:
            mf = [mf32(self.Q0, cur['wq'], cur['x0']), mf32(self.K0, cur['wk'], cur['x0']), mf32(self.V0, cur['wv'], cur['x0']),
                  mf32(self.V1, cur['wv'], cur['x1']), mf32(self.K1, cur['wk'], cur['x1']), mf32(self.Q1, cur['wq'], cur['x1'])]
        e(pre)
        e(mf[0]); e(reads[0:3])
        e(mf[1]); e(reads[3:6])
        e(mf[2]); e(reads[6:8])
        if 'nogate' not in ex:
            e(self.gate_dots(cur, sigma))
        if sigma == 3:
            e(f'v_add_u32 v{self.vGa}, 128, v{self.vGa}')
            e(f'ds_read_b128 {vr(self.GWF)}, v{self.vGa}')
        if second:
            cut = [i for i, x in enumerate(dma) if x.startswith('buffer_load')] or [3, 6]
            e(mf[3]); e(dma[:cut[1] + 1])
            e(mf[4]); e(dma[cut[1] + 1:])
            e(mf[5])
            e('s_waitcnt lgkmcnt(0)')
        else:
            e(mf[3]); e(mf[4]); e(mf[5])
            e('s_waitcnt vmcnt(8) lgkmcnt(0)')
            e('s_barrier')

    def gemm_loop(self):
        e = self.emit
        e('L_gemm:')
        for sg in range(4):
            self.gemm_step(sg)
        e(f'''
        s_mov_b32 s{S_T0}, s{S_XC}
        s_mov_b32 s{S_XC}, s{S_XN}
        s_mov_b32 s{S_XN}, s{S_XNN}
        s_mov_b32 s{S_XNN}, s{S_T0}
        s_add_u32 s{S_U}, s{S_U}, 1
        s_cmp_lt_u32 s{S_U}, 16
        s_cbranch_scc1 L_gemm''')
        t0 = self.vT
        self.stamp(2)
        e(f'''
        v_and_b32 v{t0}, 31, v{self.vL}
        s_lshl_b32 s{S_T0}, s{S_TT}, 6
        v_add_u32 v{t0}, s{S_T0}, v{t0}
        v_lshlrev_b32 v{t0}, 2, v{t0}
        v_add_u32 v{t0}, {hx(LOG)}, v{t0}
        ds_add_f32 v{t0}, v{self.GACC}
        ds_add_f32 v{t0}, v{self.GACC+1} offset:128
        v_mov_b32 v{t0+1}, 0''')
        self.poll(t0 + 1, 0, self.vDb, srdb=sDBG)
        e('''
        s_waitcnt lgkmcnt(0)
        s_barrier''')
        self.stamp(3)

    Sa, Sb, Ca, Cb, Oa, Ob = 0, 16, 32, 48, 64, 80
    QF = 96
    Pa, Pb = 112, 120
    la, lb = 128, 132
    ONES = 136
    KVB = [140, 156, 172, 188]
    vKV = 204
    vMa, vMb = 205, 206
    vA = 207

    def epi_B(self):
        e = self.emit
        t0 = self.vT
        e('L_epiB:')
        e(f'''
        s_lshl_b32 s{S_T0}, s{S_HEAD}, 18
        s_lshl_b32 s{S_T1}, s{S_MB}, 14
        s_add_u32 s{S_T0}, s{S_T0}, s{S_T1}
        s_lshl_b32 s{S_T1}, s{S_TT}, 13
        s_add_u32 s{S_T0}, s{S_T0}, s{S_T1}
        v_add_u32 v{t0}, s{S_T0}, v{self.vL16}''')
        kf, vf = 112, 128
        for tau, acc in ((0, self.K0), (1, self.K1)):
            for i in range(8):
                e(cvt(kf + tau * 8 + i, acc + 2 * i, acc + 2 * i + 1))
            so = '0' if tau == 0 else f's{S_4096}'
            e(f'buffer_store_dwordx4 {vr(kf + tau * 8)}, v{t0}, {srd(sWS)}, {so} offen sc1')
            e(f'buffer_store_dwordx4 {vr(kf + tau * 8 + 4)}, v{t0}, {srd(sWS)}, {so} offen offset:1024 sc1')
        for tau, acc in ((0, self.V0), (1, self.V1)):
            for i in range(8):
                e(cvt(vf + tau * 8 + i, acc + 2 * i, acc + 2 * i + 1))
            so = '0' if tau == 0 else f's{S_4096}'
            e(f'buffer_store_dwordx4 {vr(vf + tau * 8)}, v{t0}, {srd(sWS)}, {so} offen offset:2048 sc1')
            e(f'buffer_store_dwordx4 {vr(vf + tau * 8 + 4)}, v{t0}, {srd(sWS)}, {so} offen offset:3072 sc1')
        e(f'''
        s_lshl_b32 s{S_T0}, s{S_HD}, 1
        s_add_u32 s{S_T0}, s{S_T0}, s{S_TT}
        s_lshl_b32 s{S_T0}, s{S_T0}, 12
        s_add_u32 s{S_T0}, s{S_T0}, {QX}
        v_add_u32 v{t0+1}, s{S_T0}, v{self.vL16}''')
        for tau, acc in ((1, self.Q1), (0, self.Q0)):
            dst = self.QF + (0 if tau == 1 else 8)
            for r in range(16):
                e(f'v_mul_f32 v{acc+r}, s{S_QS}, v{acc+r}')
            for i in range(8):
                e(cvt(dst + i, acc + 2 * i, acc + 2 * i + 1))
            e(f'ds_write_b128 v{t0+1}, {vr(dst)} offset:{tau * 2048}')
            e(f'ds_write_b128 v{t0+1}, {vr(dst + 4)} offset:{tau * 2048 + 1024}')
        e('s_waitcnt vmcnt(0)')
        self.count_and_flag(0, 3, f'''
        s_lshl_b32 s{S_T0}, s{S_HP}, 7
        s_lshl_b32 s{S_T1}, s{S_MB}, 2
        s_add_u32 s{S_T0}, s{S_T0}, s{S_T1}
        s_add_u32 s{S_T0}, s{S_T0}, {hx(F1_OFF)}''', t0 + 2, t0 + 3)
        e('''
        s_waitcnt lgkmcnt(0)
        s_barrier
        s_branch L_attn''')

    def make_ident(self, I0, t):
        e = self.emit
        e(f'''
        v_and_b32 v{t}, 31, v{self.vL}
        v_lshlrev_b32 v{t+1}, 2, v{self.vHf}
        v_sub_u32 v{t}, v{t}, v{t+1}
        v_and_b32 v{t+1}, 1, v{t}
        v_lshlrev_b32 v{t+1}, 4, v{t+1}
        v_mov_b32 v{t+2}, 0x3f80
        v_lshlrev_b32 v{t+1}, v{t+1}, v{t+2}
        v_ashrrev_i32 v{t}, 1, v{t}''')
        for s in range(2):
            for i in range(4):
                key = 8 * s + (i & 1) + 4 * (i >> 1)
                e(f'v_cmp_eq_u32 vcc, {key}, v{t}')
                e(f'v_cndmask_b32 v{I0 + 4 * s + i}, 0, v{t+1}, vcc')

    def make_ones16(self, d, t):
        e = self.emit
        e(f'''
        v_lshrrev_b32 v{t}, 2, v{self.vL}
        v_lshrrev_b32 v{t+1}, 4, v{self.vL}
        v_xor_b32 v{t}, v{t}, v{t+1}
        v_and_b32 v{t}, 1, v{t}
        v_mov_b32 v{t+1}, 0x3f803f80
        v_cmp_eq_u32 vcc, 0, v{t}''')
        for i in range(4):
            e(f'v_cndmask_b32 v{d+i}, 0, v{t+1}, vcc')

    def dual_softmax(self, X, E, P1, P2, t):
        e = self.emit
        mx, nm, u, w = t, t + 1, t + 2, t + 3
        e(f'v_max3_f32 v{mx}, v{X}, v{X+1}, v{X+2}')
        e(f'v_max3_f32 v{nm}, -v{X}, -v{X+1}, -v{X+2}')
        for i in range(3, 15, 2):
            e(f'v_max3_f32 v{mx}, v{mx}, v{X+i}, v{X+i+1}')
            e(f'v_max3_f32 v{nm}, v{nm}, -v{X+i}, -v{X+i+1}')
        e(f'v_max_f32 v{mx}, v{mx}, v{X+15}')
        e(f'v_max_f32 v{nm}, v{nm}, -v{X+15}'.replace('v_max_f32', 'v_max_f32_e64'))
        e(f'''
        v_permlane32_swap_b32 v{mx}, v{nm}
        v_max_f32 v{mx}, v{mx}, v{nm}
        v_mov_b32 v{nm}, v{mx}
        v_permlane32_swap_b32 v{mx}, v{nm}
        v_mul_f32 v{mx}, s{S_L2E}, v{mx}
        v_mul_f32 v{nm}, s{S_L2E}, v{nm}''')
        for r in range(16):
            e(f'v_fma_f32 v{E+r}, v{X+r}, s{S_L2E}, -v{mx}')
            e(f'v_fma_f32 v{X+r}, v{X+r}, -s{S_L2E}, -v{nm}')
        for r in range(16):
            e(f'v_exp_f32 v{E+r}, v{E+r}')
            e(f'v_exp_f32 v{X+r}, v{X+r}')
        e(f'v_add_f32 v{u}, v{E}, v{E+1}')
        e(f'v_add_f32 v{w}, v{X}, v{X+1}')
        for r in range(2, 16):
            e(f'v_add_f32 v{u}, v{u}, v{E+r}')
            e(f'v_add_f32 v{w}, v{w}, v{X+r}')
        e(f'''
        v_permlane32_swap_b32 v{u}, v{w}
        v_add_f32 v{u}, v{u}, v{w}
        v_mov_b32 v{w}, v{u}
        v_permlane32_swap_b32 v{u}, v{w}
        v_rcp_f32 v{u}, v{u}
        v_rcp_f32 v{w}, v{w}''')
        for r in range(16):
            e(f'v_mul_f32 v{E+r}, v{E+r}, v{u}')
            e(f'v_mul_f32 v{X+r}, v{X+r}, v{w}')
        for i in range(8):
            e(cvt(P1 + i, E + 2 * i, E + 2 * i + 1))
            e(cvt(P2 + i, X + 2 * i, X + 2 * i + 1))

    def epi_A(self):
        e = self.emit
        t0 = self.vT
        qf, kf, vf, wf, I0, ones = 96, 112, 128, 144, 166, 174
        zf, zs = 178, 182
        E, P1, P2, T1, T2, tt = 186, 202, 210, 218, 234, 159
        kv1, kv2 = self.V0, self.V1
        e('L_epiA:')
        e(f'''
        v_bfe_u32 v{t0}, v{self.vL}, 2, 2
        v_lshlrev_b32 v{t0}, 6, v{t0}
        v_bfe_u32 v{t0+1}, v{self.vL}, 4, 1
        v_lshl_add_u32 v{t0}, v{t0+1}, 5, v{t0}
        v_and_b32 v{t0+1}, 3, v{self.vL}
        v_lshl_add_u32 v{t0}, v{t0+1}, 3, v{t0}
        v_lshl_add_u32 v{t0}, v{self.vHf}, 8, v{t0}
        s_lshl_b32 s{S_T0}, s{S_HD}, 11
        s_add_u32 s{S_T0}, s{S_T0}, {hx(WPHI)}
        v_add_u32 v{t0}, s{S_T0}, v{t0}''')
        for s in range(2):
            e(f'ds_read_b64_tr_b16 {vr(wf + 4 * s, 2)}, v{t0} offset:{s * 1024}')
            e(f'ds_read_b64_tr_b16 {vr(wf + 4 * s + 2, 2)}, v{t0} offset:{s * 1024 + 512}')
        for base, accs in ((kf, (self.K0, self.K1)), (vf, (self.V0, self.V1)), (qf, (self.Q0, self.Q1))):
            for tau in range(2):
                for i in range(8):
                    e(cvt(base + tau * 8 + i, accs[tau] + 2 * i, accs[tau] + 2 * i + 1))
        self.make_ident(I0, tt)
        self.make_ones16(ones, tt)
        e(f'''
        s_mul_i32 s{S_T0}, s{S_TT}, 0x80008000
        s_waitcnt lgkmcnt(0)''')
        for i in range(8):
            e(f'v_xor_b32 v{wf+i}, s{S_T0}, v{wf+i}')
        for acc, fr in ((self.K0, kf), (self.K1, kf + 8), (self.Q0, qf), (self.Q1, qf + 8)):
            e(mf32(acc, wf, fr, 'z'))
            e(mf32(acc, wf + 4, fr + 4))
        for tau, acc in ((0, self.K0), (1, self.K1)):
            self.dual_softmax(acc, E, P1, P2, tt)
            e(mf32(T1, P1, I0, 'z')); e(mf32(T2, P2, I0, 'z'))
            e(mf32(T1, P1 + 4, I0 + 4)); e(mf32(T2, P2 + 4, I0 + 4))
            for i in range(8):
                e(cvt(P1 + i, T1 + 2 * i, T1 + 2 * i + 1))
            for i in range(8):
                e(cvt(P2 + i, T2 + 2 * i, T2 + 2 * i + 1))
            z = 'z' if tau == 0 else None
            e(mf32(kv1, vf + tau * 8, P1, z)); e(mf32(kv2, vf + tau * 8, P2, z))
            e(mf32(kv1, vf + tau * 8 + 4, P1 + 4)); e(mf32(kv2, vf + tau * 8 + 4, P2 + 4))
            e(mf16(zf, ones, P1, z)); e(mf16(zs, ones, P2, z))
            e(mf16(zf, ones, P1 + 4)); e(mf16(zs, ones, P2 + 4))
        e(f'''
        s_lshl_b32 s{S_T0}, s{S_HD}, 1
        s_xor_b32 s{S_T1}, s{S_TT}, 1
        s_add_u32 s{S_T0}, s{S_T0}, s{S_T1}
        s_lshl_b32 s{S_T1}, s{S_T0}, 12
        s_add_u32 s{S_T1}, s{S_T1}, {hx(KVX)}
        v_add_u32 v{t0}, s{S_T1}, v{self.vL16}
        s_lshl_b32 s{S_T0}, s{S_T0}, 8
        s_add_u32 s{S_T0}, s{S_T0}, {hx(KVZ)}
        v_lshlrev_b32 v{t0+1}, 2, v{self.vL}
        v_add_u32 v{t0+1}, s{S_T0}, v{t0+1}''')
        for q in range(4):
            e(f'ds_write_b128 v{t0}, {vr(kv2 + 4 * q)} offset:{q * 1024}')
        e(f'ds_write_b32 v{t0+1}, v{zs}')
        e(f'''
        s_lshl_b32 s{S_T0}, s{S_HD}, 1
        s_add_u32 s{S_T0}, s{S_T0}, s{S_TT}
        s_lshl_b32 s{S_T0}, s{S_T0}, 13
        s_add_u32 s{S_T0}, s{S_T0}, {hx(PHI)}
        s_lshl_b32 s{S_T1}, s{S_TT}, 11
        s_add_u32 s{S_T1}, s{S_T1}, s{S_T0}
        v_add_u32 v{t0+2}, s{S_T1}, v{self.vL16}
        v_xor_b32 v{t0+3}, 2048, v{t0+2}''')
        for tau, acc in ((0, self.Q0), (1, self.Q1)):
            self.dual_softmax(acc, E, P1, P2, tt)
            for s in range(2):
                e(f'ds_write_b128 v{t0+2}, {vr(P1 + 4 * s)} offset:{tau * 4096 + s * 1024}')
                e(f'ds_write_b128 v{t0+3}, {vr(P2 + 4 * s)} offset:{tau * 4096 + s * 1024}')
        e('''
        s_waitcnt lgkmcnt(0)
        s_barrier''')
        e(f'''
        s_lshl_b32 s{S_T0}, s{S_HD}, 1
        s_add_u32 s{S_T0}, s{S_T0}, s{S_TT}
        s_lshl_b32 s{S_T1}, s{S_T0}, 12
        s_add_u32 s{S_T1}, s{S_T1}, {hx(KVX)}
        v_add_u32 v{t0}, s{S_T1}, v{self.vL16}
        s_lshl_b32 s{S_T1}, s{S_T0}, 8
        s_add_u32 s{S_T1}, s{S_T1}, {hx(KVZ)}
        v_lshlrev_b32 v{t0+1}, 2, v{self.vL}
        v_add_u32 v{t0+1}, s{S_T1}, v{t0+1}
        s_lshl_b32 s{S_T1}, s{S_T0}, 12
        s_add_u32 s{S_T1}, s{S_T1}, {QX}
        v_add_u32 v{t0+2}, s{S_T1}, v{self.vL16}''')
        for q in range(4):
            e(f'ds_read_b128 {vr(T1 + 4 * q)}, v{t0} offset:{q * 1024}')
        e(f'ds_read_b32 v{zs}, v{t0+1}')
        for q in range(4):
            e(f'ds_read_b128 {vr(self.QF + 4 * q)}, v{t0+2} offset:{q * 1024}')
        e('s_waitcnt lgkmcnt(4)')
        for r in range(16):
            e(f'v_add_f32 v{kv1+r}, v{kv1+r}, v{T1+r}')
        e(f'v_add_f32 v{zf}, v{zf}, v{zs}')
        for i in range(8):
            e(cvt(P1 + i, kv1 + 2 * i, kv1 + 2 * i + 1))
        e(f'''
        s_lshl_b32 s{S_T1}, s{S_HP}, 4
        s_add_u32 s{S_T1}, s{S_T1}, s{S_MB}
        s_lshl_b32 s{S_T1}, s{S_T1}, 2
        s_add_u32 s{S_T1}, s{S_T1}, s{S_T0}
        s_lshl_b32 s{S_T1}, s{S_T1}, 11
        s_add_u32 s{S_T1}, s{S_T1}, {hx(KVP_OFF)}
        buffer_store_dwordx4 {vr(P1)}, v{self.vL16}, {srd(sWS)}, s{S_T1} offen sc1
        buffer_store_dwordx4 {vr(P1 + 4)}, v{self.vL16}, {srd(sWS)}, s{S_T1} offen offset:1024 sc1
        s_lshl_b32 s{S_T1}, s{S_HP}, 2
        s_add_u32 s{S_T1}, s{S_T1}, s{S_T0}
        s_lshl_b32 s{S_T1}, s{S_T1}, 4
        s_add_u32 s{S_T1}, s{S_T1}, s{S_MB}
        s_lshl_b32 s{S_T1}, s{S_T1}, 7
        s_add_u32 s{S_T1}, s{S_T1}, {hx(ZP_OFF)}
        v_lshlrev_b32 v{t0}, 2, v{self.vL}
        s_mov_b32 exec_hi, 0
        buffer_store_dword v{zf}, v{t0}, {srd(sWS)}, s{S_T1} offen sc1
        s_mov_b64 exec, -1
        s_waitcnt lgkmcnt(0)''')

    def kv_loads(self, slot, so):
        b = self.KVB[slot]
        return [f'buffer_load_dwordx4 {vr(b + 4 * q)}, v{self.vKV}, {srd(sWS)}, {so} offen offset:{q * 1024} sc1'
                .replace(' offset:0 ', ' ') for q in range(4)]

    def tile_off(self, dst, j_expr_sreg):
        return [f's_add_u32 s{dst}, s{j_expr_sreg}, s{S_ROT}',
                f's_and_b32 s{dst}, s{dst}, 31',
                f's_lshl_b32 s{dst}, s{dst}, 12',
                f's_cmp_ge_u32 s{j_expr_sreg}, 32',
                f's_cselect_b32 s{dst}, {hx(BIGOFF)}, s{dst}']

    def first_loads(self):
        e = self.emit
        for j in range(3):
            e(f's_mov_b32 s{S_J}, {j}')
            e(self.tile_off(S_T0, S_J))
            e(self.kv_loads(j, f's{S_T0}'))
        e(f's_mov_b32 s{S_J}, 3')

    def exp_block(self, S, P):
        L = []
        for q in range(4):
            for j in range(4):
                L.append(f'v_exp_f32 v{S + 4 * q + j}, v{S + 4 * q + j}')
            L.append(cvt(P + 2 * q, S + 4 * q, S + 4 * q + 1))
            L.append(cvt(P + 2 * q + 1, S + 4 * q + 2, S + 4 * q + 3))
        return L

    def wave_rowmax(self, S, dst, t):
        e = self.emit
        e(f'v_max3_f32 v{dst}, v{S}, v{S+1}, v{S+2}')
        for i in range(3, 15, 2):
            e(f'v_max3_f32 v{dst}, v{dst}, v{S+i}, v{S+i+1}')
        e(f'v_max_f32 v{dst}, v{dst}, v{S+15}')

    def cross_half_max(self, d, t):
        self.emit(f'''
        v_mov_b32 v{t}, v{d}
        v_permlane32_swap_b32 v{d}, v{t}
        v_max_f32 v{d}, v{d}, v{t}''')

    def attention(self):
        e = self.emit
        Sa, Sb, Ca, Cb, Oa, Ob = self.Sa, self.Sb, self.Ca, self.Cb, self.Oa, self.Ob
        Qa, Qb = self.QF, self.QF + 8
        Pa, Pb, la, lb, ONES = self.Pa, self.Pb, self.la, self.lb, self.ONES
        KVB = self.KVB
        tA = self.vA
        e('L_attn:')
        self.stamp(4)
        self.make_ones16(ONES, tA)
        e(f'''
        s_lshl_b32 s{S_T0}, s{S_HEAD}, 18
        s_lshl_b32 s{S_T1}, s{S_BR}, 17
        s_add_u32 s{S_T0}, s{S_T0}, s{S_T1}
        v_add_u32 v{self.vKV}, s{S_T0}, v{self.vL16}
        s_lshl_b32 s{S_ROT}, s{S_MB}, 1
        s_mov_b32 s{S_RETRY}, 0
        v_and_b32 v{tA}, 15, v{self.vL}
        v_lshlrev_b32 v{tA}, 2, v{tA}
        s_lshl_b32 s{S_T0}, s{S_HP}, 7
        v_add_u32 v{tA}, s{S_T0}, v{tA}''')
        self.poll(tA, F1_OFF, tA + 1)
        self.stamp(5)
        ln = self.lab('noF1b')
        e(f'''
        s_cmp_eq_u32 s{S_BR}, 0
        s_cbranch_scc0 {ln}''')
        self.count_and_flag(1, 3, f'''
        s_lshl_b32 s{S_T0}, s{S_HP}, 7
        s_lshl_b32 s{S_T1}, s{S_MB}, 2
        s_add_u32 s{S_T0}, s{S_T0}, s{S_T1}
        s_add_u32 s{S_T0}, s{S_T0}, {hx(F1B_OFF)}''', tA, tA + 1)
        e(f'{ln}:')
        self.first_loads()
        K0 = KVB[0]
        e('s_waitcnt vmcnt(10)')
        e(mf32(Sa, K0, Qa, 'z')); e(mf32(Sb, K0, Qb, 'z'))
        e(mf32(Sa, K0 + 4, Qa + 4)); e(mf32(Sb, K0 + 4, Qb + 4))
        self.wave_rowmax(Sa, self.vMa, tA)
        self.wave_rowmax(Sb, self.vMb, tA)
        self.cross_half_max(self.vMa, tA)
        self.cross_half_max(self.vMb, tA)
        e(f'v_add_f32 v{self.vMa}, {hx(f2u(MOFF))}, v{self.vMa}')
        e(f'v_add_f32 v{self.vMb}, {hx(f2u(MOFF))}, v{self.vMb}')
        e('L_attn_go:')
        V3 = KVB[3] + 8
        for r in range(8):
            e(f'v_mov_b32 v{V3 + r}, 0')
            e(f'v_mov_b32 v{Pb + r}, 0')
        for r in range(4):
            e(f'v_mov_b32 v{la + r}, 0')
            e(f'v_mov_b32 v{lb + r}, 0')
        for r in range(16):
            e(f'v_sub_f32 v{Ca + r}, 0, v{self.vMa}')
        e(mf32(Oa, V3, V3, 'z')); e(mf32(Ob, V3, V3, 'z'))
        for r in range(16):
            e(f'v_sub_f32 v{Cb + r}, 0, v{self.vMb}')
        e(mf32(Sa, K0, Qa, Ca)); e(mf32(Sa, K0 + 4, Qa + 4))
        e(f's_mov_b32 s{S_IT}, 0')
        e('L_attn_loop:')
        for i4 in range(4):
            cur, prev, nxt = KVB[i4], KVB[(i4 - 1) % 4], KVB[(i4 + 1) % 4]
            mfA = [mf32(Sb, cur, Qb, Cb), mf32(Sb, cur + 4, Qb + 4),
                   mf32(Ob, prev + 8, Pb), mf16(lb, ONES, Pb),
                   mf32(Ob, prev + 12, Pb + 4), mf16(lb, ONES, Pb + 4)]
            e(interleave(mfA, self.exp_block(Sa, Pa)))
            e(self.tile_off(S_T0, S_J))
            e(f's_add_u32 s{S_J}, s{S_J}, 1')
            e('s_waitcnt vmcnt(6)')
            mfB = [mf32(Sa, nxt, Qa, Ca), mf32(Sa, nxt + 4, Qa + 4),
                   mf32(Oa, cur + 8, Pa), mf16(la, ONES, Pa),
                   mf32(Oa, cur + 12, Pa + 4), mf16(la, ONES, Pa + 4)]
            body = interleave(mfB, self.exp_block(Sb, Pb))
            loads = self.kv_loads((i4 + 3) % 4, f's{S_T0}')
            out = []
            li = 0
            for n, x in enumerate(body):
                out.append(x)
                if n in (4, 9, 14, 19):
                    out.append(loads[li]); li += 1
            e(out)
        e(f'''
        s_add_u32 s{S_IT}, s{S_IT}, 1
        s_cmp_lt_u32 s{S_IT}, 8
        s_cbranch_scc1 L_attn_loop''')
        prev = KVB[3]
        e(mf32(Ob, prev + 8, Pb)); e(mf16(lb, ONES, Pb))
        e(mf32(Ob, prev + 12, Pb + 4)); e(mf16(lb, ONES, Pb + 4))
        e('s_waitcnt vmcnt(0)')
        self.stamp(6)
        e(f'v_add_f32 v{tA}, v{la}, v{lb}')
        e(f'v_pk_add_f32 {vr(Sa, 2)}, {vr(Oa, 2)}, {vr(Oa + 2, 2)}')
        for r in range(4, 32, 2):
            e(f'v_pk_add_f32 {vr(Sa, 2)}, {vr(Sa, 2)}, {vr(Oa + r, 2)}')
        e(f'''
        v_add_f32 v{tA}, v{tA}, v{Sa}
        v_add_f32 v{tA}, v{tA}, v{Sa+1}
        v_mov_b32 v{tA+1}, 0x207
        v_cmp_class_f32 vcc, v{tA}, v{tA+1}
        s_cbranch_vccz L_attn_done
        s_cmp_lg_u32 s{S_RETRY}, 0
        s_cbranch_scc1 L_attn_done
        s_mov_b32 s{S_RETRY}, 1''')
        e(f'''
        v_mov_b32 v{self.vMa}, 0xff800000
        v_mov_b32 v{self.vMb}, 0xff800000
        s_mov_b32 s{S_J}, 0
        L_truemax:''')
        e(self.tile_off(S_T0, S_J))
        e(self.kv_loads(0, f's{S_T0}')[:2])
        e('s_waitcnt vmcnt(0)')
        e(mf32(Sa, K0, Qa, 'z')); e(mf32(Sb, K0, Qb, 'z'))
        e(mf32(Sa, K0 + 4, Qa + 4)); e(mf32(Sb, K0 + 4, Qb + 4))
        for S, M in ((Sa, self.vMa), (Sb, self.vMb)):
            for i in range(0, 16, 2):
                e(f'v_max3_f32 v{M}, v{M}, v{S+i}, v{S+i+1}')
        e(f'''
        s_add_u32 s{S_J}, s{S_J}, 1
        s_cmp_lt_u32 s{S_J}, 32
        s_cbranch_scc1 L_truemax''')
        self.cross_half_max(self.vMa, tA)
        self.cross_half_max(self.vMb, tA)
        self.first_loads()
        e('''
        s_waitcnt vmcnt(10)
        s_branch L_attn_go
        L_attn_done:''')

    def finalize_attn(self):
        e = self.emit
        Oa, Ob, la, lb = self.Oa, self.Ob, self.la, self.lb
        tA = self.vA
        I0 = 240
        ACC = 224
        ZL = 208
        vAd = 216
        bufs = list(range(0, 64, 4)) + list(range(140, 204, 4))
        e(f'''
        v_and_b32 v{vAd}, 15, v{self.vL}
        v_lshlrev_b32 v{vAd}, 2, v{vAd}
        s_lshl_b32 s{S_T0}, s{S_HP}, 7
        v_add_u32 v{vAd}, s{S_T0}, v{vAd}''')
        self.poll(vAd, F1B_OFF, vAd + 1)
        self.stamp(7)
        e(f'''
        s_lshl_b32 s{S_T0}, s{S_HP}, 6
        s_lshl_b32 s{S_T1}, s{S_HD}, 1
        s_add_u32 s{S_T1}, s{S_T1}, s{S_BR}
        s_add_u32 s{S_T0}, s{S_T0}, s{S_T1}
        s_lshl_b32 s{S_T0}, s{S_T0}, 11
        s_add_u32 s{S_T0}, s{S_T0}, {hx(KVP_OFF)}''')
        for m in range(16):
            for s in range(2):
                b = bufs[m * 2 + s]
                e(f'buffer_load_dwordx4 {vr(b)}, v{self.vL16}, {srd(sWS)}, s{S_T0} offen' +
                  (f' offset:{s * 1024}' if s else '') + ' sc1')
            e(f's_add_u32 s{S_T0}, s{S_T0}, 8192')
        e(f'''
        s_lshl_b32 s{S_T0}, s{S_HP}, 2
        s_add_u32 s{S_T0}, s{S_T0}, s{S_T1}
        s_lshl_b32 s{S_T0}, s{S_T0}, 11
        s_add_u32 s{S_T0}, s{S_T0}, {hx(ZP_OFF)}
        v_and_b32 v{vAd}, 31, v{self.vL}
        v_lshlrev_b32 v{vAd}, 2, v{vAd}
        v_lshl_add_u32 v{vAd}, v{self.vHf}, 7, v{vAd}''')
        for i in range(8):
            e(f'buffer_load_dword v{ZL + i}, v{vAd}, {srd(sWS)}, s{S_T0} offen' +
              (f' offset:{i * 256}' if i else '') + ' sc1')
        self.make_ident(I0, vAd + 1)
        PH = 112
        e(f'''
        s_lshl_b32 s{S_T0}, s{S_HD}, 1
        s_add_u32 s{S_T0}, s{S_T0}, s{S_TT}
        s_lshl_b32 s{S_T0}, s{S_T0}, 13
        s_add_u32 s{S_T0}, s{S_T0}, {hx(PHI)}
        s_mul_i32 s{S_T1}, s{S_BR}, 6144
        s_add_u32 s{S_T0}, s{S_T0}, s{S_T1}
        v_add_u32 v{vAd}, s{S_T0}, v{self.vL16}
        s_lshl_b32 s{S_T1}, s{S_BR}, 13
        s_sub_u32 s{S_T0}, s{S_T0}, s{S_T1}
        s_add_u32 s{S_T0}, s{S_T0}, 4096
        v_add_u32 v{vAd+1}, s{S_T0}, v{self.vL16}
        ds_read_b128 {vr(PH)}, v{vAd}
        ds_read_b128 {vr(PH+4)}, v{vAd} offset:1024
        ds_read_b128 {vr(PH+8)}, v{vAd+1}
        ds_read_b128 {vr(PH+12)}, v{vAd+1} offset:1024''')
        e(f'''
        s_lshl_b32 s{S_T0}, s{S_TT}, 6
        s_lshl_b32 s{S_T1}, s{S_BR}, 5
        s_add_u32 s{S_T0}, s{S_T0}, s{S_T1}
        s_lshl_b32 s{S_T0}, s{S_T0}, 2
        s_add_u32 s{S_T0}, s{S_T0}, {hx(LOG)}
        v_and_b32 v{vAd+2}, 31, v{self.vL}
        v_lshlrev_b32 v{vAd+2}, 2, v{vAd+2}
        v_add_u32 v{vAd+2}, s{S_T0}, v{vAd+2}
        ds_read_b32 v{vAd+3}, v{vAd+2}''')
        vG = vAd + 3
        for O, l, M in ((Oa, la, self.vMa), (Ob, lb, self.vMb)):
            e(f'v_rcp_f32 v{l+1}, v{l}')
            e(f'v_log_f32 v{l+2}, v{l}')
            e(f'v_add_f32 v{l+2}, v{l+2}, v{M}')
            for r in range(16):
                e(f'v_mul_f32 v{O+r}, v{O+r}, v{l+1}')
        La, Lb = la + 2, lb + 2
        for n in range(32):
            e(f's_waitcnt vmcnt({8 + 31 - n})')
            e(mf32(ACC, bufs[n], I0 + 4 * (n & 1), 'z' if n == 0 else None))
        e('s_waitcnt vmcnt(0)')
        e(f'v_add_f32 v{ZL}, v{ZL}, v{ZL+1}')
        for i in range(2, 8):
            e(f'v_add_f32 v{ZL}, v{ZL}, v{ZL+i}')
        e(f'''
        v_mov_b32 v{ZL+1}, v{ZL}
        v_permlane32_swap_b32 v{ZL}, v{ZL+1}
        v_add_f32 v{ZL}, v{ZL}, v{ZL+1}
        v_cvt_pk_bf16_f32 v{ZL}, v{ZL}, v{ZL}
        s_lshl_b32 s{S_T0}, s{S_W}, 7
        s_add_u32 s{S_T0}, s{S_T0}, {hx(ZT)}
        v_and_b32 v{ZL+1}, 31, v{self.vL}
        v_lshlrev_b32 v{ZL+1}, 1, v{ZL+1}
        v_add_u32 v{ZL+1}, s{S_T0}, v{ZL+1}
        ds_write_b16 v{ZL+1}, v{ZL}
        v_lshlrev_b32 v{ZL+2}, 3, v{self.vHf}
        v_add_u32 v{ZL+2}, s{S_T0}, v{ZL+2}
        s_waitcnt lgkmcnt(0)''')
        ZF = 0
        for s in range(2):
            e(f'ds_read_b64 {vr(ZF + 4 * s, 2)}, v{ZL+2} offset:{s * 32}')
            e(f'ds_read_b64 {vr(ZF + 4 * s + 2, 2)}, v{ZL+2} offset:{s * 32 + 16}')
        KT = 8
        for i in range(8):
            e(cvt(KT + i, ACC + 2 * i, ACC + 2 * i + 1))
        e(f'''
        v_cmp_ne_u32 vcc, 0, v{self.ONES}
        s_waitcnt lgkmcnt(0)''')
        for i in range(8):
            e(f'v_cndmask_b32 v{ZF+i}, 0, v{ZF+i}, vcc')
        Na, Nb, Da, Db = 16, 32, 48, 52
        for N, D, P in ((Nb, Db, PH + 8), (Na, Da, PH)):
            e(mf32(N, KT, P, 'z')); e(mf32(N, KT + 4, P + 4))
            e(mf16(D, ZF, P, 'z')); e(mf16(D, ZF + 4, P + 4))
        e(f'''
        s_mul_i32 s{S_T0}, s{S_W}, {MRG_STRIDE}
        s_add_u32 s{S_T0}, s{S_T0}, {hx(MRG)}
        v_add_u32 v{vAd}, s{S_T0}, v{self.vL16}
        v_lshlrev_b32 v{vAd+1}, 3, v{self.vL}
        v_add_u32 v{vAd+1}, s{S_T0}, v{vAd+1}
        s_xor_b32 s{S_T1}, s{S_W}, 4
        s_mul_i32 s{S_T0}, s{S_T1}, {MRG_STRIDE}
        s_add_u32 s{S_T0}, s{S_T0}, {hx(MRG)}
        v_add_u32 v{vAd+4}, s{S_T0}, v{self.vL16}
        v_lshlrev_b32 v{vAd+5}, 3, v{self.vL}
        v_add_u32 v{vAd+5}, s{S_T0}, v{vAd+5}''')
        for q in range(4):
            e(f'ds_write_b128 v{vAd}, {vr(Ob + 4 * q)} offset:{q * 1024}')
        for q in range(4):
            e(f'ds_write_b128 v{vAd}, {vr(Nb + 4 * q)} offset:{4096 + q * 1024}')
        e(f'''
        v_mov_b32 v56, v{Lb}
        v_mov_b32 v57, v{Db}
        ds_write_b64 v{vAd+1}, v[56:57] offset:8192''')
        e(f'''
        v_mul_f32 v{vG}, s{S_L2E}, v{vG}
        v_exp_f32 v58, -v{vG}
        v_add_f32 v58, 1.0, v58
        v_rcp_f32 v58, v58
        v_sub_f32 v59, 1.0, v58
        s_waitcnt lgkmcnt(0)
        s_barrier''')
        self.stamp(8)
        RO, RN = 140, 156
        for q in range(4):
            e(f'ds_read_b128 {vr(RO + 4 * q)}, v{vAd+4} offset:{q * 1024}')
        e(f'ds_read_b64 v[56:57], v{vAd+5} offset:8192')
        for q in range(4):
            e(f'ds_read_b128 {vr(RN + 4 * q)}, v{vAd+4} offset:{4096 + q * 1024}')
        e(f'''
        s_waitcnt lgkmcnt(4)
        v_max_f32 v60, v{La}, v56
        v_sub_f32 v61, v{La}, v60
        v_sub_f32 v62, v56, v60
        v_exp_f32 v61, v61
        v_exp_f32 v62, v62
        v_add_f32 v63, v61, v62
        v_rcp_f32 v63, v63
        v_mul_f32 v63, v63, v59
        v_mul_f32 v61, v61, v63
        v_mul_f32 v62, v62, v63
        v_add_f32 v57, v57, v{Da}
        v_add_f32 v57, {hx(f2u(1e-6))}, v57
        v_rcp_f32 v57, v57
        v_mul_f32 v57, v57, v58''')
        for r in range(16):
            e(f'v_mul_f32 v{Oa+r}, v{Oa+r}, v61')
            e(f'v_fma_f32 v{Oa+r}, v{RO+r}, v62, v{Oa+r}')
        OBF, OAF = 96, 104
        for i in range(8):
            e(cvt(OBF + i, Oa + 2 * i, Oa + 2 * i + 1))
        e(f'''
        s_lshl_b32 s{S_T0}, s{S_MB}, 2
        s_lshl_b32 s{S_T1}, s{S_TT}, 1
        s_add_u32 s{S_T0}, s{S_T0}, s{S_T1}
        s_add_u32 s{S_T0}, s{S_T0}, s{S_BR}
        s_lshl_b32 s{S_T0}, s{S_T0}, 17
        s_lshl_b32 s{S_T1}, s{S_HEAD}, 11
        s_add_u32 s{S_T0}, s{S_T0}, s{S_T1}
        s_add_u32 s{S_T0}, s{S_T0}, {hx(O_OFF)}
        s_add_u32 s{S_T1}, s{S_T0}, 65536
        buffer_store_dwordx4 {vr(OBF)}, v{self.vL16}, {srd(sWS)}, s{S_T1} offen sc1
        buffer_store_dwordx4 {vr(OBF+4)}, v{self.vL16}, {srd(sWS)}, s{S_T1} offen offset:1024 sc1
        s_waitcnt lgkmcnt(0)''')
        for r in range(16):
            e(f'v_add_f32 v{Na+r}, v{Na+r}, v{RN+r}')
            e(f'v_mul_f32 v{Na+r}, v{Na+r}, v57')
        for i in range(8):
            e(cvt(OAF + i, Na + 2 * i, Na + 2 * i + 1))
        e(f'''
        buffer_store_dwordx4 {vr(OAF)}, v{self.vL16}, {srd(sWS)}, s{S_T0} offen sc1
        buffer_store_dwordx4 {vr(OAF+4)}, v{self.vL16}, {srd(sWS)}, s{S_T0} offen offset:1024 sc1''')

    def outproj(self):
        e = self.emit
        ACC0, ACC1 = 0, 16
        WB = [32, 40, 48, 56]
        OB = [64, 128]
        vD3, vR3, vR3b, vO3, vE = 200, 201, 202, 203, 204
        S_MB3, S_CT = S_MB, S_HP
        self.stamp(9)
        e('s_barrier')
        e(f'''
        s_lshl_b32 s{S_T2}, s{S_MB}, 7
        s_lshl_b32 s{S_T3}, s{S_HP}, 2
        s_add_u32 s{S_J}, s{S_T2}, s{S_T3}
        s_add_u32 s{S_J}, s{S_J}, {hx(F2_OFF)}
        s_and_b32 s{S_T0}, s2, 7
        s_lshr_b32 s{S_T1}, s2, 3
        s_and_b32 s{S_T2}, s{S_T0}, 3
        s_lshl_b32 s{S_T2}, s{S_T2}, 2
        s_and_b32 s{S_T3}, s{S_T1}, 3
        s_add_u32 s{S_MB3}, s{S_T2}, s{S_T3}
        s_lshr_b32 s{S_T2}, s{S_T0}, 2
        s_lshl_b32 s{S_T2}, s{S_T2}, 3
        s_lshr_b32 s{S_T3}, s{S_T1}, 2
        s_add_u32 s{S_CT}, s{S_T2}, s{S_T3}
        s_cmp_eq_u32 s{S_BR}, 1
        s_cselect_b32 s{sW}, s38, s34
        s_cselect_b32 s{sW+1}, s39, s35
        s_mov_b32 s{sW+2}, {hx(2 << 20)}
        s_mov_b32 s{sW+3}, 0x20000
        s_and_b32 s{S_T0}, s{S_W}, 3
        s_lshl_b32 s{S_T1}, s{S_T0}, 4
        v_bfe_u32 v{vD3}, v{self.vL}, 2, 3
        v_add_u32 v{vD3}, s{S_T1}, v{vD3}
        v_lshlrev_b32 v{vD3}, 11, v{vD3}
        v_lshl_add_u32 v{vD3}, v{self.vHf}, 6, v{vD3}
        v_and_b32 v{vE}, 3, v{self.vL}
        v_lshl_add_u32 v{vD3}, v{vE}, 4, v{vD3}
        s_lshl_b32 s{S_T1}, s{S_CT}, 7
        v_add_u32 v{vD3}, s{S_T1}, v{vD3}
        s_lshl_b32 s{S_DWL}, s{S_BR}, 13
        s_lshl_b32 s{S_T0}, s{S_T0}, 11
        s_add_u32 s{S_DWL}, s{S_DWL}, s{S_T0}''')

        def dma(stage):
            L = []
            for i in range(2):
                L += [f's_add_u32 m0, s{S_DWL}, {hx((stage % 8) * 16384 + i * 1024)}',
                      f's_mov_b32 s{S_T0}, {hx(stage * 131072 + i * 16384)}',
                      f'buffer_load_dwordx4 v{vD3}, {srd(sW)}, s{S_T0} offen lds']
            return L
        for st in range(8):
            e(dma(st))
        e('s_waitcnt vmcnt(16)')
        self.count_and_flag(2, 7, f's_mov_b32 s{S_T0}, s{S_J}', vE, vE + 1)
        e(f'''
        v_bfe_u32 v{vR3}, v{self.vL}, 2, 2
        v_lshlrev_b32 v{vR3}, 6, v{vR3}
        v_bfe_u32 v{vE}, v{self.vL}, 4, 1
        v_lshl_add_u32 v{vR3}, v{vE}, 5, v{vR3}
        v_and_b32 v{vE}, 3, v{self.vL}
        v_lshl_add_u32 v{vR3}, v{vE}, 3, v{vR3}
        v_lshl_add_u32 v{vR3}, v{self.vHf}, 8, v{vR3}
        s_lshl_b32 s{S_T0}, s{S_BR}, 13
        v_add_u32 v{vR3}, s{S_T0}, v{vR3}
        v_add_u32 v{vR3b}, 0x10000, v{vR3}
        s_lshl_b32 s{S_T0}, s{S_MB3}, 2
        s_and_b32 s{S_T1}, s{S_W}, 3
        s_add_u32 s{S_T0}, s{S_T0}, s{S_T1}
        s_lshl_b32 s{S_T0}, s{S_T0}, 17
        s_lshl_b32 s{S_T1}, s{S_BR}, 16
        s_add_u32 s{S_T0}, s{S_T0}, s{S_T1}
        s_add_u32 s{S_T0}, s{S_T0}, {hx(O_OFF)}
        v_add_u32 v{vO3}, s{S_T0}, v{self.vL16}
        v_and_b32 v{vE}, 15, v{self.vL}
        v_lshlrev_b32 v{vE}, 2, v{vE}
        s_lshl_b32 s{S_T0}, s{S_MB3}, 7
        v_add_u32 v{vE}, s{S_T0}, v{vE}''')
        self.poll(vE, F2_OFF, vE + 1)
        self.stamp(10)

        def oloads(m):
            L = []
            for g in range(4):
                L.append(f's_mov_b32 s{S_T0}, {hx((m * 16 + g * 4) * 1024)}')
                for q in range(4):
                    L.append(f'buffer_load_dwordx4 {vr(OB[m & 1] + 16 * g + 4 * q)}, v{vO3}, {srd(sWS)}, s{S_T0} offen' +
                             (f' offset:{q * 1024}' if q else '') + ' sc1')
            return L

        def wreads(m, n):
            q, h2, s = n >> 2, (n >> 1) & 1, n & 1
            slot = (4 * m + q) % 8
            base = vR3 if slot < 4 else vR3b
            o = (slot & 3) * 16384 + (h2 * 4 + 2 * s) * 1024
            b = WB[n & 3]
            return [f'ds_read_b64_tr_b16 {vr(b, 2)}, v{base} offset:{o}',
                    f'ds_read_b64_tr_b16 {vr(b + 2, 2)}, v{base} offset:{o + 1024}',
                    f'ds_read_b64_tr_b16 {vr(b + 4, 2)}, v{base} offset:{o + 512}',
                    f'ds_read_b64_tr_b16 {vr(b + 6, 2)}, v{base} offset:{o + 1536}']

        def macro(m):
            e(wreads(m, 0)); e(wreads(m, 1))
            for n in range(16):
                if n + 2 < 16:
                    e(wreads(m, n + 2))
                    e('s_waitcnt lgkmcnt(8)')
                elif n == 14:
                    e('s_waitcnt lgkmcnt(4)')
                else:
                    e('s_waitcnt lgkmcnt(0)')
                b = WB[n & 3]
                of = OB[m & 1] + 4 * n
                first = 'z' if (m == 0 and n == 0) else None
                e(mf32(ACC0, b, of, first))
                e(mf32(ACC1, b + 4, of, first))
        e(oloads(0)); e(oloads(1))
        e('s_waitcnt vmcnt(16)')
        e('s_barrier')
        macro(0)
        e('s_barrier')
        for st in range(8, 12):
            e(dma(st))
        e(oloads(2))
        e('s_waitcnt vmcnt(24)')
        macro(1)
        e('s_waitcnt vmcnt(16)')
        e('s_barrier')
        for st in range(12, 16):
            e(dma(st))
        e(oloads(3))
        e('s_waitcnt vmcnt(24)')
        macro(2)
        e('s_waitcnt vmcnt(16)')
        e('s_barrier')
        e('s_waitcnt vmcnt(0)')
        macro(3)
        self.stamp(11)
        lA = self.lab('keep1')
        lB = self.lab('kept')
        e(f'''
        s_lshl_b32 s{S_T0}, s{S_W}, 12
        s_add_u32 s{S_T0}, s{S_T0}, {hx(XCH)}
        v_add_u32 v{vE}, s{S_T0}, v{self.vL16}
        s_xor_b32 s{S_T1}, s{S_W}, 4
        s_lshl_b32 s{S_T0}, s{S_T1}, 12
        s_add_u32 s{S_T0}, s{S_T0}, {hx(XCH)}
        v_add_u32 v{vE+1}, s{S_T0}, v{self.vL16}
        s_cmp_eq_u32 s{S_BR}, 1
        s_cbranch_scc1 {lA}''')
        for q in range(4):
            e(f'ds_write_b128 v{vE}, {vr(ACC1 + 4 * q)} offset:{q * 1024}')
        e(f's_branch {lB}')
        e(f'{lA}:')
        for q in range(4):
            e(f'ds_write_b128 v{vE}, {vr(ACC0 + 4 * q)} offset:{q * 1024}')
        for r in range(16):
            e(f'v_mov_b32 v{ACC0+r}, v{ACC1+r}')
        e(f'{lB}:')
        e('''
        s_waitcnt lgkmcnt(0)
        s_barrier''')
        R = 32
        for q in range(4):
            e(f'ds_read_b128 {vr(R + 4 * q)}, v{vE+1} offset:{q * 1024}')
        e(f'''
        s_lshl_b32 s{S_T0}, s{S_MB3}, 7
        s_and_b32 s{S_T1}, s{S_W}, 3
        s_lshl_b32 s{S_T1}, s{S_T1}, 5
        s_add_u32 s{S_T0}, s{S_T0}, s{S_T1}
        v_and_b32 v{vE}, 31, v{self.vL}
        v_add_u32 v{vE}, s{S_T0}, v{vE}
        v_lshlrev_b32 v{vE}, 11, v{vE}
        v_lshl_add_u32 v{vE}, v{self.vHf}, 4, v{vE}
        s_lshl_b32 s{S_T0}, s{S_CT}, 7
        s_lshl_b32 s{S_T1}, s{S_BR}, 6
        s_add_u32 s{S_T0}, s{S_T0}, s{S_T1}
        v_add_u32 v{vE}, s{S_T0}, v{vE}
        s_waitcnt lgkmcnt(0)''')
        for r in range(16):
            e(f'v_add_f32 v{ACC0+r}, v{ACC0+r}, v{R+r}')
        P = 48
        for i in range(8):
            e(cvt(P + i, ACC0 + 2 * i, ACC0 + 2 * i + 1))
        for u in range(2):
            e(f'v_permlane32_swap_b32 v{P+4*u}, v{P+4*u+2}')
            e(f'v_permlane32_swap_b32 v{P+4*u+1}, v{P+4*u+3}')
        for u in range(2):
            e(f'buffer_store_dwordx4 {vr(P + 4 * u)}, v{vE}, {srd(sOUT)}, 0 offen' + (f' offset:{u * 32}' if u else ''))
        e('s_waitcnt vmcnt(0)')

    def build(self):
        e = self.emit
        stop = self.cfg.get('stop', 'full')
        self.prologue()
        self.gemm_loop()
        e(f'''
        s_cmp_eq_u32 s{S_BR}, 1
        s_cbranch_scc1 L_epiB''')
        self.epi_A()
        e('s_branch L_attn')
        self.epi_B()
        self.attention()
        if stop != 'attn':
            self.finalize_attn()
            if stop != 'fin':
                self.outproj()
        e('s_waitcnt vmcnt(0) lgkmcnt(0)')
        self.stamp(12)
        self.dump_stamps()
        e('''
        s_waitcnt vmcnt(0) lgkmcnt(0)
        L_end:
        s_endpgm
        L_codeend:''')
        body = self.a.finalize(report=self.cfg.get('report', False))
        return body


HEADER = open(os.path.join(os.path.dirname(os.path.abspath(__file__)), 'header.txt')).read()


def make(cfg):
    g = Gen(cfg)
    body = g.build()
    k = NAME + '_kernel'
    src = HEADER + f'''; @launch grid=(256,1,1) block=(512,1,1) lds={LDS_SIZE}
.amdgcn_target "amdgcn-amd-amdhsa--gfx950"
.text
.globl {k}
.p2align 8
.type {k},@function
{k}:
{body}.section .rodata,"a"
.p2align 6
.amdhsa_kernel {k}
  .amdhsa_next_free_vgpr 256
  .amdhsa_next_free_sgpr 96
  .amdhsa_accum_offset 256
  .amdhsa_group_segment_fixed_size 0
  .amdhsa_kernarg_size 88
  .amdhsa_user_sgpr_count 2
  .amdhsa_user_sgpr_kernarg_segment_ptr 1
  .amdhsa_system_sgpr_workgroup_id_x 1
  .amdhsa_float_denorm_mode_32 3
.end_amdhsa_kernel
'''
    return src, g


if __name__ == '__main__':
    import argparse, json
    ap = argparse.ArgumentParser()
    ap.add_argument('-o', default='cdna_kernels/' + NAME + '.s')
    ap.add_argument('--cfg', default='{}')
    args = ap.parse_args()
    cfg = json.loads(args.cfg)
    src, g = make(cfg)
    open(args.o, 'w').write(src)
    print('wrote', args.o, 'instructions', g.a.count, 'nops inserted', len(g.a.inserted))
```

```python
import sys, struct, os
sys.path.insert(0, os.path.dirname(os.path.abspath(__file__)))
from asmlib import Asm

NAME = 'gated_mix__linear_kernel_hedgehog__mha_block__prompt'
L2E = 1.4426950408889634
QS = L2E / (32 ** 0.5)


def f2u(x):
    return struct.unpack('<I', struct.pack('<f', x))[0]


def hx(x):
    return '0x%x' % x


KV_OFF = 0
O_OFF = 8 << 20
KVP_OFF = 16 << 20
ZP_OFF = 18 << 20
FLG_OFF = 19 << 20
F1_OFF = FLG_OFF
F1B_OFF = FLG_OFF + 2048
F2_OFF = FLG_OFF + 4096
F2A_OFF = FLG_OFF + 4096
F2B_OFF = FLG_OFF + 6144
WS_SIZE = 20 << 20
XS = 0
WSL = 49152
WPHI = 147456
GW = 151552
LOGP = GW
LOG = 161792
CNT = 162304
ZT2 = 162368
ZT0 = 162624
KTX = 66560
MRG2 = 126976
MRG2_STRIDE = 4352
XCH2 = 0
QX = 75776
PHI = 16384
KVX = 49152
KVZ = 65536
MRG = 66560
MRG_STRIDE = 9216
ZT = 140288
XCH = 131072
LDS_SIZE = 163840
SPIN = 1 << 16
BIGOFF = 0x7000000
MOFF = 100.0

sX, sW, sWS, sOUT, sDBG, sT = 4, 8, 12, 16, 20, 24
S_W, S_BR, S_HD, S_TT, S_HP, S_MB, S_C, S_HEAD = 48, 49, 50, 51, 52, 53, 54, 55
S_DWL, S_DXL, S_WC, S_XC, S_XN, S_XNN, S_WK, S_U = 56, 57, 58, 59, 60, 61, 62, 63
S_T0, S_T1, S_T2, S_T3, S_T4 = 64, 65, 66, 67, 68
S_L2E, S_QS, S_SPIN, S_RETRY, S_J, S_ROT, S_IT = 69, 70, 71, 72, 73, 74, 75
S_4096 = 76
S_EX = 78
S_OFF, S_X, S_MB3, S_CT, S_FA, S_FB, S_R = 77, 80, 81, 82, 83, 84, 85


def srd(b):
    return 's[%d:%d]' % (b, b + 3)


def vr(b, n=4):
    return 'v[%d:%d]' % (b, b + n - 1)


def mf32(d, A, B, C=None):
    c = vr(d, 16) if C is None else ('0' if C == 'z' else vr(C, 16))
    return 'v_mfma_f32_32x32x16_bf16 %s, %s, %s, %s' % (vr(d, 16), vr(A), vr(B), c)


def mf16(d, A, B, C=None):
    c = vr(d, 4) if C is None else ('0' if C == 'z' else vr(C, 4))
    return 'v_mfma_f32_16x16x32_bf16 %s, %s, %s, %s' % (vr(d, 4), vr(A), vr(B), c)


def cvt(d, a, b):
    return 'v_cvt_pk_bf16_f32 v%d, v%d, v%d' % (d, a, b)


def interleave(mf, other, per=None):
    out = []
    n = len(mf)
    k = len(other)
    pos = 0
    for i, m in enumerate(mf):
        out.append(m)
        end = (k * (i + 1)) // n if per is None else min(k, pos + per[i])
        out += other[pos:end]
        pos = end
    out += other[pos:]
    return out


class VM:
    def __init__(self, emit):
        self.ops = []
        self.emit = emit

    def issue(self, text, tag):
        self.ops.append(tag)
        return text

    def wait_text(self, tag):
        idx = max((i for i, t in enumerate(self.ops) if t == tag), default=-1)
        if idx < 0:
            return []
        n = len(self.ops) - 1 - idx
        assert n <= 63, n
        self.ops = self.ops[idx + 1:]
        return ['s_waitcnt vmcnt(%d)' % n]

    def wait(self, tag):
        self.emit(self.wait_text(tag))

    def clear(self):
        self.ops = []


def spread(body, extra, first=1, last=None):
    if not extra:
        return list(body)
    last = len(body) if last is None else last
    pos = [first + ((last - first) * i) // len(extra) for i in range(len(extra))]
    out = []
    k = 0
    for n, x in enumerate(body):
        while k < len(extra) and pos[k] <= n:
            out += extra[k]; k += 1
        out.append(x)
    while k < len(extra):
        out += extra[k]; k += 1
    return out


class Gen:
    def __init__(self, cfg):
        self.cfg = cfg
        self.a = Asm()
        self.uid = 0
        self.par16 = 0
        self.vm = VM(self.emit)

    def lab(self, s):
        self.uid += 1
        return 'L_%s_%d' % (s, self.uid)

    def emit(self, lines):
        if isinstance(lines, str):
            lines = [lines]
        for chunk in lines:
            for ln in chunk.split('\n'):
                ln = ln.strip()
                if not ln:
                    continue
                if ln.startswith('@wait '):
                    for x in self.vm.wait_text(ln[6:].strip()):
                        self.a(x)
                    continue
                if ln == '@vmclear':
                    self.vm.clear()
                    continue
                tag = 'anon'
                if ';@' in ln:
                    ln, tag = ln.split(';@')
                    ln = ln.rstrip()
                if ln.startswith('buffer_') and tag != 'skip':
                    self.vm.ops.append(tag)
                self.a(ln)

    def stamp(self, i):
        if self.cfg.get('stamps'):
            self.emit(f'''
            s_memrealtime s[94:95]
            s_memtime s[92:93]
            s_waitcnt lgkmcnt(0)
            v_writelane_b32 v252, s94, {i}
            v_writelane_b32 v252, s92, {16 + i}''')

    def tstamp(self, i):
        if self.cfg.get('tstamps'):
            self.emit(f'''
            s_memtime s[92:93]
            s_waitcnt lgkmcnt(0)
            v_writelane_b32 v252, s92, {32 + i}''')

    def tstamp2(self):
        if self.cfg.get('tst2'):
            i = self.t2 = getattr(self, 't2', -1) + 1
            self.emit(f'''
            s_memrealtime s[92:93]
            s_waitcnt lgkmcnt(0)
            v_writelane_b32 v252, s92, {32 + i}''')

    def tstamp3(self):
        if self.cfg.get('tst3'):
            i = self.t3 = getattr(self, 't3', -1) + 1
            self.emit(f'''
            s_memrealtime s[92:93]
            s_waitcnt lgkmcnt(0)
            v_writelane_b32 v252, s92, {32 + i}''')

    def dump_stamps(self):
        if not self.cfg.get('stamps'):
            return
        e = self.emit
        e(f'''
        s_mov_b32 s{sT}, s46
        s_mov_b32 s{sT+1}, s47
        s_mov_b32 s{sT+2}, {hx(64 << 20)}
        s_mov_b32 s{sT+3}, 0x20000
        s_lshl_b32 s{S_T0}, s2, 3
        s_add_u32 s{S_T0}, s{S_T0}, s{S_W}
        s_lshl_b32 s{S_T0}, s{S_T0}, 8
        s_add_u32 s{S_T0}, s{S_T0}, {hx(32 << 20)}
        v_lshlrev_b32 v1, 2, v{self.vL}
        buffer_store_dword v252, v1, {srd(sT)}, s{S_T0} offen''')

    def make_srd(self, b, lo, hi, size):
        self.emit(f'''
        s_mov_b32 s{b}, s{lo}
        s_mov_b32 s{b+1}, s{hi}
        s_mov_b32 s{b+2}, {hx(size)}
        s_mov_b32 s{b+3}, 0x20000''')

    def poll(self, voff, soff_imm, vtmp, srdb=sWS, want=1):
        l0 = self.lab('poll')
        l1 = self.lab('polled')
        self.emit(f'''
        s_mov_b32 s{S_SPIN}, 0
        s_mov_b32 s{S_T4}, {hx(soff_imm)}
        {l0}:
        buffer_load_dword v{vtmp}, v{voff}, {srd(srdb)}, s{S_T4} offen sc1 ;@skip
        s_waitcnt vmcnt(0)
        v_cmp_ne_u32 vcc, {want}, v{vtmp}
        s_cbranch_vccz {l1}
        s_add_u32 s{S_SPIN}, s{S_SPIN}, 1
        s_cmp_ge_u32 s{S_SPIN}, {hx(SPIN)}
        s_cbranch_scc1 {l1}
        s_sleep 1
        s_branch {l0}
        {l1}:''')

    def count_and_flag(self, cnt_idx, last, flag_soff_expr, vt0, vt1):
        l1 = self.lab('noflag')
        self.emit(f'''
        s_mov_b64 exec, 1
        v_mov_b32 v{vt0}, {hx(CNT + 4 * cnt_idx)}
        v_mov_b32 v{vt1}, 1
        ds_add_rtn_u32 v{vt1}, v{vt0}, v{vt1}
        s_waitcnt lgkmcnt(0)
        v_cmp_ne_u32 vcc, {last}, v{vt1}
        s_cbranch_vccnz {l1}''')
        self.emit(flag_soff_expr)
        self.emit(f'''
        v_mov_b32 v{vt1}, 1
        v_mov_b32 v{vt0}, 0
        buffer_store_dword v{vt1}, v{vt0}, {srd(sWS)}, s{S_T0} offen sc1 ;@skip
        {l1}:
        s_mov_b64 exec, -1''')

    Q0, Q1, K0, K1, V0, V1 = 0, 16, 32, 48, 64, 80
    F = [dict(x0=96, x1=100, wq=104, wk=108, wv=112), dict(x0=116, x1=120, wq=124, wk=128, wv=132)]
    GWF, GACC = 136, 140
    vWr, vWa, vXr, vXa, vDW, vDX, vGa = 142, 143, 144, 148, 149, 150, 151
    vL, vL16, vHf = 253, 254, 255
    vT = 155
    vDummy = 164
    vDb = 165

    def prologue(self):
        e = self.emit
        vL, vL16, vHf, vT = self.vL, self.vL16, self.vHf, self.vT
        t0, t1, t2 = vT, vT + 1, vT + 2
        e(f"""
        s_cmp_ge_u32 s2, 256
        s_cbranch_scc1 L_end
        s_load_dwordx4 s[28:31], s[0:1], 0
        s_load_dwordx4 s[32:35], s[0:1], 16
        s_load_dwordx4 s[36:39], s[0:1], 40
        s_load_dwordx4 s[40:43], s[0:1], 56
        s_load_dwordx4 s[44:47], s[0:1], 72
        v_and_b32 v{vL}, 63, v0
        v_lshrrev_b32 v{vT}, 6, v0
        v_lshlrev_b32 v{vL16}, 4, v{vL}
        v_readfirstlane_b32 s{S_W}, v{vT}
        v_lshrrev_b32 v{vHf}, 5, v{vL}
        s_and_b32 s{S_T0}, s2, 7
        s_lshr_b32 s{S_T1}, s2, 3
        s_and_b32 s{S_T2}, s{S_T1}, 1
        s_lshl_b32 s{S_HP}, s{S_T0}, 1
        s_add_u32 s{S_HP}, s{S_HP}, s{S_T2}
        s_xor_b32 s{S_HP}, s{S_HP}, {self.cfg.get('hpx', 0)}
        s_lshr_b32 s{S_MB}, s{S_T1}, 1
        s_lshr_b32 s{S_BR}, s{S_W}, 2
        s_lshr_b32 s{S_C}, s{S_W}, 1
        s_and_b32 s{S_HD}, s{S_C}, 1
        s_and_b32 s{S_TT}, s{S_W}, 1
        s_lshl_b32 s{S_HEAD}, s{S_HP}, 1
        s_add_u32 s{S_HEAD}, s{S_HEAD}, s{S_HD}""")
        e(f"""
        s_lshl_b32 s{S_T0}, s{S_MB}, 7
        s_lshl_b32 s{S_T1}, s{S_W}, 3
        s_add_u32 s{S_T0}, s{S_T0}, s{S_T1}
        v_lshrrev_b32 v{t0}, 3, v{vL}
        v_add_u32 v{t0}, s{S_T0}, v{t0}
        v_lshlrev_b32 v{t0}, 11, v{t0}
        s_lshl_b32 s{S_T1}, s{S_TT}, 2
        v_lshrrev_b32 v{t1}, 4, v{vL}
        v_add_u32 v{t1}, s{S_T1}, v{t1}
        v_xor_b32 v{t1}, v{t1}, v{vL}
        v_and_b32 v{t1}, 7, v{t1}
        v_lshl_add_u32 v{self.vDX}, v{t1}, 4, v{t0}
        s_lshl_b32 s{S_DXL}, s{S_W}, 10
        s_add_u32 s{S_DXL}, s{S_DXL}, {hx(XS)}""")
        e(f"""
        s_and_b32 s{S_T0}, s{S_W}, 3
        s_lshl_b32 s{S_T1}, s{S_T0}, 3
        v_bfe_u32 v{t0}, v{vL}, 2, 3
        v_add_u32 v{t0}, s{S_T1}, v{t0}
        v_mul_u32_u24 v{t0}, 6144, v{t0}
        v_lshl_add_u32 v{t0}, v{vHf}, 6, v{t0}
        v_and_b32 v{t1}, 3, v{vL}
        v_lshl_add_u32 v{t0}, v{t1}, 4, v{t0}
        s_lshl_b32 s{S_T1}, s{S_HP}, 7
        v_add_u32 v{self.vDW}, s{S_T1}, v{t0}
        s_lshl_b32 s{S_T0}, s{S_T0}, 10
        s_mul_i32 s{S_T1}, s{S_BR}, 12288
        s_add_u32 s{S_DWL}, s{S_T0}, s{S_T1}
        s_add_u32 s{S_DWL}, s{S_DWL}, {hx(WSL)}
        v_mov_b32 v156, 0
        v_mov_b32 v157, 0
        v_mov_b32 v158, 0
        v_mov_b32 v159, 0
        s_waitcnt lgkmcnt(0)""")
        self.stamp(0)
        self.make_srd(sX, 28, 29, 4 << 20)
        e(f"""
        s_cmp_eq_u32 s{S_BR}, 1
        s_cselect_b32 s{sW}, s36, s30
        s_cselect_b32 s{sW+1}, s37, s31
        s_mov_b32 s{sW+2}, {hx(6 << 20)}
        s_mov_b32 s{sW+3}, 0x20000""")
        self.make_srd(sWS, 46, 47, WS_SIZE)
        lc = self.lab('noclear')
        e(f"""
        s_or_b32 s{S_T0}, s2, s{S_W}
        s_cmp_lg_u32 s{S_T0}, 0
        s_cbranch_scc1 {lc}""")
        for i in range(8):
            e(f"""
            s_mov_b32 s{S_T1}, {hx(FLG_OFF + i * 1024)}
            buffer_store_dwordx4 v[156:159], v{vL16}, {srd(sWS)}, s{S_T1} offen sc1 ;@skip""")
        e(f'{lc}:')
        e('@vmclear')
        self.dma_x_const(0, 0)
        self.dma_w_const(0)
        self.dma_x_const(0, 1)
        e(f"""
        s_cmp_eq_u32 s{S_BR}, 1
        s_cselect_b32 s{sT}, s40, s32
        s_cselect_b32 s{sT+1}, s41, s33
        s_movk_i32 s{sT+2}, 2048
        s_cselect_b32 s{sT+2}, s{sT+2}, 0x10000
        s_mov_b32 s{sT+3}, 0x20000
        s_and_b32 s{S_T0}, s{S_W}, 3
        s_lshl_b32 s{S_T0}, s{S_T0}, 10
        s_lshl_b32 s{S_T1}, s{S_HP}, 12
        s_add_u32 s{S_T1}, s{S_T1}, s{S_T0}
        s_add_u32 s{S_T0}, s{S_T0}, {hx(WPHI)}
        s_lshl_b32 s{S_T2}, s{S_TT}, 10
        s_add_u32 s{S_T3}, s{S_T2}, {hx(GW)}
        s_cmp_eq_u32 s{S_BR}, 1
        s_cselect_b32 s{S_T1}, s{S_T2}, s{S_T1}
        s_cselect_b32 m0, s{S_T3}, s{S_T0}
        s_nop 0
        buffer_load_dwordx4 v{vL16}, {srd(sT)}, s{S_T1} offen lds ;@first""")
        for sp in range(-3, 0):
            self.dma_w_const(sp + 4)
            u = (sp + 5) >> 1
            h = (sp + 1) & 1
            self.dma_x_const(u, h)
        if self.cfg.get('code_prefetch', True):
            e(f"""
            s_getpc_b64 s[24:25]
            L_pcbase:
            s_mov_b32 s26, L_codeend-L_pcbase
            s_mov_b32 s27, 0x20000
            v_lshlrev_b32 v{vT+1}, 7, v0
            buffer_load_dword v{self.vDummy}, v{vT+1}, {srd(sT)}, 0 offen""")
        if self.cfg.get('pf', 0):
            self.input_prefetch()
        e(f"""
        v_lshlrev_b32 v{vT+1}, 2, v0
        v_add_u32 v{vT+1}, {hx(LOG)}, v{vT+1}
        ds_write_b32 v{vT+1}, v158
        s_mov_b32 s{S_L2E}, {hx(f2u(L2E))}
        s_mov_b32 s{S_QS}, {hx(f2u(QS))}
        s_mov_b32 s{S_4096}, 4096""")
        e(f"""
        v_bfe_u32 v{t0}, v{vL}, 2, 2
        v_lshlrev_b32 v{t0}, 6, v{t0}
        v_bfe_u32 v{t1}, v{vL}, 4, 1
        v_lshl_add_u32 v{t0}, v{t1}, 5, v{t0}
        v_and_b32 v{t1}, 3, v{vL}
        v_lshl_add_u32 v{t0}, v{t1}, 3, v{t0}
        v_lshl_add_u32 v{self.vWr}, v{vHf}, 10, v{t0}
        s_mul_i32 s{S_T0}, s{S_BR}, 12288
        s_lshl_b32 s{S_T1}, s{S_HD}, 9
        s_add_u32 s{S_T0}, s{S_T0}, s{S_T1}
        s_add_u32 s{S_T0}, s{S_T0}, {hx(WSL)}
        v_add_u32 v{self.vWr}, s{S_T0}, v{self.vWr}""")
        e(f"""
        v_and_b32 v{t0}, 31, v{vL}
        s_lshl_b32 s{S_T0}, s{S_TT}, 6
        v_add_u32 v{t0}, s{S_T0}, v{t0}
        v_lshlrev_b32 v{t0}, 7, v{t0}
        v_bfe_u32 v{t1}, v{vL}, 1, 3
        v_xor_b32 v{t1}, v{t1}, v{vHf}""")
        for sg in range(4):
            e(f"""
            v_xor_b32 v{t2}, {2*sg}, v{t1}
            v_lshl_add_u32 v{self.vXr+sg}, v{t2}, 4, v{t0}""")
        e(f"""
        s_lshl_b32 s{S_T0}, s{S_C}, 5
        s_add_u32 s{S_T0}, s{S_T0}, {hx(GW)}
        v_lshlrev_b32 v{t0}, 4, v{vHf}
        v_add_u32 v{self.vGa}, s{S_T0}, v{t0}
        v_mov_b32 v{self.GACC}, 0
        v_mov_b32 v{self.GACC+1}, 0""")
        for r in range(0, 96):
            e(f'v_mov_b32 v{r}, 0')
        self.make_srd(sOUT, 42, 43, 4 << 20)
        self.make_srd(sDBG, 44, 45, 256)
        e(f"""
        s_mov_b32 s{S_WC}, 0
        s_mov_b32 s{S_XC}, 0
        s_mov_b32 s{S_XN}, 16384
        s_mov_b32 s{S_XNN}, 32768
        s_mov_b32 s{S_WK}, {hx(4 * 196608)}
        s_mov_b32 s{S_U}, 0
        v_mov_b32 v{self.vWa}, v{self.vWr}
        v_mov_b32 v{self.vXa}, v{self.vXr}
        @wait first
        s_waitcnt lgkmcnt(0)
        s_barrier""")
        self.stamp(1)
        lc = self.lab('nopub')
        e(f"""
        s_or_b32 s{S_T0}, s2, s{S_W}
        s_cmp_lg_u32 s{S_T0}, 0
        s_cbranch_scc1 {lc}
        v_mov_b32 v{t0}, 1
        buffer_store_dword v{t0}, off, {srd(sDBG)}, 0 sc1 ;@skip
        {lc}:""")
        F0 = self.F[0]
        e(self.frag_reads(F0, 0))
        e(f'ds_read_b128 {vr(self.GWF)}, v{self.vGa}')
        e('s_waitcnt lgkmcnt(0)')

    def input_prefetch(self):
        e = self.emit
        t0 = self.vT
        mode = self.cfg.get('pf')
        e(f'''
        s_lshl_b32 s{S_T0}, s2, 3
        s_add_u32 s{S_T0}, s{S_T0}, s{S_W}''')
        if mode == 2:
            e(f'''
            s_lshl_b32 s{S_T0}, s{S_W}, 8
            s_add_u32 s{S_T0}, s{S_T0}, s2''')
        e(f'''
        s_mov_b32 s{sT}, s28
        s_mov_b32 s{sT+1}, s29
        s_mov_b32 s{sT+2}, {hx(4 << 20)}
        s_cmp_ge_u32 s{S_T0}, 512
        s_cselect_b32 s{sT}, s30, s{sT}
        s_cselect_b32 s{sT+1}, s31, s{sT+1}
        s_cselect_b32 s{sT+2}, {hx(6 << 20)}, s{sT+2}
        s_cselect_b32 s{S_T1}, 512, 0
        s_cmp_ge_u32 s{S_T0}, 1280
        s_cselect_b32 s{sT}, s36, s{sT}
        s_cselect_b32 s{sT+1}, s37, s{sT+1}
        s_cselect_b32 s{S_T1}, 1280, s{S_T1}
        s_sub_u32 s{S_T0}, s{S_T0}, s{S_T1}
        s_lshl_b32 s{S_T0}, s{S_T0}, 13
        v_lshlrev_b32 v{t0}, 7, v{self.vL}
        buffer_load_dword v{self.vDummy}, v{t0}, {srd(sT)}, s{S_T0} offen''')

    def dma_x_const(self, u, h):
        self.emit(f'''
        s_add_u32 m0, s{S_DXL}, {hx((u % 3) * 16384 + h * 8192)}
        s_mov_b32 s{S_T0}, {hx(h * 131072 + u * 128)}
        buffer_load_dwordx4 v{self.vDX}, {srd(sX)}, s{S_T0} offen lds''')

    def dma_w_const(self, st):
        for i in range(3):
            self.emit(f'''
            s_add_u32 m0, s{S_DWL}, {hx((st % 4) * 24576 + i * 4096)}
            s_mov_b32 s{S_T0}, {hx(st * 196608 + i * 2048)}
            buffer_load_dwordx4 v{self.vDW}, {srd(sW)}, s{S_T0} offen lds''')

    def frag_reads(self, F, step):
        o = step * 2048
        L = [f'ds_read_b128 {vr(F["x0"])}, v{self.vXa}',
             f'ds_read_b64_tr_b16 {vr(F["wq"], 2)}, v{self.vWa} offset:{o}',
             f'ds_read_b64_tr_b16 {vr(F["wq"] + 2, 2)}, v{self.vWa} offset:{o + 256}',
             f'ds_read_b128 {vr(F["x1"])}, v{self.vXa} offset:4096',
             f'ds_read_b64_tr_b16 {vr(F["wk"], 2)}, v{self.vWa} offset:{o + 4096}',
             f'ds_read_b64_tr_b16 {vr(F["wk"] + 2, 2)}, v{self.vWa} offset:{o + 4096 + 256}',
             f'ds_read_b64_tr_b16 {vr(F["wv"], 2)}, v{self.vWa} offset:{o + 8192}',
             f'ds_read_b64_tr_b16 {vr(F["wv"] + 2, 2)}, v{self.vWa} offset:{o + 8192 + 256}']
        return L

    def gemm_mfmas(self, F):
        if 'mf16' in self.cfg.get('exp', ''):
            pairs = [(self.Q0, F['wq'], F['x0']), (self.Q1, F['wq'], F['x1']), (self.K0, F['wk'], F['x0']),
                     (self.K1, F['wk'], F['x1']), (self.V0, F['x0'], F['wv']), (self.V1, F['x1'], F['wv'])]
            L = []
            for i, (d, A, B) in enumerate(pairs):
                d2, A2, B2 = pairs[(i + 3) % 6]
                o = 4 * self.par16
                L.append(mf16(d + o, A, B) + '\n' + mf16(d2 + 8 + o, A2, B2))
            self.par16 ^= 1
            return L
        return [mf32(self.Q0, F['wq'], F['x0']), mf32(self.Q1, F['wq'], F['x1']),
                mf32(self.K0, F['wk'], F['x0']), mf32(self.K1, F['wk'], F['x1']),
                mf32(self.V0, F['x0'], F['wv']), mf32(self.V1, F['x1'], F['wv'])]

    def gate_dots(self, F, sigma):
        l = self.lab('nogate')
        L = [f's_cmp_eq_u32 s{S_C}, {sigma}', f's_cbranch_scc0 {l}']
        for i in range(4):
            L.append(f'v_dot2_f32_bf16 v{self.GACC}, v{F["x0"]+i}, v{self.GWF+i}, v{self.GACC}')
            L.append(f'v_dot2_f32_bf16 v{self.GACC+1}, v{F["x1"]+i}, v{self.GWF+i}, v{self.GACC+1}')
        L.append(f'{l}:')
        return L

    def gemm_step(self, sigma, wdma=True, xdma=True, wait=8, last=False, extra=()):
        e = self.emit
        cur = self.F[sigma & 1]
        nxt = self.F[(sigma + 1) & 1]
        mf = self.gemm_mfmas(cur)
        second = sigma & 1
        pre = []
        if second and not last:
            pre += [f's_add_u32 s{S_T1}, s{S_WC}, 24576',
                    f's_cmp_eq_u32 s{S_T1}, 98304',
                    f's_cselect_b32 s{S_T1}, 0, s{S_T1}',
                    f'v_add_u32 v{self.vWa}, s{S_T1}, v{self.vWr}']
        xs = S_XN if sigma == 3 else S_XC
        if not last:
            pre += [f'v_add_u32 v{self.vXa}, s{xs}, v{self.vXr + ((sigma + 1) & 3)}']
        reads = self.frag_reads(nxt, 0 if second else 1) if not last else []
        dw, dx = [], []
        if second and wdma:
            dw += [f's_add_u32 s{S_T2}, s{S_DWL}, s{S_WC}']
            for i in range(3):
                dw += [f's_add_u32 m0, s{S_T2}, {i * 4096}',
                       f's_add_u32 s{S_T0}, s{S_WK}, {i * 2048}',
                       f'buffer_load_dwordx4 v{self.vDW}, {srd(sW)}, s{S_T0} offen lds']
        if second and xdma:
            if sigma == 1:
                dx += [f's_add_u32 s{S_T2}, s{S_DXL}, s{S_XNN}',
                       f's_add_u32 m0, s{S_T2}, 8192',
                       f's_lshl_b32 s{S_T0}, s{S_U}, 7',
                       f's_add_u32 s{S_T0}, s{S_T0}, {hx(131072 + 256)}']
            else:
                dx += [f's_add_u32 m0, s{S_DXL}, s{S_XC}',
                       f's_lshl_b32 s{S_T0}, s{S_U}, 7',
                       f's_add_u32 s{S_T0}, s{S_T0}, 384']
            dx += [f'buffer_load_dwordx4 v{self.vDX}, {srd(sX)}, s{S_T0} offen lds']
        post = []
        if second and not last:
            if wdma:
                post.append(f's_add_u32 s{S_WK}, s{S_WK}, {hx(196608)}')
            post.append(f's_mov_b32 s{S_WC}, s{S_T1}')
        e(pre)
        e(mf[0]); e(reads[0:3])
        e(mf[1]); e(reads[3:6])
        e(mf[2]); e(reads[6:8])
        self.emit(self.gate_dots(cur, sigma))
        if sigma == 3 and not last:
            e(f'v_add_u32 v{self.vGa}, 128, v{self.vGa}')
            e(f'ds_read_b128 {vr(self.GWF)}, v{self.vGa}')
        if second:
            e(mf[3]); e(dw[:7])
            e(mf[4]); e(dw[7:] + dx + post + list(extra))
            e(mf[5])
            if not last:
                e('s_waitcnt lgkmcnt(0)')
        else:
            e(mf[3]); e(mf[4]); e(mf[5])
            if wait is None:
                e('s_waitcnt lgkmcnt(0)')
            else:
                e(f's_waitcnt vmcnt({wait}) lgkmcnt(0)')
                e('s_barrier')

    def gemm_rotate(self):
        self.emit(f'''
        s_mov_b32 s{S_T0}, s{S_XC}
        s_mov_b32 s{S_XC}, s{S_XN}
        s_mov_b32 s{S_XN}, s{S_XNN}
        s_mov_b32 s{S_XNN}, s{S_T0}
        s_add_u32 s{S_U}, s{S_U}, 1''')

    def gemm_loop(self):
        e = self.emit
        e('L_gemm:')
        for sg in range(4):
            self.gemm_step(sg)
        self.gemm_rotate()
        e(f'''
        s_cmp_lt_u32 s{S_U}, 13
        s_cbranch_scc1 L_gemm''')
        self.gemm_step(0); self.gemm_step(1); self.gemm_step(2); self.gemm_step(3, xdma=False)
        self.gemm_rotate()
        self.gemm_step(0, wait=7)
        l0, l1 = self.lab('dbgw'), self.lab('dbgx')
        self.gemm_step(1, wdma=False, xdma=False,
                       extra=[f's_cmp_eq_u32 s{S_W}, 4', f's_cbranch_scc1 {l0}',
                              f'buffer_load_dword v{self.vDb}, off, {srd(sX)}, 0',
                              f's_branch {l1}', f'{l0}:',
                              f'buffer_load_dword v{self.vDb}, off, {srd(sDBG)}, 0 sc1', f'{l1}:'])
        self.gemm_step(2, wait=4)
        self.gemm_step(3, wdma=False, xdma=False)
        self.gemm_rotate()
        self.gemm_step(0, wait=1)
        self.gemm_step(1, wdma=False, xdma=False)
        self.gemm_step(2, wait=None)
        self.gemm_step(3, wdma=False, xdma=False, last=True)
        t0 = self.vT
        self.stamp(2)
        e(f'''
        v_permlane32_swap_b32 v{self.GACC}, v{self.GACC+1}
        s_lshl_b32 s{S_T0}, s{S_TT}, 8
        s_lshl_b32 s{S_T1}, s{S_C}, 9
        s_add_u32 s{S_T0}, s{S_T0}, s{S_T1}
        s_add_u32 s{S_T0}, s{S_T0}, {hx(LOGP)}
        v_lshl_add_u32 v{t0}, v{self.vL}, 2, s{S_T0}
        v_add_f32 v{self.GACC}, v{self.GACC}, v{self.GACC+1}
        ds_write_b32 v{t0}, v{self.GACC}''')
        self.stamp(3)

    Sa, Sb, Ca, Cb, Oa, Ob = 0, 16, 32, 48, 64, 80
    QF = 96
    Pa, Pb = 112, 120
    la, lb = 128, 132
    ONES = 136
    KVB = [140, 156, 172, 188]
    vKV = 204
    vMa, vMb = 205, 206
    vA = 207

    def epi_B(self):
        e = self.emit
        t0 = self.vT
        e('L_epiB:')
        e(f'''
        s_lshl_b32 s{S_T0}, s{S_HEAD}, 18
        s_lshl_b32 s{S_T1}, s{S_MB}, 14
        s_add_u32 s{S_T0}, s{S_T0}, s{S_T1}
        s_lshl_b32 s{S_T1}, s{S_TT}, 13
        s_add_u32 s{S_T0}, s{S_T0}, s{S_T1}
        v_add_u32 v{t0}, s{S_T0}, v{self.vL16}''')
        kf, vf = 112, 128
        for tau, acc in ((0, self.K0), (1, self.K1)):
            for i in range(8):
                e(cvt(kf + tau * 8 + i, acc + 2 * i, acc + 2 * i + 1))
            so = '0' if tau == 0 else f's{S_4096}'
            e(f'buffer_store_dwordx4 {vr(kf + tau * 8)}, v{t0}, {srd(sWS)}, {so} offen sc1')
            e(f'buffer_store_dwordx4 {vr(kf + tau * 8 + 4)}, v{t0}, {srd(sWS)}, {so} offen offset:1024 sc1')
        for tau, acc in ((0, self.V0), (1, self.V1)):
            for i in range(8):
                e(cvt(vf + tau * 8 + i, acc + 2 * i, acc + 2 * i + 1))
            so = '0' if tau == 0 else f's{S_4096}'
            e(f'buffer_store_dwordx4 {vr(vf + tau * 8)}, v{t0}, {srd(sWS)}, {so} offen offset:2048 sc1')
            e(f'buffer_store_dwordx4 {vr(vf + tau * 8 + 4)}, v{t0}, {srd(sWS)}, {so} offen offset:3072 sc1')
        e(f'''
        s_lshl_b32 s{S_T0}, s{S_HD}, 1
        s_add_u32 s{S_T0}, s{S_T0}, s{S_TT}
        s_lshl_b32 s{S_T0}, s{S_T0}, 12
        s_add_u32 s{S_T0}, s{S_T0}, {QX}
        v_add_u32 v{t0+1}, s{S_T0}, v{self.vL16}''')
        for tau, acc in ((1, self.Q1), (0, self.Q0)):
            dst = self.QF + (0 if tau == 1 else 8)
            for r in range(16):
                e(f'v_mul_f32 v{acc+r}, s{S_QS}, v{acc+r}')
            for i in range(8):
                e(cvt(dst + i, acc + 2 * i, acc + 2 * i + 1))
            e(f'ds_write_b128 v{t0+1}, {vr(dst)} offset:{tau * 2048}')
            e(f'ds_write_b128 v{t0+1}, {vr(dst + 4)} offset:{tau * 2048 + 1024}')
        e('s_waitcnt vmcnt(0)')
        l = self.lab('dbgok')
        e(f'''
        s_cmp_lg_u32 s{S_W}, 4
        s_cbranch_scc1 {l}
        v_cmp_ne_u32 vcc, 1, v{self.vDb}
        s_cbranch_vccz {l}
        v_mov_b32 v{t0+2}, 0''')
        self.poll(t0 + 2, 0, self.vDb, srdb=sDBG)
        e(f'{l}:')
        self.count_and_flag(0, 3, f'''
        s_lshl_b32 s{S_T0}, s{S_HP}, 7
        s_lshl_b32 s{S_T1}, s{S_MB}, 2
        s_add_u32 s{S_T0}, s{S_T0}, s{S_T1}
        s_add_u32 s{S_T0}, s{S_T0}, {hx(F1_OFF)}''', t0 + 2, t0 + 3)
        e('''
        s_waitcnt lgkmcnt(0)
        s_barrier
        s_branch L_attn''')

    def make_ident(self, I0, t):
        e = self.emit
        e(f'''
        v_and_b32 v{t}, 31, v{self.vL}
        v_lshlrev_b32 v{t+1}, 2, v{self.vHf}
        v_sub_u32 v{t}, v{t}, v{t+1}
        v_and_b32 v{t+1}, 1, v{t}
        v_lshlrev_b32 v{t+1}, 4, v{t+1}
        v_mov_b32 v{t+2}, 0x3f80
        v_lshlrev_b32 v{t+1}, v{t+1}, v{t+2}
        v_ashrrev_i32 v{t}, 1, v{t}''')
        for s in range(2):
            for i in range(4):
                key = 8 * s + (i & 1) + 4 * (i >> 1)
                e(f'v_cmp_eq_u32 vcc, {key}, v{t}')
                e(f'v_cndmask_b32 v{I0 + 4 * s + i}, 0, v{t+1}, vcc')

    def make_ones16(self, d, t):
        e = self.emit
        e(f'''
        v_lshrrev_b32 v{t}, 2, v{self.vL}
        v_lshrrev_b32 v{t+1}, 4, v{self.vL}
        v_xor_b32 v{t}, v{t}, v{t+1}
        v_and_b32 v{t}, 1, v{t}
        v_mov_b32 v{t+1}, 0x3f803f80
        v_cmp_eq_u32 vcc, 0, v{t}''')
        for i in range(4):
            e(f'v_cndmask_b32 v{d+i}, 0, v{t+1}, vcc')

    def dual_softmax(self, X, E, P1, P2, t):
        e = self.emit
        mx, nm, u, w = t, t + 1, t + 2, t + 3
        e(f'v_max3_f32 v{mx}, v{X}, v{X+1}, v{X+2}')
        e(f'v_max3_f32 v{nm}, -v{X}, -v{X+1}, -v{X+2}')
        for i in range(3, 15, 2):
            e(f'v_max3_f32 v{mx}, v{mx}, v{X+i}, v{X+i+1}')
            e(f'v_max3_f32 v{nm}, v{nm}, -v{X+i}, -v{X+i+1}')
        e(f'v_max_f32 v{mx}, v{mx}, v{X+15}')
        e(f'v_max_f32 v{nm}, v{nm}, -v{X+15}'.replace('v_max_f32', 'v_max_f32_e64'))
        e(f'''
        v_permlane32_swap_b32 v{mx}, v{nm}
        v_max_f32 v{mx}, v{mx}, v{nm}
        v_mov_b32 v{nm}, v{mx}
        v_permlane32_swap_b32 v{mx}, v{nm}
        v_mul_f32 v{mx}, s{S_L2E}, v{mx}
        v_mul_f32 v{nm}, s{S_L2E}, v{nm}''')
        for r in range(16):
            e(f'v_fma_f32 v{E+r}, v{X+r}, s{S_L2E}, -v{mx}')
            e(f'v_fma_f32 v{X+r}, v{X+r}, -s{S_L2E}, -v{nm}')
        for r in range(16):
            e(f'v_exp_f32 v{E+r}, v{E+r}')
            e(f'v_exp_f32 v{X+r}, v{X+r}')
        e(f'v_add_f32 v{u}, v{E}, v{E+1}')
        e(f'v_add_f32 v{w}, v{X}, v{X+1}')
        for r in range(2, 16):
            e(f'v_add_f32 v{u}, v{u}, v{E+r}')
            e(f'v_add_f32 v{w}, v{w}, v{X+r}')
        e(f'''
        v_permlane32_swap_b32 v{u}, v{w}
        v_add_f32 v{u}, v{u}, v{w}
        v_mov_b32 v{w}, v{u}
        v_permlane32_swap_b32 v{u}, v{w}
        v_rcp_f32 v{u}, v{u}
        v_rcp_f32 v{w}, v{w}''')
        for r in range(16):
            e(f'v_mul_f32 v{E+r}, v{E+r}, v{u}')
            e(f'v_mul_f32 v{X+r}, v{X+r}, v{w}')
        for i in range(8):
            e(cvt(P1 + i, E + 2 * i, E + 2 * i + 1))
            e(cvt(P2 + i, X + 2 * i, X + 2 * i + 1))

    def epi_A(self):
        e = self.emit
        t0 = self.vT
        qf, kf, vf, wf, I0, ones = 96, 112, 128, 144, 166, 174
        zf, zs = 178, 182
        E, P1, P2, T1, T2, tt = 186, 202, 210, 218, 234, 159
        kv1, kv2 = self.V0, self.V1
        e('L_epiA:')
        e(f'''
        v_bfe_u32 v{t0}, v{self.vL}, 2, 2
        v_lshlrev_b32 v{t0}, 6, v{t0}
        v_bfe_u32 v{t0+1}, v{self.vL}, 4, 1
        v_lshl_add_u32 v{t0}, v{t0+1}, 5, v{t0}
        v_and_b32 v{t0+1}, 3, v{self.vL}
        v_lshl_add_u32 v{t0}, v{t0+1}, 3, v{t0}
        v_lshl_add_u32 v{t0}, v{self.vHf}, 8, v{t0}
        s_lshl_b32 s{S_T0}, s{S_HD}, 11
        s_add_u32 s{S_T0}, s{S_T0}, {hx(WPHI)}
        v_add_u32 v{t0}, s{S_T0}, v{t0}''')
        for s in range(2):
            e(f'ds_read_b64_tr_b16 {vr(wf + 4 * s, 2)}, v{t0} offset:{s * 1024}')
            e(f'ds_read_b64_tr_b16 {vr(wf + 4 * s + 2, 2)}, v{t0} offset:{s * 1024 + 512}')
        for base, accs in ((kf, (self.K0, self.K1)), (vf, (self.V0, self.V1)), (qf, (self.Q0, self.Q1))):
            for tau in range(2):
                for i in range(8):
                    e(cvt(base + tau * 8 + i, accs[tau] + 2 * i, accs[tau] + 2 * i + 1))
        self.make_ident(I0, tt)
        self.make_ones16(ones, tt)
        e(f'''
        s_mul_i32 s{S_T0}, s{S_TT}, 0x80008000
        s_waitcnt lgkmcnt(0)''')
        for i in range(8):
            e(f'v_xor_b32 v{wf+i}, s{S_T0}, v{wf+i}')
        for acc, fr in ((self.K0, kf), (self.K1, kf + 8), (self.Q0, qf), (self.Q1, qf + 8)):
            e(mf32(acc, wf, fr, 'z'))
            e(mf32(acc, wf + 4, fr + 4))
        for tau, acc in ((0, self.K0), (1, self.K1)):
            self.dual_softmax(acc, E, P1, P2, tt)
            e(mf32(T1, P1, I0, 'z')); e(mf32(T2, P2, I0, 'z'))
            e(mf32(T1, P1 + 4, I0 + 4)); e(mf32(T2, P2 + 4, I0 + 4))
            for i in range(8):
                e(cvt(P1 + i, T1 + 2 * i, T1 + 2 * i + 1))
            for i in range(8):
                e(cvt(P2 + i, T2 + 2 * i, T2 + 2 * i + 1))
            z = 'z' if tau == 0 else None
            e(mf32(kv1, vf + tau * 8, P1, z)); e(mf32(kv2, vf + tau * 8, P2, z))
            e(mf32(kv1, vf + tau * 8 + 4, P1 + 4)); e(mf32(kv2, vf + tau * 8 + 4, P2 + 4))
            e(mf16(zf, ones, P1, z)); e(mf16(zs, ones, P2, z))
            e(mf16(zf, ones, P1 + 4)); e(mf16(zs, ones, P2 + 4))
        e(f'''
        s_lshl_b32 s{S_T0}, s{S_HD}, 1
        s_xor_b32 s{S_T1}, s{S_TT}, 1
        s_add_u32 s{S_T0}, s{S_T0}, s{S_T1}
        s_lshl_b32 s{S_T1}, s{S_T0}, 12
        s_add_u32 s{S_T1}, s{S_T1}, {hx(KVX)}
        v_add_u32 v{t0}, s{S_T1}, v{self.vL16}
        s_lshl_b32 s{S_T0}, s{S_T0}, 8
        s_add_u32 s{S_T0}, s{S_T0}, {hx(KVZ)}
        v_lshlrev_b32 v{t0+1}, 2, v{self.vL}
        v_add_u32 v{t0+1}, s{S_T0}, v{t0+1}''')
        for q in range(4):
            e(f'ds_write_b128 v{t0}, {vr(kv2 + 4 * q)} offset:{q * 1024}')
        e(f'ds_write_b32 v{t0+1}, v{zs}')
        e(f'''
        s_lshl_b32 s{S_T0}, s{S_HD}, 1
        s_add_u32 s{S_T0}, s{S_T0}, s{S_TT}
        s_lshl_b32 s{S_T0}, s{S_T0}, 13
        s_add_u32 s{S_T0}, s{S_T0}, {hx(PHI)}
        s_lshl_b32 s{S_T1}, s{S_TT}, 11
        s_add_u32 s{S_T1}, s{S_T1}, s{S_T0}
        v_add_u32 v{t0+2}, s{S_T1}, v{self.vL16}
        v_xor_b32 v{t0+3}, 2048, v{t0+2}''')
        for tau, acc in ((0, self.Q0), (1, self.Q1)):
            self.dual_softmax(acc, E, P1, P2, tt)
            for s in range(2):
                e(f'ds_write_b128 v{t0+2}, {vr(P1 + 4 * s)} offset:{tau * 4096 + s * 1024}')
                e(f'ds_write_b128 v{t0+3}, {vr(P2 + 4 * s)} offset:{tau * 4096 + s * 1024}')
        e('''
        s_waitcnt lgkmcnt(0)
        s_barrier''')
        e(f'''
        s_lshl_b32 s{S_T0}, s{S_HD}, 1
        s_add_u32 s{S_T0}, s{S_T0}, s{S_TT}
        s_lshl_b32 s{S_T1}, s{S_T0}, 12
        s_add_u32 s{S_T1}, s{S_T1}, {hx(KVX)}
        v_add_u32 v{t0}, s{S_T1}, v{self.vL16}
        s_lshl_b32 s{S_T1}, s{S_T0}, 8
        s_add_u32 s{S_T1}, s{S_T1}, {hx(KVZ)}
        v_lshlrev_b32 v{t0+1}, 2, v{self.vL}
        v_add_u32 v{t0+1}, s{S_T1}, v{t0+1}
        s_lshl_b32 s{S_T1}, s{S_T0}, 12
        s_add_u32 s{S_T1}, s{S_T1}, {QX}
        v_add_u32 v{t0+2}, s{S_T1}, v{self.vL16}''')
        for q in range(4):
            e(f'ds_read_b128 {vr(T1 + 4 * q)}, v{t0} offset:{q * 1024}')
        e(f'ds_read_b32 v{zs}, v{t0+1}')
        for q in range(4):
            e(f'ds_read_b128 {vr(self.QF + 4 * q)}, v{t0+2} offset:{q * 1024}')
        e('s_waitcnt lgkmcnt(4)')
        for r in range(16):
            e(f'v_add_f32 v{kv1+r}, v{kv1+r}, v{T1+r}')
        e(f'v_add_f32 v{zf}, v{zf}, v{zs}')
        for i in range(8):
            e(cvt(P1 + i, kv1 + 2 * i, kv1 + 2 * i + 1))
        e(f'''
        s_lshl_b32 s{S_T1}, s{S_HP}, 4
        s_add_u32 s{S_T1}, s{S_T1}, s{S_MB}
        s_lshl_b32 s{S_T1}, s{S_T1}, 2
        s_add_u32 s{S_T1}, s{S_T1}, s{S_T0}
        s_lshl_b32 s{S_T1}, s{S_T1}, 11
        s_add_u32 s{S_T1}, s{S_T1}, {hx(KVP_OFF)}
        buffer_store_dwordx4 {vr(P1)}, v{self.vL16}, {srd(sWS)}, s{S_T1} offen sc1
        buffer_store_dwordx4 {vr(P1 + 4)}, v{self.vL16}, {srd(sWS)}, s{S_T1} offen offset:1024 sc1
        s_lshl_b32 s{S_T1}, s{S_HP}, 2
        s_add_u32 s{S_T1}, s{S_T1}, s{S_T0}
        s_lshl_b32 s{S_T1}, s{S_T1}, 4
        s_add_u32 s{S_T1}, s{S_T1}, s{S_MB}
        s_lshl_b32 s{S_T1}, s{S_T1}, 7
        s_add_u32 s{S_T1}, s{S_T1}, {hx(ZP_OFF)}
        v_lshlrev_b32 v{t0}, 2, v{self.vL}
        s_mov_b32 exec_hi, 0
        buffer_store_dword v{zf}, v{t0}, {srd(sWS)}, s{S_T1} offen sc1
        s_mov_b64 exec, -1
        s_waitcnt lgkmcnt(0)''')

    def kv_loads(self, slot, so):
        b = self.KVB[slot]
        return [f'buffer_load_dwordx4 {vr(b + 4 * q)}, v{self.vKV}, {srd(sWS)}, {so} offen offset:{q * 1024} sc1'
                .replace(' offset:0 ', ' ') for q in range(4)]

    def tile_off(self, dst, j_expr_sreg):
        return [f's_add_u32 s{dst}, s{j_expr_sreg}, s{S_ROT}',
                f's_and_b32 s{dst}, s{dst}, 31',
                f's_lshl_b32 s{dst}, s{dst}, 12',
                f's_cmp_ge_u32 s{j_expr_sreg}, 32',
                f's_cselect_b32 s{dst}, {hx(BIGOFF)}, s{dst}']

    def first_loads(self):
        e = self.emit
        for j in range(3):
            e(f's_mov_b32 s{S_J}, {j}')
            e(self.tile_off(S_T0, S_J))
            e(self.kv_loads(j, f's{S_T0}'))
        e(f's_mov_b32 s{S_J}, 3')

    def exp_block(self, S, P):
        L = []
        for q in range(4):
            for j in range(4):
                L.append(f'v_exp_f32 v{S + 4 * q + j}, v{S + 4 * q + j}')
            L.append(cvt(P + 2 * q, S + 4 * q, S + 4 * q + 1))
            L.append(cvt(P + 2 * q + 1, S + 4 * q + 2, S + 4 * q + 3))
        return L

    def wave_rowmax(self, S, dst, t):
        e = self.emit
        e(f'v_max3_f32 v{dst}, v{S}, v{S+1}, v{S+2}')
        for i in range(3, 15, 2):
            e(f'v_max3_f32 v{dst}, v{dst}, v{S+i}, v{S+i+1}')
        e(f'v_max_f32 v{dst}, v{dst}, v{S+15}')

    def cross_half_max(self, d, t):
        self.emit(f'''
        v_mov_b32 v{t}, v{d}
        v_permlane32_swap_b32 v{d}, v{t}
        v_max_f32 v{d}, v{d}, v{t}''')

    def attention(self):
        e = self.emit
        Sa, Sb, Ca, Cb, Oa, Ob = self.Sa, self.Sb, self.Ca, self.Cb, self.Oa, self.Ob
        Qa, Qb = self.QF, self.QF + 8
        Pa, Pb, la, lb, ONES = self.Pa, self.Pb, self.la, self.lb, self.ONES
        KVB = self.KVB
        tA = self.vA
        e('L_attn:')
        self.stamp(4)
        self.make_ones16(ONES, tA)
        e(f'''
        s_lshl_b32 s{S_T0}, s{S_HEAD}, 18
        s_lshl_b32 s{S_T1}, s{S_BR}, 17
        s_add_u32 s{S_T0}, s{S_T0}, s{S_T1}
        v_add_u32 v{self.vKV}, s{S_T0}, v{self.vL16}
        s_lshl_b32 s{S_ROT}, s{S_MB}, 1
        s_mov_b32 s{S_RETRY}, 0
        v_and_b32 v{tA}, 15, v{self.vL}
        v_lshlrev_b32 v{tA}, 2, v{tA}
        s_lshl_b32 s{S_T0}, s{S_HP}, 7
        v_add_u32 v{tA}, s{S_T0}, v{tA}''')
        self.poll(tA, F1_OFF, tA + 1)
        self.stamp(5)
        ln = self.lab('noF1b')
        e(f'''
        s_cmp_eq_u32 s{S_BR}, 0
        s_cbranch_scc0 {ln}''')
        self.count_and_flag(1, 3, f'''
        s_lshl_b32 s{S_T0}, s{S_HP}, 7
        s_lshl_b32 s{S_T1}, s{S_MB}, 2
        s_add_u32 s{S_T0}, s{S_T0}, s{S_T1}
        s_add_u32 s{S_T0}, s{S_T0}, {hx(F1B_OFF)}''', tA, tA + 1)
        e(f'{ln}:')
        self.first_loads()
        K0 = KVB[0]
        e('s_waitcnt vmcnt(10)')
        e(mf32(Sa, K0, Qa, 'z')); e(mf32(Sb, K0, Qb, 'z'))
        e(mf32(Sa, K0 + 4, Qa + 4)); e(mf32(Sb, K0 + 4, Qb + 4))
        self.wave_rowmax(Sa, self.vMa, tA)
        self.wave_rowmax(Sb, self.vMb, tA)
        self.cross_half_max(self.vMa, tA)
        self.cross_half_max(self.vMb, tA)
        e(f'v_add_f32 v{self.vMa}, {hx(f2u(MOFF))}, v{self.vMa}')
        e(f'v_add_f32 v{self.vMb}, {hx(f2u(MOFF))}, v{self.vMb}')
        e('L_attn_go:')
        V3 = KVB[3] + 8
        for r in range(8):
            e(f'v_mov_b32 v{V3 + r}, 0')
            e(f'v_mov_b32 v{Pb + r}, 0')
        for r in range(4):
            e(f'v_mov_b32 v{la + r}, 0')
            e(f'v_mov_b32 v{lb + r}, 0')
        for r in range(16):
            e(f'v_sub_f32 v{Ca + r}, 0, v{self.vMa}')
        e(mf32(Oa, V3, V3, 'z')); e(mf32(Ob, V3, V3, 'z'))
        for r in range(16):
            e(f'v_sub_f32 v{Cb + r}, 0, v{self.vMb}')
        e(mf32(Sa, K0, Qa, Ca)); e(mf32(Sa, K0 + 4, Qa + 4))
        e(f's_mov_b32 s{S_IT}, 0')
        e('L_attn_loop:')
        for i4 in range(4):
            cur, prev, nxt = KVB[i4], KVB[(i4 - 1) % 4], KVB[(i4 + 1) % 4]
            mfA = [mf32(Sb, cur, Qb, Cb), mf32(Sb, cur + 4, Qb + 4),
                   mf32(Ob, prev + 8, Pb), mf16(lb, ONES, Pb),
                   mf32(Ob, prev + 12, Pb + 4), mf16(lb, ONES, Pb + 4)]
            e(interleave(mfA, self.exp_block(Sa, Pa)))
            e(self.tile_off(S_T0, S_J))
            e(f's_add_u32 s{S_J}, s{S_J}, 1')
            e('s_waitcnt vmcnt(6)')
            mfB = [mf32(Sa, nxt, Qa, Ca), mf32(Sa, nxt + 4, Qa + 4),
                   mf32(Oa, cur + 8, Pa), mf16(la, ONES, Pa),
                   mf32(Oa, cur + 12, Pa + 4), mf16(la, ONES, Pa + 4)]
            body = interleave(mfB, self.exp_block(Sb, Pb))
            loads = self.kv_loads((i4 + 3) % 4, f's{S_T0}')
            out = []
            li = 0
            for n, x in enumerate(body):
                out.append(x)
                if n in (4, 9, 14, 19):
                    out.append(loads[li]); li += 1
            e(out)
        e(f'''
        s_add_u32 s{S_IT}, s{S_IT}, 1
        s_cmp_lt_u32 s{S_IT}, 8
        s_cbranch_scc1 L_attn_loop''')
        prev = KVB[3]
        e(mf32(Ob, prev + 8, Pb)); e(mf16(lb, ONES, Pb))
        e(mf32(Ob, prev + 12, Pb + 4)); e(mf16(lb, ONES, Pb + 4))
        e('s_waitcnt vmcnt(0)')
        self.stamp(6)
        e(f'v_add_f32 v{tA}, v{la}, v{lb}')
        e(f'v_pk_add_f32 {vr(Sa, 2)}, {vr(Oa, 2)}, {vr(Oa + 2, 2)}')
        for r in range(4, 32, 2):
            e(f'v_pk_add_f32 {vr(Sa, 2)}, {vr(Sa, 2)}, {vr(Oa + r, 2)}')
        e(f'''
        v_add_f32 v{tA}, v{tA}, v{Sa}
        v_add_f32 v{tA}, v{tA}, v{Sa+1}
        v_mov_b32 v{tA+1}, 0x207
        v_cmp_class_f32 vcc, v{tA}, v{tA+1}
        s_cbranch_vccz L_attn_done
        s_cmp_lg_u32 s{S_RETRY}, 0
        s_cbranch_scc1 L_attn_done
        s_mov_b32 s{S_RETRY}, 1''')
        e(f'''
        v_mov_b32 v{self.vMa}, 0xff800000
        v_mov_b32 v{self.vMb}, 0xff800000
        s_mov_b32 s{S_J}, 0
        L_truemax:''')
        e(self.tile_off(S_T0, S_J))
        e(self.kv_loads(0, f's{S_T0}')[:2])
        e('s_waitcnt vmcnt(0)')
        e(mf32(Sa, K0, Qa, 'z')); e(mf32(Sb, K0, Qb, 'z'))
        e(mf32(Sa, K0 + 4, Qa + 4)); e(mf32(Sb, K0 + 4, Qb + 4))
        for S, M in ((Sa, self.vMa), (Sb, self.vMb)):
            for i in range(0, 16, 2):
                e(f'v_max3_f32 v{M}, v{M}, v{S+i}, v{S+i+1}')
        e(f'''
        s_add_u32 s{S_J}, s{S_J}, 1
        s_cmp_lt_u32 s{S_J}, 32
        s_cbranch_scc1 L_truemax''')
        self.cross_half_max(self.vMa, tA)
        self.cross_half_max(self.vMb, tA)
        self.first_loads()
        e('''
        s_waitcnt vmcnt(10)
        s_branch L_attn_go
        L_attn_done:''')

    def finalize_attn(self):
        e = self.emit
        Oa, Ob, la, lb = self.Oa, self.Ob, self.la, self.lb
        tA = self.vA
        I0 = 240
        ACC = 224
        ZL = 208
        vAd = 216
        bufs = list(range(0, 64, 4)) + list(range(140, 204, 4))
        e(f'''
        v_and_b32 v{vAd}, 15, v{self.vL}
        v_lshlrev_b32 v{vAd}, 2, v{vAd}
        s_lshl_b32 s{S_T0}, s{S_HP}, 7
        v_add_u32 v{vAd}, s{S_T0}, v{vAd}''')
        self.poll(vAd, F1B_OFF, vAd + 1)
        self.stamp(7)
        e(f'''
        s_lshl_b32 s{S_T0}, s{S_HP}, 6
        s_lshl_b32 s{S_T1}, s{S_HD}, 1
        s_add_u32 s{S_T1}, s{S_T1}, s{S_BR}
        s_add_u32 s{S_T0}, s{S_T0}, s{S_T1}
        s_lshl_b32 s{S_T0}, s{S_T0}, 11
        s_add_u32 s{S_T0}, s{S_T0}, {hx(KVP_OFF)}''')
        for m in range(16):
            for s in range(2):
                b = bufs[m * 2 + s]
                e(f'buffer_load_dwordx4 {vr(b)}, v{self.vL16}, {srd(sWS)}, s{S_T0} offen' +
                  (f' offset:{s * 1024}' if s else '') + ' sc1')
            e(f's_add_u32 s{S_T0}, s{S_T0}, 8192')
        e(f'''
        s_lshl_b32 s{S_T0}, s{S_HP}, 2
        s_add_u32 s{S_T0}, s{S_T0}, s{S_T1}
        s_lshl_b32 s{S_T0}, s{S_T0}, 11
        s_add_u32 s{S_T0}, s{S_T0}, {hx(ZP_OFF)}
        v_and_b32 v{vAd}, 31, v{self.vL}
        v_lshlrev_b32 v{vAd}, 2, v{vAd}
        v_lshl_add_u32 v{vAd}, v{self.vHf}, 7, v{vAd}''')
        for i in range(8):
            e(f'buffer_load_dword v{ZL + i}, v{vAd}, {srd(sWS)}, s{S_T0} offen' +
              (f' offset:{i * 256}' if i else '') + ' sc1')
        self.make_ident(I0, vAd + 1)
        PH = 112
        e(f'''
        s_lshl_b32 s{S_T0}, s{S_HD}, 1
        s_add_u32 s{S_T0}, s{S_T0}, s{S_TT}
        s_lshl_b32 s{S_T0}, s{S_T0}, 13
        s_add_u32 s{S_T0}, s{S_T0}, {hx(PHI)}
        s_mul_i32 s{S_T1}, s{S_BR}, 6144
        s_add_u32 s{S_T0}, s{S_T0}, s{S_T1}
        v_add_u32 v{vAd}, s{S_T0}, v{self.vL16}
        s_lshl_b32 s{S_T1}, s{S_BR}, 13
        s_sub_u32 s{S_T0}, s{S_T0}, s{S_T1}
        s_add_u32 s{S_T0}, s{S_T0}, 4096
        v_add_u32 v{vAd+1}, s{S_T0}, v{self.vL16}
        ds_read_b128 {vr(PH)}, v{vAd}
        ds_read_b128 {vr(PH+4)}, v{vAd} offset:1024
        ds_read_b128 {vr(PH+8)}, v{vAd+1}
        ds_read_b128 {vr(PH+12)}, v{vAd+1} offset:1024''')
        e(f'''
        s_lshl_b32 s{S_T0}, s{S_TT}, 6
        s_lshl_b32 s{S_T1}, s{S_BR}, 5
        s_add_u32 s{S_T0}, s{S_T0}, s{S_T1}
        s_lshl_b32 s{S_T0}, s{S_T0}, 2
        s_add_u32 s{S_T0}, s{S_T0}, {hx(LOG)}
        v_and_b32 v{vAd+2}, 31, v{self.vL}
        v_lshlrev_b32 v{vAd+2}, 2, v{vAd+2}
        v_add_u32 v{vAd+2}, s{S_T0}, v{vAd+2}
        ds_read_b32 v{vAd+3}, v{vAd+2}''')
        vG = vAd + 3
        for O, l, M in ((Oa, la, self.vMa), (Ob, lb, self.vMb)):
            e(f'v_rcp_f32 v{l+1}, v{l}')
            e(f'v_log_f32 v{l+2}, v{l}')
            e(f'v_add_f32 v{l+2}, v{l+2}, v{M}')
            for r in range(16):
                e(f'v_mul_f32 v{O+r}, v{O+r}, v{l+1}')
        La, Lb = la + 2, lb + 2
        for n in range(32):
            e(f's_waitcnt vmcnt({8 + 31 - n})')
            e(mf32(ACC, bufs[n], I0 + 4 * (n & 1), 'z' if n == 0 else None))
        e('s_waitcnt vmcnt(0)')
        e(f'v_add_f32 v{ZL}, v{ZL}, v{ZL+1}')
        for i in range(2, 8):
            e(f'v_add_f32 v{ZL}, v{ZL}, v{ZL+i}')
        e(f'''
        v_mov_b32 v{ZL+1}, v{ZL}
        v_permlane32_swap_b32 v{ZL}, v{ZL+1}
        v_add_f32 v{ZL}, v{ZL}, v{ZL+1}
        v_cvt_pk_bf16_f32 v{ZL}, v{ZL}, v{ZL}
        s_lshl_b32 s{S_T0}, s{S_W}, 7
        s_add_u32 s{S_T0}, s{S_T0}, {hx(ZT)}
        v_and_b32 v{ZL+1}, 31, v{self.vL}
        v_lshlrev_b32 v{ZL+1}, 1, v{ZL+1}
        v_add_u32 v{ZL+1}, s{S_T0}, v{ZL+1}
        ds_write_b16 v{ZL+1}, v{ZL}
        v_lshlrev_b32 v{ZL+2}, 3, v{self.vHf}
        v_add_u32 v{ZL+2}, s{S_T0}, v{ZL+2}
        s_waitcnt lgkmcnt(0)''')
        ZF = 0
        for s in range(2):
            e(f'ds_read_b64 {vr(ZF + 4 * s, 2)}, v{ZL+2} offset:{s * 32}')
            e(f'ds_read_b64 {vr(ZF + 4 * s + 2, 2)}, v{ZL+2} offset:{s * 32 + 16}')
        KT = 8
        for i in range(8):
            e(cvt(KT + i, ACC + 2 * i, ACC + 2 * i + 1))
        e(f'''
        v_cmp_ne_u32 vcc, 0, v{self.ONES}
        s_waitcnt lgkmcnt(0)''')
        for i in range(8):
            e(f'v_cndmask_b32 v{ZF+i}, 0, v{ZF+i}, vcc')
        Na, Nb, Da, Db = 16, 32, 48, 52
        for N, D, P in ((Nb, Db, PH + 8), (Na, Da, PH)):
            e(mf32(N, KT, P, 'z')); e(mf32(N, KT + 4, P + 4))
            e(mf16(D, ZF, P, 'z')); e(mf16(D, ZF + 4, P + 4))
        e(f'''
        s_mul_i32 s{S_T0}, s{S_W}, {MRG_STRIDE}
        s_add_u32 s{S_T0}, s{S_T0}, {hx(MRG)}
        v_add_u32 v{vAd}, s{S_T0}, v{self.vL16}
        v_lshlrev_b32 v{vAd+1}, 3, v{self.vL}
        v_add_u32 v{vAd+1}, s{S_T0}, v{vAd+1}
        s_xor_b32 s{S_T1}, s{S_W}, 4
        s_mul_i32 s{S_T0}, s{S_T1}, {MRG_STRIDE}
        s_add_u32 s{S_T0}, s{S_T0}, {hx(MRG)}
        v_add_u32 v{vAd+4}, s{S_T0}, v{self.vL16}
        v_lshlrev_b32 v{vAd+5}, 3, v{self.vL}
        v_add_u32 v{vAd+5}, s{S_T0}, v{vAd+5}''')
        for q in range(4):
            e(f'ds_write_b128 v{vAd}, {vr(Ob + 4 * q)} offset:{q * 1024}')
        for q in range(4):
            e(f'ds_write_b128 v{vAd}, {vr(Nb + 4 * q)} offset:{4096 + q * 1024}')
        e(f'''
        v_mov_b32 v56, v{Lb}
        v_mov_b32 v57, v{Db}
        ds_write_b64 v{vAd+1}, v[56:57] offset:8192''')
        e(f'''
        v_mul_f32 v{vG}, s{S_L2E}, v{vG}
        v_exp_f32 v58, -v{vG}
        v_add_f32 v58, 1.0, v58
        v_rcp_f32 v58, v58
        v_sub_f32 v59, 1.0, v58
        s_waitcnt lgkmcnt(0)
        s_barrier''')
        self.stamp(8)
        RO, RN = 140, 156
        for q in range(4):
            e(f'ds_read_b128 {vr(RO + 4 * q)}, v{vAd+4} offset:{q * 1024}')
        e(f'ds_read_b64 v[56:57], v{vAd+5} offset:8192')
        for q in range(4):
            e(f'ds_read_b128 {vr(RN + 4 * q)}, v{vAd+4} offset:{4096 + q * 1024}')
        e(f'''
        s_waitcnt lgkmcnt(4)
        v_max_f32 v60, v{La}, v56
        v_sub_f32 v61, v{La}, v60
        v_sub_f32 v62, v56, v60
        v_exp_f32 v61, v61
        v_exp_f32 v62, v62
        v_add_f32 v63, v61, v62
        v_rcp_f32 v63, v63
        v_mul_f32 v63, v63, v59
        v_mul_f32 v61, v61, v63
        v_mul_f32 v62, v62, v63
        v_add_f32 v57, v57, v{Da}
        v_add_f32 v57, {hx(f2u(1e-6))}, v57
        v_rcp_f32 v57, v57
        v_mul_f32 v57, v57, v58''')
        for r in range(16):
            e(f'v_mul_f32 v{Oa+r}, v{Oa+r}, v61')
            e(f'v_fma_f32 v{Oa+r}, v{RO+r}, v62, v{Oa+r}')
        OBF, OAF = 96, 104
        for i in range(8):
            e(cvt(OBF + i, Oa + 2 * i, Oa + 2 * i + 1))
        e(f'''
        s_lshl_b32 s{S_T0}, s{S_MB}, 2
        s_lshl_b32 s{S_T1}, s{S_TT}, 1
        s_add_u32 s{S_T0}, s{S_T0}, s{S_T1}
        s_add_u32 s{S_T0}, s{S_T0}, s{S_BR}
        s_lshl_b32 s{S_T0}, s{S_T0}, 17
        s_lshl_b32 s{S_T1}, s{S_HEAD}, 11
        s_add_u32 s{S_T0}, s{S_T0}, s{S_T1}
        s_add_u32 s{S_T0}, s{S_T0}, {hx(O_OFF)}
        s_add_u32 s{S_T1}, s{S_T0}, 65536
        buffer_store_dwordx4 {vr(OBF)}, v{self.vL16}, {srd(sWS)}, s{S_T1} offen sc1
        buffer_store_dwordx4 {vr(OBF+4)}, v{self.vL16}, {srd(sWS)}, s{S_T1} offen offset:1024 sc1
        s_waitcnt lgkmcnt(0)''')
        for r in range(16):
            e(f'v_add_f32 v{Na+r}, v{Na+r}, v{RN+r}')
            e(f'v_mul_f32 v{Na+r}, v{Na+r}, v57')
        for i in range(8):
            e(cvt(OAF + i, Na + 2 * i, Na + 2 * i + 1))
        e(f'''
        buffer_store_dwordx4 {vr(OAF)}, v{self.vL16}, {srd(sWS)}, s{S_T0} offen sc1
        buffer_store_dwordx4 {vr(OAF+4)}, v{self.vL16}, {srd(sWS)}, s{S_T0} offen offset:1024 sc1''')

    def outproj(self):
        e = self.emit
        ACC0, ACC1 = 0, 16
        WB = [32, 40, 48, 56]
        OB = [64, 128]
        vD3, vR3, vR3b, vO3, vE = 200, 201, 202, 203, 204
        S_MB3, S_CT = S_MB, S_HP
        self.stamp(9)
        e('s_barrier')
        e(f'''
        s_lshl_b32 s{S_T2}, s{S_MB}, 7
        s_lshl_b32 s{S_T3}, s{S_HP}, 2
        s_add_u32 s{S_J}, s{S_T2}, s{S_T3}
        s_add_u32 s{S_J}, s{S_J}, {hx(F2_OFF)}
        s_and_b32 s{S_T0}, s2, 7
        s_lshr_b32 s{S_T1}, s2, 3
        s_and_b32 s{S_T2}, s{S_T0}, 3
        s_lshl_b32 s{S_T2}, s{S_T2}, 2
        s_and_b32 s{S_T3}, s{S_T1}, 3
        s_add_u32 s{S_MB3}, s{S_T2}, s{S_T3}
        s_lshr_b32 s{S_T2}, s{S_T0}, 2
        s_lshl_b32 s{S_T2}, s{S_T2}, 3
        s_lshr_b32 s{S_T3}, s{S_T1}, 2
        s_add_u32 s{S_CT}, s{S_T2}, s{S_T3}
        s_cmp_eq_u32 s{S_BR}, 1
        s_cselect_b32 s{sW}, s38, s34
        s_cselect_b32 s{sW+1}, s39, s35
        s_mov_b32 s{sW+2}, {hx(2 << 20)}
        s_mov_b32 s{sW+3}, 0x20000
        s_and_b32 s{S_T0}, s{S_W}, 3
        s_lshl_b32 s{S_T1}, s{S_T0}, 4
        v_bfe_u32 v{vD3}, v{self.vL}, 2, 3
        v_add_u32 v{vD3}, s{S_T1}, v{vD3}
        v_lshlrev_b32 v{vD3}, 11, v{vD3}
        v_lshl_add_u32 v{vD3}, v{self.vHf}, 6, v{vD3}
        v_and_b32 v{vE}, 3, v{self.vL}
        v_lshl_add_u32 v{vD3}, v{vE}, 4, v{vD3}
        s_lshl_b32 s{S_T1}, s{S_CT}, 7
        v_add_u32 v{vD3}, s{S_T1}, v{vD3}
        s_lshl_b32 s{S_DWL}, s{S_BR}, 13
        s_lshl_b32 s{S_T0}, s{S_T0}, 11
        s_add_u32 s{S_DWL}, s{S_DWL}, s{S_T0}''')

        def dma(stage):
            L = []
            for i in range(2):
                L += [f's_add_u32 m0, s{S_DWL}, {hx((stage % 8) * 16384 + i * 1024)}',
                      f's_mov_b32 s{S_T0}, {hx(stage * 131072 + i * 16384)}',
                      f'buffer_load_dwordx4 v{vD3}, {srd(sW)}, s{S_T0} offen lds']
            return L
        for st in range(8):
            e(dma(st))
        e('s_waitcnt vmcnt(16)')
        self.count_and_flag(2, 7, f's_mov_b32 s{S_T0}, s{S_J}', vE, vE + 1)
        e(f'''
        v_bfe_u32 v{vR3}, v{self.vL}, 2, 2
        v_lshlrev_b32 v{vR3}, 6, v{vR3}
        v_bfe_u32 v{vE}, v{self.vL}, 4, 1
        v_lshl_add_u32 v{vR3}, v{vE}, 5, v{vR3}
        v_and_b32 v{vE}, 3, v{self.vL}
        v_lshl_add_u32 v{vR3}, v{vE}, 3, v{vR3}
        v_lshl_add_u32 v{vR3}, v{self.vHf}, 8, v{vR3}
        s_lshl_b32 s{S_T0}, s{S_BR}, 13
        v_add_u32 v{vR3}, s{S_T0}, v{vR3}
        v_add_u32 v{vR3b}, 0x10000, v{vR3}
        s_lshl_b32 s{S_T0}, s{S_MB3}, 2
        s_and_b32 s{S_T1}, s{S_W}, 3
        s_add_u32 s{S_T0}, s{S_T0}, s{S_T1}
        s_lshl_b32 s{S_T0}, s{S_T0}, 17
        s_lshl_b32 s{S_T1}, s{S_BR}, 16
        s_add_u32 s{S_T0}, s{S_T0}, s{S_T1}
        s_add_u32 s{S_T0}, s{S_T0}, {hx(O_OFF)}
        v_add_u32 v{vO3}, s{S_T0}, v{self.vL16}
        v_and_b32 v{vE}, 15, v{self.vL}
        v_lshlrev_b32 v{vE}, 2, v{vE}
        s_lshl_b32 s{S_T0}, s{S_MB3}, 7
        v_add_u32 v{vE}, s{S_T0}, v{vE}''')
        self.poll(vE, F2_OFF, vE + 1)
        self.stamp(10)

        def oloads(m):
            L = []
            for g in range(4):
                L.append(f's_mov_b32 s{S_T0}, {hx((m * 16 + g * 4) * 1024)}')
                for q in range(4):
                    L.append(f'buffer_load_dwordx4 {vr(OB[m & 1] + 16 * g + 4 * q)}, v{vO3}, {srd(sWS)}, s{S_T0} offen' +
                             (f' offset:{q * 1024}' if q else '') + ' sc1')
            return L

        def wreads(m, n):
            q, h2, s = n >> 2, (n >> 1) & 1, n & 1
            slot = (4 * m + q) % 8
            base = vR3 if slot < 4 else vR3b
            o = (slot & 3) * 16384 + (h2 * 4 + 2 * s) * 1024
            b = WB[n & 3]
            return [f'ds_read_b64_tr_b16 {vr(b, 2)}, v{base} offset:{o}',
                    f'ds_read_b64_tr_b16 {vr(b + 2, 2)}, v{base} offset:{o + 1024}',
                    f'ds_read_b64_tr_b16 {vr(b + 4, 2)}, v{base} offset:{o + 512}',
                    f'ds_read_b64_tr_b16 {vr(b + 6, 2)}, v{base} offset:{o + 1536}']

        def macro(m):
            e(wreads(m, 0)); e(wreads(m, 1))
            for n in range(16):
                if n + 2 < 16:
                    e(wreads(m, n + 2))
                    e('s_waitcnt lgkmcnt(8)')
                elif n == 14:
                    e('s_waitcnt lgkmcnt(4)')
                else:
                    e('s_waitcnt lgkmcnt(0)')
                b = WB[n & 3]
                of = OB[m & 1] + 4 * n
                first = 'z' if (m == 0 and n == 0) else None
                e(mf32(ACC0, b, of, first))
                e(mf32(ACC1, b + 4, of, first))
        e(oloads(0)); e(oloads(1))
        e('s_waitcnt vmcnt(16)')
        e('s_barrier')
        macro(0)
        e('s_barrier')
        for st in range(8, 12):
            e(dma(st))
        e(oloads(2))
        e('s_waitcnt vmcnt(24)')
        macro(1)
        e('s_waitcnt vmcnt(16)')
        e('s_barrier')
        for st in range(12, 16):
            e(dma(st))
        e(oloads(3))
        e('s_waitcnt vmcnt(24)')
        macro(2)
        e('s_waitcnt vmcnt(16)')
        e('s_barrier')
        e('s_waitcnt vmcnt(0)')
        macro(3)
        self.stamp(11)
        lA = self.lab('keep1')
        lB = self.lab('kept')
        e(f'''
        s_lshl_b32 s{S_T0}, s{S_W}, 12
        s_add_u32 s{S_T0}, s{S_T0}, {hx(XCH)}
        v_add_u32 v{vE}, s{S_T0}, v{self.vL16}
        s_xor_b32 s{S_T1}, s{S_W}, 4
        s_lshl_b32 s{S_T0}, s{S_T1}, 12
        s_add_u32 s{S_T0}, s{S_T0}, {hx(XCH)}
        v_add_u32 v{vE+1}, s{S_T0}, v{self.vL16}
        s_cmp_eq_u32 s{S_BR}, 1
        s_cbranch_scc1 {lA}''')
        for q in range(4):
            e(f'ds_write_b128 v{vE}, {vr(ACC1 + 4 * q)} offset:{q * 1024}')
        e(f's_branch {lB}')
        e(f'{lA}:')
        for q in range(4):
            e(f'ds_write_b128 v{vE}, {vr(ACC0 + 4 * q)} offset:{q * 1024}')
        for r in range(16):
            e(f'v_mov_b32 v{ACC0+r}, v{ACC1+r}')
        e(f'{lB}:')
        e('''
        s_waitcnt lgkmcnt(0)
        s_barrier''')
        R = 32
        for q in range(4):
            e(f'ds_read_b128 {vr(R + 4 * q)}, v{vE+1} offset:{q * 1024}')
        e(f'''
        s_lshl_b32 s{S_T0}, s{S_MB3}, 7
        s_and_b32 s{S_T1}, s{S_W}, 3
        s_lshl_b32 s{S_T1}, s{S_T1}, 5
        s_add_u32 s{S_T0}, s{S_T0}, s{S_T1}
        v_and_b32 v{vE}, 31, v{self.vL}
        v_add_u32 v{vE}, s{S_T0}, v{vE}
        v_lshlrev_b32 v{vE}, 11, v{vE}
        v_lshl_add_u32 v{vE}, v{self.vHf}, 4, v{vE}
        s_lshl_b32 s{S_T0}, s{S_CT}, 7
        s_lshl_b32 s{S_T1}, s{S_BR}, 6
        s_add_u32 s{S_T0}, s{S_T0}, s{S_T1}
        v_add_u32 v{vE}, s{S_T0}, v{vE}
        s_waitcnt lgkmcnt(0)''')
        for r in range(16):
            e(f'v_add_f32 v{ACC0+r}, v{ACC0+r}, v{R+r}')
        P = 48
        for i in range(8):
            e(cvt(P + i, ACC0 + 2 * i, ACC0 + 2 * i + 1))
        for u in range(2):
            e(f'v_permlane32_swap_b32 v{P+4*u}, v{P+4*u+2}')
            e(f'v_permlane32_swap_b32 v{P+4*u+1}, v{P+4*u+3}')
        for u in range(2):
            e(f'buffer_store_dwordx4 {vr(P + 4 * u)}, v{vE}, {srd(sOUT)}, 0 offen' + (f' offset:{u * 32}' if u else ''))
        e('s_waitcnt vmcnt(0)')

    XACC, XB, XI, XZ = 224, 240, 248, 208
    vD3p, vO3, vR3, vR3b, vPF, vFa, vG1, vFv = 224, 225, 226, 227, 228, 229, 230, 231
    vS = 232

    def check_flags(self, vaddr, vval, off, tag):
        l = self.lab('flagok')
        self.emit(f"""
        @wait {tag}
        v_cmp_ne_u32 vcc, 1, v{vval}
        s_cbranch_vccz {l}""")
        self.poll(vaddr, off, vval)
        self.emit(f'{l}:')

    def kv2(self, j):
        b = self.KVB[j % 4]
        L = []
        for q in range(4):
            t = f'K{j}' if q < 2 else f'V{j}'
            x = f'buffer_load_dwordx4 {vr(b + 4 * q)}, v{self.vKV}, {srd(sWS)}, s{S_OFF} offen' + \
                (f' offset:{q * 1024}' if q else '') + f' sc1 ;@{t}'
            L.append([x])
        L[3] += [f's_add_u32 s{S_OFF}, s{S_OFF}, 4096', f's_and_b32 s{S_OFF}, s{S_OFF}, 0x1ffff']
        return L

    def wo_dma(self, stage, i, tag):
        return [f's_add_u32 s{S_T1}, s{S_R}, {stage % 8}',
                f's_and_b32 s{S_T1}, s{S_T1}, 7',
                f's_lshl_b32 s{S_T1}, s{S_T1}, 17',
                f's_add_u32 m0, s{S_DWL}, {hx((stage % 8) * 16384 + i * 1024)}',
                f's_add_u32 s{S_T1}, s{S_T1}, {hx(i * 16384)}',
                f'buffer_load_dwordx4 v{self.vD3p}, {srd(sW)}, s{S_T1} offen lds ;@{tag}']

    def make_ident_half(self, I0, t):
        e = self.emit
        e(f"""
        v_and_b32 v{t}, 31, v{self.vL}
        v_lshlrev_b32 v{t+1}, 2, v{self.vHf}
        v_sub_u32 v{t}, v{t}, v{t+1}
        s_lshl_b32 s{S_T0}, s{S_TT}, 4
        v_subrev_u32 v{t}, s{S_T0}, v{t}
        v_and_b32 v{t+1}, 1, v{t}
        v_lshlrev_b32 v{t+1}, 4, v{t+1}
        v_mov_b32 v{t+2}, 0x3f80
        v_lshlrev_b32 v{t+1}, v{t+1}, v{t+2}
        v_ashrrev_i32 v{t}, 1, v{t}""")
        for i in range(4):
            key = (i & 1) + 4 * (i >> 1)
            e(f'v_cmp_eq_u32 vcc, {key}, v{t}')
            e(f'v_cndmask_b32 v{I0 + i}, 0, v{t+1}, vcc')

    def attention2(self):
        e = self.emit
        Sa, Sb, Ca, Cb, Oa, Ob = self.Sa, self.Sb, self.Ca, self.Cb, self.Oa, self.Ob
        Qa, Qb = self.QF, self.QF + 8
        Pa, Pb, la, lb, ONES = self.Pa, self.Pb, self.la, self.lb, self.ONES
        KVB = self.KVB
        tA = self.vA
        TF = self.cfg.get('tf', 3)
        TX0 = TF + 2
        TM = TX0 + 17
        XACC, XB, XI, XZ = self.XACC, self.XB, self.XI, self.XZ
        e('L_attn:')
        self.stamp(4)
        self.make_ones16(ONES, tA)
        self.make_ident_half(XI, tA)
        e(f"""
        s_lshl_b32 s{S_T0}, s{S_HEAD}, 18
        s_lshl_b32 s{S_T1}, s{S_BR}, 17
        s_add_u32 s{S_T0}, s{S_T0}, s{S_T1}
        v_add_u32 v{self.vKV}, s{S_T0}, v{self.vL16}
        s_lshl_b32 s{S_ROT}, s{S_MB}, 1
        s_lshl_b32 s{S_OFF}, s{S_MB}, 13
        s_lshl_b32 s{S_T0}, s{S_HP}, 6
        s_lshl_b32 s{S_T1}, s{S_HD}, 1
        s_add_u32 s{S_T1}, s{S_T1}, s{S_BR}
        s_add_u32 s{S_T0}, s{S_T0}, s{S_T1}
        s_lshl_b32 s{S_T0}, s{S_T0}, 11
        s_lshl_b32 s{S_T2}, s{S_TT}, 10
        s_add_u32 s{S_T0}, s{S_T0}, s{S_T2}
        s_add_u32 s{S_X}, s{S_T0}, {hx(KVP_OFF)}
        s_lshl_b32 s{S_T0}, s{S_HP}, 2
        s_add_u32 s{S_T0}, s{S_T0}, s{S_T1}
        s_lshl_b32 s{S_T0}, s{S_T0}, 11
        s_add_u32 s{S_J}, s{S_T0}, {hx(ZP_OFF)}
        s_lshl_b32 s{S_T2}, s{S_MB}, 7
        s_lshl_b32 s{S_T3}, s{S_HP}, 2
        s_add_u32 s{S_FA}, s{S_T2}, s{S_T3}
        s_add_u32 s{S_FB}, s{S_FA}, {hx(F2B_OFF)}
        s_add_u32 s{S_FA}, s{S_FA}, {hx(F2A_OFF)}
        s_and_b32 s{S_T0}, s2, 7
        s_lshr_b32 s{S_T1}, s2, 3
        s_and_b32 s{S_T2}, s{S_T0}, 3
        s_lshl_b32 s{S_T2}, s{S_T2}, 2
        s_and_b32 s{S_T3}, s{S_T1}, 3
        s_add_u32 s{S_MB3}, s{S_T2}, s{S_T3}
        s_lshr_b32 s{S_T2}, s{S_T0}, 2
        s_lshl_b32 s{S_T2}, s{S_T2}, 3
        s_lshr_b32 s{S_T3}, s{S_T1}, 2
        s_add_u32 s{S_CT}, s{S_T2}, s{S_T3}
        s_and_b32 s{S_R}, s{S_CT}, {self.cfg.get('rotmask', 7)}
        s_mov_b32 s{sW}, s34
        s_mov_b32 s{sW+1}, s35
        s_mov_b32 s{sW+2}, {hx(2 << 20)}
        s_mov_b32 s{sW+3}, 0x20000
        s_mov_b32 s{sT}, s38
        s_mov_b32 s{sT+1}, s39
        s_mov_b32 s{sT+2}, {hx(2 << 20)}
        s_mov_b32 s{sT+3}, 0x20000
        s_and_b32 s{S_T0}, s{S_W}, 3
        s_lshl_b32 s{S_DWL}, s{S_BR}, 13
        s_lshl_b32 s{S_T0}, s{S_T0}, 11
        s_add_u32 s{S_DWL}, s{S_DWL}, s{S_T0}
        v_and_b32 v{tA}, 15, v{self.vL}
        v_lshlrev_b32 v{tA}, 2, v{tA}
        s_lshl_b32 s{S_T0}, s{S_HP}, 7
        v_add_u32 v{tA}, s{S_T0}, v{tA}""")
        self.poll(tA, F1_OFF, tA + 1)
        self.stamp(5)
        ln = self.lab('noF1b')
        e(f"""
        s_cmp_eq_u32 s{S_BR}, 0
        s_cbranch_scc0 {ln}""")
        self.count_and_flag(1, 3, f"""
        s_lshl_b32 s{S_T0}, s{S_HP}, 7
        s_lshl_b32 s{S_T1}, s{S_MB}, 2
        s_add_u32 s{S_T0}, s{S_T0}, s{S_T1}
        s_add_u32 s{S_T0}, s{S_T0}, {hx(F1B_OFF)}""", tA, tA + 1)
        e(f'{ln}:')
        e('@vmclear')
        for j in range(3):
            for x in self.kv2(j):
                e(x)
        K0 = KVB[0]
        e('@wait K0')
        e(mf32(Sa, K0, Qa, 'z')); e(mf32(Sb, K0, Qb, 'z'))
        e(mf32(Sa, K0 + 4, Qa + 4)); e(mf32(Sb, K0 + 4, Qb + 4))
        self.wave_rowmax(Sa, self.vMa, tA)
        self.wave_rowmax(Sb, self.vMb, tA)
        self.cross_half_max(self.vMa, tA)
        self.cross_half_max(self.vMb, tA)
        e(f'v_add_f32 v{self.vMa}, {hx(f2u(MOFF))}, v{self.vMa}')
        e(f'v_add_f32 v{self.vMb}, {hx(f2u(MOFF))}, v{self.vMb}')
        for r in range(16):
            e(f'v_sub_f32 v{Ca + r}, 0, v{self.vMa}')
        e(mf32(Sa, K0, Qa, Ca)); e(mf32(Sa, K0 + 4, Qa + 4))
        for r in range(16):
            e(f'v_sub_f32 v{Cb + r}, 0, v{self.vMb}')
        v205, v206, v207 = 205, 206, 207
        low = set(self.cfg.get('low', [1, 4, 8, 11, 15, 18, 21, 24, 27, 30]))
        curp = -1
        if low:
            e('s_setprio 1')
        for T in range(32):
            cur, prev, nxt = KVB[T % 4], KVB[(T - 1) % 4], KVB[(T + 1) % 4]
            self.tstamp(T)
            if low:
                want = 0 if T in low else 2
                if want != curp:
                    l = self.lab('pr')
                    e(f's_cmp_eq_u32 s{S_BR}, 0')
                    e(f's_cbranch_scc0 {l}')
                    e(f's_setprio {want}')
                    e(f'{l}:')
                    curp = want
            if T == TX0:
                self.check_flags(v206, v207, F1B_OFF, 'f1b')
            mfA = [mf32(Sb, cur, Qb, Cb), mf32(Sb, cur + 4, Qb + 4)]
            if T > 0:
                z = 'z' if T == 1 else None
                mfA += [mf32(Ob, prev + 8, Pb, z), mf16(lb, ONES, Pb, z),
                        mf32(Ob, prev + 12, Pb + 4), mf16(lb, ONES, Pb + 4)]
            e(interleave(mfA, self.exp_block(Sa, Pa)))
            e(f'@wait K{T+1}' if T < 31 else '@wait V31')
            mfB = []
            m = T - 2 - TX0
            if 0 <= m < 16:
                e(f'@wait X{m}')
                mfB.append(mf32(XACC, XB + 4 * (m & 1), XI, 'z' if m == 0 else None))
            if T < 31:
                mfB += [mf32(Sa, nxt, Qa, Ca), mf32(Sa, nxt + 4, Qa + 4)]
            z = 'z' if T == 0 else None
            mfB += [mf32(Oa, cur + 8, Pa, z), mf16(la, ONES, Pa, z),
                    mf32(Oa, cur + 12, Pa + 4), mf16(la, ONES, Pa + 4)]
            body = interleave(mfB, self.exp_block(Sb, Pb))
            ex = []
            m = T - TX0
            if 0 <= m < 16:
                ex.append([f'buffer_load_dwordx4 {vr(XB + 4 * (m & 1))}, v{self.vL16}, {srd(sWS)}, s{S_X} offen sc1 ;@X{m}',
                           f's_add_u32 s{S_X}, s{S_X}, 8192'])
            if T == TX0:
                ex.append([f'v_and_b32 v{v207}, 31, v{self.vL}',
                           f'v_lshlrev_b32 v{v207}, 2, v{v207}',
                           f'v_lshl_add_u32 v{v207}, v{self.vHf}, 7, v{v207}'])
            if T in (TX0, TX0 + 1):
                for i in range(4 * (T - TX0), 4 * (T - TX0) + 4):
                    ex.append([f'buffer_load_dword v{XZ + i}, v{v207}, {srd(sWS)}, s{S_J} offen' +
                               (f' offset:{i * 256}' if i else '') + ' sc1 ;@z'])
            if T == TF:
                ex.append([f'v_and_b32 v{v206}, 15, v{self.vL}',
                           f'v_lshlrev_b32 v{v206}, 2, v{v206}',
                           f's_lshl_b32 s{S_T0}, s{S_HP}, 7',
                           f'v_add_u32 v{v206}, s{S_T0}, v{v206}',
                           f's_mov_b32 s{S_T1}, {hx(F1B_OFF)}',
                           f'buffer_load_dword v{v207}, v{v206}, {srd(sWS)}, s{S_T1} offen sc1 ;@f1b'])
            k = T - TM - 1
            if 0 <= k < 7:
                ex.append(self.wo_dma(k, 0, 'woA'))
                ex.append(self.wo_dma(k, 1, 'woA'))
            if k == 2:
                ex.append([f'buffer_load_dword v{self.vS}, v{self.vPF}, {srd(sT)}, 0 offen'])
                ex.append([f's_mov_b32 s{S_T1}, {hx(64 * 2048)}',
                           f'buffer_load_dword v{self.vS}, v{self.vPF}, {srd(sT)}, s{S_T1} offen'])
            if T == 30:
                ex.append([f's_mov_b32 s{S_T1}, {hx(F2A_OFF)}',
                           f'buffer_load_dword v{self.vFv}, v{self.vFa}, {srd(sWS)}, s{S_T1} offen sc1 ;@f2a'])
            if T + 3 <= 31:
                ex += self.kv2(T + 3)
            e(spread(body, ex, first=2))
            if k == 1:
                e('@wait oa')
                self.count_and_flag(2, 7, f's_mov_b32 s{S_T0}, s{S_FA}', self.vS + 1, self.vS + 2)
            if T == TM:
                self.midblock()
        prev = KVB[3]
        if low:
            e('s_setprio 0')
        e(mf32(Ob, prev + 8, Pb)); e(mf16(lb, ONES, Pb))
        e(mf32(Ob, prev + 12, Pb + 4)); e(mf16(lb, ONES, Pb + 4))
        e(f'v_add_f32 v{tA}, v{la}, v{lb}')
        e(f'v_pk_add_f32 {vr(Sa, 2)}, {vr(Oa, 2)}, {vr(Oa + 2, 2)}')
        for r in range(4, 32, 2):
            e(f'v_pk_add_f32 {vr(Sa, 2)}, {vr(Sa, 2)}, {vr(Oa + r, 2)}')
        e(f"""
        v_add_f32 v{tA}, v{tA}, v{Sa}
        v_add_f32 v{tA}, v{tA}, v{Sa+1}
        v_mov_b32 v{tA+1}, 0x207
        v_cmp_class_f32 vcc, v{tA}, v{tA+1}
        s_cbranch_vccnz L_retry
        L_attn_done:""")

    def retry_path(self):
        e = self.emit
        Sa, Sb, Ca, Cb, Oa, Ob = self.Sa, self.Sb, self.Ca, self.Cb, self.Oa, self.Ob
        Qa, Qb = self.QF, self.QF + 8
        Pa, Pb, la, lb, ONES = self.Pa, self.Pb, self.la, self.lb, self.ONES
        KVB = self.KVB
        tA = self.vA
        K0 = KVB[0]
        e(f"""
        L_retry:
        s_waitcnt vmcnt(0)
        v_mov_b32 v{self.vMa}, 0xff800000
        v_mov_b32 v{self.vMb}, 0xff800000
        s_mov_b32 s{S_J}, 0
        L_truemax:""")
        e(self.tile_off(S_T0, S_J))
        e(self.kv_loads(0, f's{S_T0}')[:2])
        e('s_waitcnt vmcnt(0)')
        e(mf32(Sa, K0, Qa, 'z')); e(mf32(Sb, K0, Qb, 'z'))
        e(mf32(Sa, K0 + 4, Qa + 4)); e(mf32(Sb, K0 + 4, Qb + 4))
        for S, M in ((Sa, self.vMa), (Sb, self.vMb)):
            for i in range(0, 16, 2):
                e(f'v_max3_f32 v{M}, v{M}, v{S+i}, v{S+i+1}')
        e(f"""
        s_add_u32 s{S_J}, s{S_J}, 1
        s_cmp_lt_u32 s{S_J}, 32
        s_cbranch_scc1 L_truemax""")
        self.cross_half_max(self.vMa, tA)
        self.cross_half_max(self.vMb, tA)
        self.first_loads()
        e('s_waitcnt vmcnt(10)')
        V3 = KVB[3] + 8
        for r in range(8):
            e(f'v_mov_b32 v{V3 + r}, 0')
            e(f'v_mov_b32 v{Pb + r}, 0')
        for r in range(4):
            e(f'v_mov_b32 v{la + r}, 0')
            e(f'v_mov_b32 v{lb + r}, 0')
        for r in range(16):
            e(f'v_sub_f32 v{Ca + r}, 0, v{self.vMa}')
        e(mf32(Oa, V3, V3, 'z')); e(mf32(Ob, V3, V3, 'z'))
        for r in range(16):
            e(f'v_sub_f32 v{Cb + r}, 0, v{self.vMb}')
        e(mf32(Sa, K0, Qa, Ca)); e(mf32(Sa, K0 + 4, Qa + 4))
        e(f's_mov_b32 s{S_IT}, 0')
        e('L_retry_loop:')
        for i4 in range(4):
            cur, prev, nxt = KVB[i4], KVB[(i4 - 1) % 4], KVB[(i4 + 1) % 4]
            mfA = [mf32(Sb, cur, Qb, Cb), mf32(Sb, cur + 4, Qb + 4),
                   mf32(Ob, prev + 8, Pb), mf16(lb, ONES, Pb),
                   mf32(Ob, prev + 12, Pb + 4), mf16(lb, ONES, Pb + 4)]
            e(interleave(mfA, self.exp_block(Sa, Pa)))
            e(self.tile_off(S_T0, S_J))
            e(f's_add_u32 s{S_J}, s{S_J}, 1')
            e('s_waitcnt vmcnt(6)')
            mfB = [mf32(Sa, nxt, Qa, Ca), mf32(Sa, nxt + 4, Qa + 4),
                   mf32(Oa, cur + 8, Pa), mf16(la, ONES, Pa),
                   mf32(Oa, cur + 12, Pa + 4), mf16(la, ONES, Pa + 4)]
            body = interleave(mfB, self.exp_block(Sb, Pb))
            e(spread(body, [[x] for x in self.kv_loads((i4 + 3) % 4, f's{S_T0}')], first=4))
        e(f"""
        s_add_u32 s{S_IT}, s{S_IT}, 1
        s_cmp_lt_u32 s{S_IT}, 8
        s_cbranch_scc1 L_retry_loop""")
        prev = KVB[3]
        e(mf32(Ob, prev + 8, Pb)); e(mf16(lb, ONES, Pb))
        e(mf32(Ob, prev + 12, Pb + 4)); e(mf16(lb, ONES, Pb + 4))
        e("""
        s_waitcnt vmcnt(0)
        s_branch L_attn_done""")

    def midblock(self):
        e = self.emit
        ACC, Z = self.XACC, self.XZ
        KT, PH = 208, 224
        ZF = [240, 244, 248, 116]
        N, D = self.Sb, self.Pa
        vLg, vA1, vA2, vA3 = 205, 206, 207, 113
        KP = 216
        self.stamp(7)
        e('@wait z')
        e(f'v_add_f32 v{Z}, v{Z}, v{Z+1}')
        for i in range(2, 8):
            e(f'v_add_f32 v{Z}, v{Z}, v{Z+i}')
        for i in range(8):
            e(cvt(KP + i, ACC + 2 * i, ACC + 2 * i + 1))
        e(f"""
        v_mov_b32 v{Z+1}, v{Z}
        s_lshl_b32 s{S_T0}, s{S_HD}, 1
        s_add_u32 s{S_T0}, s{S_T0}, s{S_BR}
        v_permlane32_swap_b32 v{Z}, v{Z+1}
        s_lshl_b32 s{S_T1}, s{S_T0}, 11
        s_add_u32 s{S_T1}, s{S_T1}, {hx(KTX)}
        v_add_u32 v{vA1}, s{S_T1}, v{self.vL16}
        v_add_f32 v{Z}, v{Z}, v{Z+1}
        s_lshl_b32 s{S_T1}, s{S_T0}, 6
        s_add_u32 s{S_T1}, s{S_T1}, {hx(ZT2)}
        v_and_b32 v{vA2}, 31, v{self.vL}
        v_lshlrev_b32 v{Z+1}, 1, v{vA2}
        v_add_u32 v{Z+1}, s{S_T1}, v{Z+1}
        v_cvt_pk_bf16_f32 v{Z}, v{Z}, v{Z}
        s_lshl_b32 s{S_T1}, s{S_TT}, 4
        s_lshl_b32 s{S_T1}, 0xffff, s{S_T1}
        ds_write_b16 v{Z+1}, v{Z}
        s_mov_b32 exec_lo, s{S_T1}
        s_mov_b32 exec_hi, s{S_T1}
        ds_write_b128 v{vA1}, {vr(KP)}
        ds_write_b128 v{vA1}, {vr(KP + 4)} offset:1024
        s_mov_b64 exec, -1
        s_lshl_b32 s{S_T0}, s{S_TT}, 6
        s_lshl_b32 s{S_T1}, s{S_BR}, 5
        s_add_u32 s{S_T0}, s{S_T0}, s{S_T1}
        s_lshl_b32 s{S_T0}, s{S_T0}, 2
        s_add_u32 s{S_T0}, s{S_T0}, {hx(LOGP)}
        v_lshlrev_b32 v{vA2}, 2, v{vA2}
        v_add_u32 v{vA2}, s{S_T0}, v{vA2}
        ds_read_b32 v{vLg}, v{vA2}
        ds_read_b32 v{vA3}, v{vA2} offset:512
        ds_read_b32 v{vA3+1}, v{vA2} offset:1024
        ds_read_b32 v{vA3+2}, v{vA2} offset:1536
        s_lshl_b32 s{S_T0}, s{S_HD}, 1
        s_add_u32 s{S_T0}, s{S_T0}, s{S_TT}
        s_lshl_b32 s{S_T0}, s{S_T0}, 13
        s_lshl_b32 s{S_T1}, s{S_BR}, 12
        s_add_u32 s{S_T0}, s{S_T0}, s{S_T1}
        s_add_u32 s{S_T0}, s{S_T0}, {hx(PHI)}
        v_add_u32 v{vA2}, s{S_T0}, v{self.vL16}""")
        for q in range(4):
            e(f'ds_read_b128 {vr(PH + 4 * q)}, v{vA2} offset:{(q >> 1) * 2048 + (q & 1) * 1024}')
        e(f"""
        s_waitcnt lgkmcnt(4)
        v_add_f32 v{vLg}, v{vLg}, v{vA3}
        v_add_f32 v{vA3+1}, v{vA3+1}, v{vA3+2}
        s_lshl_b32 s{S_T0}, s{S_HD}, 12
        s_add_u32 s{S_T0}, s{S_T0}, {hx(KTX)}
        v_add_f32 v{vLg}, v{vLg}, v{vA3+1}
        v_add_u32 v{vA1}, s{S_T0}, v{self.vL16}
        s_lshl_b32 s{S_T0}, s{S_HD}, 7
        s_add_u32 s{S_T0}, s{S_T0}, {hx(ZT2)}
        v_lshl_add_u32 v{vA3}, v{self.vHf}, 3, s{S_T0}
        v_mov_b32 v{vA3+1}, {hx(ZT0)}
        v_cmp_ne_u32 vcc, 0, v{self.ONES}
        v_cndmask_b32 v{vA3}, v{vA3+1}, v{vA3}, vcc
        s_waitcnt lgkmcnt(0)
        s_barrier""")
        for q in range(4):
            e(f'ds_read_b128 {vr(KT + 4 * q)}, v{vA1} offset:{(q >> 1) * 2048 + (q & 1) * 1024}')
        for q in range(4):
            o = (q >> 1) * 64 + (q & 1) * 32
            e(f'ds_read_b64 {vr(ZF[q], 2)}, v{vA3} offset:{o}')
            e(f'ds_read_b64 {vr(ZF[q] + 2, 2)}, v{vA3} offset:{o + 16}')
        e(f"""
        v_mul_f32 v{vLg}, s{S_L2E}, v{vLg}
        v_exp_f32 v{vLg}, -v{vLg}
        v_add_f32 v{vLg}, 1.0, v{vLg}
        v_rcp_f32 v{vLg}, v{vLg}
        s_waitcnt lgkmcnt(0)
        s_barrier""")
        for q in range(4):
            z = 'z' if q == 0 else None
            e(mf32(N, KT + 4 * q, PH + 4 * q, z))
            e(mf16(D, ZF[q], PH + 4 * q, z))
        t = self.vS
        assert t >= 232
        e(f"""
        s_and_b32 s{S_T0}, s{S_W}, 3
        s_lshl_b32 s{S_T1}, s{S_T0}, 4
        v_bfe_u32 v{self.vD3p}, v{self.vL}, 2, 3
        v_add_u32 v{self.vD3p}, s{S_T1}, v{self.vD3p}
        v_lshlrev_b32 v{self.vD3p}, 11, v{self.vD3p}
        v_lshl_add_u32 v{self.vD3p}, v{self.vHf}, 6, v{self.vD3p}
        v_and_b32 v{self.vO3}, 3, v{self.vL}
        v_lshl_add_u32 v{self.vD3p}, v{self.vO3}, 4, v{self.vD3p}
        s_lshl_b32 s{S_T1}, s{S_CT}, 7
        s_lshl_b32 s{S_T2}, s{S_BR}, 20
        s_add_u32 s{S_T2}, s{S_T2}, s{S_T1}
        v_add_u32 v{self.vD3p}, s{S_T2}, v{self.vD3p}
        v_bfe_u32 v{self.vR3}, v{self.vL}, 2, 2
        v_lshlrev_b32 v{self.vR3}, 6, v{self.vR3}
        v_bfe_u32 v{self.vR3b}, v{self.vL}, 4, 1
        v_lshl_add_u32 v{self.vR3}, v{self.vR3b}, 5, v{self.vR3}
        v_lshl_add_u32 v{self.vR3}, v{self.vO3}, 3, v{self.vR3}
        v_lshl_add_u32 v{self.vR3}, v{self.vHf}, 8, v{self.vR3}
        s_lshl_b32 s{S_T2}, s{S_BR}, 13
        v_add_u32 v{self.vR3}, s{S_T2}, v{self.vR3}
        v_add_u32 v{self.vR3b}, 0x10000, v{self.vR3}
        s_lshl_b32 s{S_T2}, s{S_MB3}, 2
        s_add_u32 s{S_T2}, s{S_T2}, s{S_T0}
        s_lshl_b32 s{S_T2}, s{S_T2}, 17
        s_lshl_b32 s{S_T3}, s{S_BR}, 15
        s_add_u32 s{S_T2}, s{S_T2}, s{S_T3}
        s_add_u32 s{S_T2}, s{S_T2}, {hx(O_OFF)}
        v_add_u32 v{self.vO3}, s{S_T2}, v{self.vL16}
        s_lshl_b32 s{S_T2}, s{S_W}, 7
        v_add_u32 v{self.vPF}, s{S_T2}, v{self.vL}
        v_lshlrev_b32 v{self.vPF}, 11, v{self.vPF}
        v_add_u32 v{self.vPF}, s{S_T1}, v{self.vPF}
        v_and_b32 v{self.vFa}, 15, v{self.vL}
        v_lshlrev_b32 v{self.vFa}, 2, v{self.vFa}
        s_lshl_b32 s{S_T2}, s{S_MB3}, 7
        v_add_u32 v{self.vFa}, s{S_T2}, v{self.vFa}
        v_sub_f32 v{self.vG1}, 1.0, v{vLg}
        v_add_f32 v{vA1}, {hx(f2u(1e-6))}, v{D}
        v_rcp_f32 v{vA1}, v{vA1}
        s_lshl_b32 s{S_T0}, s{S_MB}, 2
        s_lshl_b32 s{S_T1}, s{S_TT}, 1
        s_add_u32 s{S_T0}, s{S_T0}, s{S_T1}
        s_add_u32 s{S_T0}, s{S_T0}, s{S_BR}
        s_lshl_b32 s{S_T0}, s{S_T0}, 17
        s_lshl_b32 s{S_T1}, s{S_HEAD}, 11
        s_add_u32 s{S_T0}, s{S_T0}, s{S_T1}
        s_add_u32 s{S_X}, s{S_T0}, {hx(O_OFF)}
        v_mul_f32 v{vA1}, v{vA1}, v{vLg}""")
        for r in range(16):
            e(f'v_mul_f32 v{N+r}, v{N+r}, v{vA1}')
        for i in range(8):
            e(cvt(KT + i, N + 2 * i, N + 2 * i + 1))
        e(f"""
        buffer_store_dwordx4 {vr(KT)}, v{self.vL16}, {srd(sWS)}, s{S_X} offen sc1 ;@oa
        buffer_store_dwordx4 {vr(KT + 4)}, v{self.vL16}, {srd(sWS)}, s{S_X} offen offset:1024 sc1 ;@oa
        s_add_u32 s{S_X}, s{S_X}, 65536""")
        self.stamp(8)

    def tail2(self):
        e = self.emit
        Oa, Ob, la, lb = self.Oa, self.Ob, self.la, self.lb
        ACC0, ACC1 = 0, 16
        WB = [32, 40, 48, 56]
        OB = [140, 64]
        vR3, vR3b, vO3, vE = self.vR3, self.vR3b, self.vO3, self.vS
        t = self.vS

        def oloads(m):
            L = []
            for g in range(4):
                L += [f's_add_u32 s{S_T0}, s{S_R}, {(m & 1) * 4 + g}',
                      f's_and_b32 s{S_T0}, s{S_T0}, 7',
                      f's_lshl_b32 s{S_T0}, s{S_T0}, 12']
                if m >> 1:
                    L.append(f's_add_u32 s{S_T0}, s{S_T0}, 65536')
                for q in range(4):
                    L.append(f'buffer_load_dwordx4 {vr(OB[m & 1] + 16 * g + 4 * q)}, v{vO3}, {srd(sWS)}, s{S_T0} offen' +
                             (f' offset:{q * 1024}' if q else '') + f' sc1 ;@o{m}_{4 * g + q}')
            return L

        def wreads(m, n):
            q, h2, s = n >> 2, (n >> 1) & 1, n & 1
            slot = (4 * m + q) % 8
            base = vR3 if slot < 4 else vR3b
            o = (slot & 3) * 16384 + (h2 * 4 + 2 * s) * 1024
            b = WB[n & 3]
            return [f'ds_read_b64_tr_b16 {vr(b, 2)}, v{base} offset:{o}',
                    f'ds_read_b64_tr_b16 {vr(b + 2, 2)}, v{base} offset:{o + 1024}',
                    f'ds_read_b64_tr_b16 {vr(b + 4, 2)}, v{base} offset:{o + 512}',
                    f'ds_read_b64_tr_b16 {vr(b + 6, 2)}, v{base} offset:{o + 1536}']

        def macro(m):
            e(wreads(m, 0)); e(wreads(m, 1))
            for n in range(16):
                if n + 2 < 16:
                    e(wreads(m, n + 2))
                    e('s_waitcnt lgkmcnt(8)')
                elif n == 14:
                    e('s_waitcnt lgkmcnt(4)')
                else:
                    e('s_waitcnt lgkmcnt(0)')
                e(f'@wait o{m}_{n}')
                b = WB[n & 3]
                of = OB[m & 1] + 4 * n
                first = 'z' if (m == 0 and n == 0) else None
                e(mf32(ACC0, b, of, first))
                e(mf32(ACC1, b + 4, of, first))

        self.stamp(6)
        self.tstamp2()
        e(f"""
        v_sub_f32 v{self.vMa}, 0, v{self.Ca}
        v_sub_f32 v{self.vMb}, 0, v{self.Cb}""")
        self.check_flags(self.vFa, self.vFv, F2A_OFF, 'f2a')
        self.tstamp2()
        e(oloads(0))
        self.tstamp2()
        e(f"""
        v_rcp_f32 v{lb+1}, v{lb}
        v_log_f32 v{lb+2}, v{lb}
        s_mul_i32 s{S_T0}, s{S_W}, {MRG2_STRIDE}
        s_add_u32 s{S_T0}, s{S_T0}, {hx(MRG2)}
        v_add_u32 v{t}, s{S_T0}, v{self.vL16}
        v_lshlrev_b32 v{t+1}, 2, v{self.vL}
        v_add_u32 v{t+2}, s{S_T0}, v{t+1}
        v_add_f32 v{lb+2}, v{lb+2}, v{self.vMb}""")
        for q in range(4):
            for r in range(4):
                e(f'v_mul_f32 v{Ob+4*q+r}, v{Ob+4*q+r}, v{lb+1}')
            e(f'ds_write_b128 v{t}, {vr(Ob + 4 * q)} offset:{q * 1024}')
        e(f"""
        ds_write_b32 v{t+2}, v{lb+2} offset:4096
        v_rcp_f32 v{la+1}, v{la}
        v_log_f32 v{la+2}, v{la}
        s_xor_b32 s{S_T1}, s{S_W}, 4
        s_mul_i32 s{S_T0}, s{S_T1}, {MRG2_STRIDE}
        s_add_u32 s{S_T0}, s{S_T0}, {hx(MRG2)}
        v_add_u32 v{t}, s{S_T0}, v{self.vL16}
        v_add_u32 v{t+2}, s{S_T0}, v{t+1}
        v_add_f32 v{la+2}, v{la+2}, v{self.vMa}""")
        for r in range(16):
            e(f'v_mul_f32 v{Oa+r}, v{Oa+r}, v{la+1}')
        self.tstamp2()
        e("""
        s_waitcnt lgkmcnt(0)
        @wait woA
        s_barrier""")
        self.tstamp2()
        RO, RL = 0, 16
        e(f'ds_read_b32 v{RL}, v{t+2} offset:4096')
        for q in range(4):
            e(f'ds_read_b128 {vr(RO + 4 * q)}, v{t} offset:{q * 1024}')
        La = la + 2
        e(f"""
        s_waitcnt lgkmcnt(4)
        v_max_f32 v20, v{La}, v{RL}
        v_sub_f32 v21, v{La}, v20
        v_sub_f32 v22, v{RL}, v20
        v_exp_f32 v21, v21
        v_exp_f32 v22, v22
        v_add_f32 v23, v21, v22
        v_rcp_f32 v23, v23
        v_mul_f32 v23, v23, v{self.vG1}
        v_mul_f32 v21, v21, v23
        v_mul_f32 v22, v22, v23
        s_waitcnt lgkmcnt(0)
        s_barrier""")
        self.tstamp2()
        e(self.wo_dma(7, 0, 'wo7')); e(self.wo_dma(7, 1, 'wo7'))
        for r in range(16):
            e(f'v_mul_f32 v{Oa+r}, v{Oa+r}, v21')
            e(f'v_fma_f32 v{Oa+r}, v{RO+r}, v22, v{Oa+r}')
        OBF = 128
        for i in range(8):
            e(cvt(OBF + i, Oa + 2 * i, Oa + 2 * i + 1))
        e(f"""
        buffer_store_dwordx4 {vr(OBF)}, v{self.vL16}, {srd(sWS)}, s{S_X} offen sc1 ;@ob
        buffer_store_dwordx4 {vr(OBF+4)}, v{self.vL16}, {srd(sWS)}, s{S_X} offen offset:1024 sc1 ;@ob""")
        e(oloads(1))
        self.stamp(9)
        self.tstamp2()
        macro(0)
        self.tstamp2()
        e('@wait ob')
        self.tstamp2()
        self.count_and_flag(3, 7, f's_mov_b32 s{S_T0}, s{S_FB}', t, t + 1)
        e(f"""
        s_mov_b32 s{sW}, s38
        s_mov_b32 s{sW+1}, s39
        s_barrier""")
        self.tstamp2()
        for st in range(8, 12):
            e(self.wo_dma(st, 0, 'wo8')); e(self.wo_dma(st, 1, 'wo8'))
        self.tstamp2()
        macro(1)
        self.tstamp2()
        self.poll(self.vFa, F2B_OFF, self.vFv)
        e('@vmclear')
        self.stamp(10)
        self.tstamp2()
        e(oloads(2)); e(oloads(3))
        self.tstamp2()
        e('s_barrier')
        self.tstamp2()
        for st in range(12, 16):
            e(self.wo_dma(st, 0, 'wo12')); e(self.wo_dma(st, 1, 'wo12'))
        macro(2)
        self.tstamp2()
        e('@wait wo12')
        e('s_barrier')
        self.tstamp2()
        macro(3)
        self.tstamp2()
        self.stamp(11)
        lA = self.lab('keep1')
        lB = self.lab('kept')
        e(f"""
        s_lshl_b32 s{S_T0}, s{S_W}, 12
        s_add_u32 s{S_T0}, s{S_T0}, {hx(XCH2)}
        v_add_u32 v{vE}, s{S_T0}, v{self.vL16}
        s_xor_b32 s{S_T1}, s{S_W}, 4
        s_lshl_b32 s{S_T0}, s{S_T1}, 12
        s_add_u32 s{S_T0}, s{S_T0}, {hx(XCH2)}
        v_add_u32 v{vE+1}, s{S_T0}, v{self.vL16}
        s_cmp_eq_u32 s{S_BR}, 1
        s_cbranch_scc1 {lA}""")
        for q in range(4):
            e(f'ds_write_b128 v{vE}, {vr(ACC1 + 4 * q)} offset:{q * 1024}')
        e(f's_branch {lB}')
        e(f'{lA}:')
        for q in range(4):
            e(f'ds_write_b128 v{vE}, {vr(ACC0 + 4 * q)} offset:{q * 1024}')
        for r in range(16):
            e(f'v_mov_b32 v{ACC0+r}, v{ACC1+r}')
        e(f'{lB}:')
        e("""
        s_waitcnt lgkmcnt(0)
        s_barrier""")
        R = 32
        for q in range(4):
            e(f'ds_read_b128 {vr(R + 4 * q)}, v{vE+1} offset:{q * 1024}')
        e(f"""
        s_lshl_b32 s{S_T0}, s{S_MB3}, 7
        s_and_b32 s{S_T1}, s{S_W}, 3
        s_lshl_b32 s{S_T1}, s{S_T1}, 5
        s_add_u32 s{S_T0}, s{S_T0}, s{S_T1}
        v_and_b32 v{vE}, 31, v{self.vL}
        v_add_u32 v{vE}, s{S_T0}, v{vE}
        v_lshlrev_b32 v{vE}, 11, v{vE}
        v_lshl_add_u32 v{vE}, v{self.vHf}, 4, v{vE}
        s_lshl_b32 s{S_T0}, s{S_CT}, 7
        s_lshl_b32 s{S_T1}, s{S_BR}, 6
        s_add_u32 s{S_T0}, s{S_T0}, s{S_T1}
        v_add_u32 v{vE}, s{S_T0}, v{vE}
        s_waitcnt lgkmcnt(0)""")
        for r in range(16):
            e(f'v_add_f32 v{ACC0+r}, v{ACC0+r}, v{R+r}')
        P = 48
        for i in range(8):
            e(cvt(P + i, ACC0 + 2 * i, ACC0 + 2 * i + 1))
        for u in range(2):
            e(f'v_permlane32_swap_b32 v{P+4*u}, v{P+4*u+2}')
            e(f'v_permlane32_swap_b32 v{P+4*u+1}, v{P+4*u+3}')
        for u in range(2):
            e(f'buffer_store_dwordx4 {vr(P + 4 * u)}, v{vE}, {srd(sOUT)}, 0 offen' + (f' offset:{u * 32}' if u else ''))

    def build(self):
        e = self.emit
        stop = self.cfg.get('stop', 'full')
        self.prologue()
        self.gemm_loop()
        e(f'''
        s_cmp_eq_u32 s{S_BR}, 1
        s_cbranch_scc1 L_epiB''')
        self.epi_A()
        e('s_branch L_attn')
        self.epi_B()
        if self.cfg.get('v', 2) == 1:
            self.attention()
            if stop != 'attn':
                self.finalize_attn()
                if stop != 'fin':
                    self.outproj()
        else:
            self.attention2()
            self.tail2()
        e('s_waitcnt vmcnt(0) lgkmcnt(0)')
        self.stamp(12)
        self.dump_stamps()
        e('''
        s_waitcnt vmcnt(0) lgkmcnt(0)
        L_end:
        s_endpgm''')
        if self.cfg.get('v', 2) != 1:
            self.retry_path()
            e('s_endpgm')
        e('L_codeend:')
        body = self.a.finalize(report=self.cfg.get('report', False))
        return body


HEADER = open(os.path.join(os.path.dirname(os.path.abspath(__file__)), 'header.txt')).read()


def make(cfg):
    g = Gen(cfg)
    body = g.build()
    k = NAME + '_kernel'
    src = HEADER + f'''; @launch grid=(256,1,1) block=(512,1,1) lds={LDS_SIZE}
.amdgcn_target "amdgcn-amd-amdhsa--gfx950"
.text
.globl {k}
.p2align 8
.type {k},@function
{k}:
{body}.section .rodata,"a"
.p2align 6
.amdhsa_kernel {k}
  .amdhsa_next_free_vgpr 256
  .amdhsa_next_free_sgpr 96
  .amdhsa_accum_offset 256
  .amdhsa_group_segment_fixed_size 0
  .amdhsa_kernarg_size 88
  .amdhsa_user_sgpr_count 2
  .amdhsa_user_sgpr_kernarg_segment_ptr 1
  .amdhsa_system_sgpr_workgroup_id_x 1
  .amdhsa_float_denorm_mode_32 3
.end_amdhsa_kernel
'''
    return src, g


if __name__ == '__main__':
    import argparse, json
    ap = argparse.ArgumentParser()
    ap.add_argument('-o', default='cdna_kernels/' + NAME + '.s')
    ap.add_argument('--cfg', default='{}')
    args = ap.parse_args()
    cfg = json.loads(args.cfg)
    src, g = make(cfg)
    open(args.o, 'w').write(src)
    print('wrote', args.o, 'instructions', g.a.count, 'nops inserted', len(g.a.inserted))
```

```python
import sys, struct, os
sys.path.insert(0, os.path.dirname(os.path.abspath(__file__)))
from asmlib import Asm

NAME = 'gated_mix__linear_kernel_hedgehog__mha_block__prompt'
L2E = 1.4426950408889634
QS = L2E / (32 ** 0.5)


def f2u(x):
    return struct.unpack('<I', struct.pack('<f', x))[0]


def hx(x):
    return '0x%x' % x


KV_OFF = 0
O_OFF = 8 << 20
KVP_OFF = 16 << 20
ZP_OFF = 18 << 20
FLG_OFF = 19 << 20
F1_OFF = FLG_OFF
F1B_OFF = FLG_OFF + 2048
F2_OFF = FLG_OFF + 4096
F2A_OFF = FLG_OFF + 4096
F2B_OFF = FLG_OFF + 6144
WS_SIZE = 20 << 20
XS = 0
WSL = 49152
WPHI = 147456
GW = 151552
LOGP = GW
LOG = 161792
CNT = 162304
ZT2 = 162368
ZT0 = 162624
KTX = 66560
MRG2 = 126976
MRG2_STRIDE = 4352
XCH2 = 0
MRG3 = 131072
MRG3_STRIDE = 2304
QX = 75776
PHI = 16384
KVX = 49152
KVZ = 65536
MRG = 66560
MRG_STRIDE = 9216
ZT = 140288
XCH = 131072
LDS_SIZE = 163840
SPIN = 1 << 16
BIGOFF = 0x7000000
MOFF = 100.0

sX, sW, sWS, sOUT, sDBG, sT = 4, 8, 12, 16, 20, 24
S_W, S_BR, S_HD, S_TT, S_HP, S_MB, S_C, S_HEAD = 48, 49, 50, 51, 52, 53, 54, 55
S_DWL, S_DXL, S_WC, S_XC, S_XN, S_XNN, S_WK, S_U = 56, 57, 58, 59, 60, 61, 62, 63
S_T0, S_T1, S_T2, S_T3, S_T4 = 64, 65, 66, 67, 68
S_L2E, S_QS, S_SPIN, S_RETRY, S_J, S_ROT, S_IT = 69, 70, 71, 72, 73, 74, 75
S_4096 = 76
S_EX = 78
S_OFF, S_X, S_MB3, S_CT, S_FA, S_FB, S_R = 77, 80, 81, 82, 83, 84, 85
S_OO = 86
S_PB, S_PD = 88, 90


def srd(b):
    return 's[%d:%d]' % (b, b + 3)


def vr(b, n=4):
    return 'v[%d:%d]' % (b, b + n - 1)


def mf32(d, A, B, C=None):
    c = vr(d, 16) if C is None else ('0' if C == 'z' else vr(C, 16))
    return 'v_mfma_f32_32x32x16_bf16 %s, %s, %s, %s' % (vr(d, 16), vr(A), vr(B), c)


def mf16(d, A, B, C=None):
    c = vr(d, 4) if C is None else ('0' if C == 'z' else vr(C, 4))
    return 'v_mfma_f32_16x16x32_bf16 %s, %s, %s, %s' % (vr(d, 4), vr(A), vr(B), c)


def cvt(d, a, b):
    return 'v_cvt_pk_bf16_f32 v%d, v%d, v%d' % (d, a, b)


def interleave(mf, other, per=None):
    out = []
    n = len(mf)
    k = len(other)
    pos = 0
    for i, m in enumerate(mf):
        out.append(m)
        end = (k * (i + 1)) // n if per is None else min(k, pos + per[i])
        out += other[pos:end]
        pos = end
    out += other[pos:]
    return out


class VM:
    def __init__(self, emit):
        self.ops = []
        self.seen = set()
        self.emit = emit

    def issue(self, text, tag):
        self.ops.append(tag)
        return text

    def wait_text(self, tag):
        assert tag in self.seen, 'wait on a tag that was never issued: ' + tag
        idx = max((i for i, t in enumerate(self.ops) if t == tag), default=-1)
        if idx < 0:
            return []
        n = len(self.ops) - 1 - idx
        assert n <= 63, n
        self.ops = self.ops[idx + 1:]
        return ['s_waitcnt vmcnt(%d)' % n]

    def wait(self, tag):
        self.emit(self.wait_text(tag))

    def clear(self):
        self.ops = []


def spread(body, extra, first=1, last=None):
    if not extra:
        return list(body)
    last = len(body) if last is None else last
    pos = [first + ((last - first) * i) // len(extra) for i in range(len(extra))]
    out = []
    k = 0
    for n, x in enumerate(body):
        while k < len(extra) and pos[k] <= n:
            out += extra[k]; k += 1
        out.append(x)
    while k < len(extra):
        out += extra[k]; k += 1
    return out


class Gen:
    def __init__(self, cfg):
        self.cfg = cfg
        self.a = Asm()
        self.uid = 0
        self.par16 = 0
        self.vm = VM(self.emit)

    def lab(self, s):
        self.uid += 1
        return 'L_%s_%d' % (s, self.uid)

    def emit(self, lines):
        if isinstance(lines, str):
            lines = [lines]
        for chunk in lines:
            for ln in chunk.split('\n'):
                ln = ln.strip()
                if not ln:
                    continue
                if ln.startswith('@wait '):
                    for x in self.vm.wait_text(ln[6:].strip()):
                        self.a(x)
                    continue
                if ln == '@vmclear':
                    self.vm.clear()
                    continue
                tag = 'anon'
                if ';@' in ln:
                    ln, tag = ln.split(';@')
                    ln = ln.rstrip()
                if ln.startswith('buffer_') and tag != 'skip':
                    self.vm.ops.append(tag)
                    self.vm.seen.add(tag)
                self.a(ln)

    def stamp(self, i):
        if self.cfg.get('stamps'):
            self.emit(f'''
            s_memrealtime s[94:95]
            s_memtime s[92:93]
            s_waitcnt lgkmcnt(0)
            v_writelane_b32 v252, s94, {i}
            v_writelane_b32 v252, s92, {16 + i}''')

    def tstamp(self, i):
        if self.cfg.get('tstamps'):
            self.emit(f'''
            s_memtime s[92:93]
            s_waitcnt lgkmcnt(0)
            v_writelane_b32 v252, s92, {32 + i}''')

    def tstamp2(self):
        if self.cfg.get('tst2'):
            i = self.t2 = getattr(self, 't2', -1) + 1
            self.emit(f'''
            s_memrealtime s[92:93]
            s_waitcnt lgkmcnt(0)
            v_writelane_b32 v252, s92, {32 + i}''')

    def tstamp3(self):
        if self.cfg.get('tst3'):
            i = self.t3 = getattr(self, 't3', -1) + 1
            self.emit(f'''
            s_memrealtime s[92:93]
            s_waitcnt lgkmcnt(0)
            v_writelane_b32 v252, s92, {32 + i}''')

    def dump_stamps(self):
        if not self.cfg.get('stamps'):
            return
        e = self.emit
        e(f'''
        s_mov_b32 s{sT}, s46
        s_mov_b32 s{sT+1}, s47
        s_mov_b32 s{sT+2}, {hx(64 << 20)}
        s_mov_b32 s{sT+3}, 0x20000
        s_lshl_b32 s{S_T0}, s2, 3
        s_add_u32 s{S_T0}, s{S_T0}, s{S_W}
        s_lshl_b32 s{S_T0}, s{S_T0}, 8
        s_add_u32 s{S_T0}, s{S_T0}, {hx(32 << 20)}
        v_lshlrev_b32 v1, 2, v{self.vL}
        buffer_store_dword v252, v1, {srd(sT)}, s{S_T0} offen''')

    def make_srd(self, b, lo, hi, size):
        self.emit(f'''
        s_mov_b32 s{b}, s{lo}
        s_mov_b32 s{b+1}, s{hi}
        s_mov_b32 s{b+2}, {hx(size)}
        s_mov_b32 s{b+3}, 0x20000''')

    def poll(self, voff, soff_imm, vtmp, srdb=sWS, want=1):
        l0 = self.lab('poll')
        l1 = self.lab('polled')
        self.emit(f'''
        s_mov_b32 s{S_SPIN}, 0
        s_mov_b32 s{S_T4}, {hx(soff_imm)}
        {l0}:
        buffer_load_dword v{vtmp}, v{voff}, {srd(srdb)}, s{S_T4} offen sc1 ;@skip
        s_waitcnt vmcnt(0)
        v_cmp_ne_u32 vcc, {want}, v{vtmp}
        s_cbranch_vccz {l1}
        s_add_u32 s{S_SPIN}, s{S_SPIN}, 1
        s_cmp_ge_u32 s{S_SPIN}, {hx(SPIN)}
        s_cbranch_scc1 {l1}
        s_sleep 1
        s_branch {l0}
        {l1}:''')

    def count_and_flag(self, cnt_idx, last, flag_soff_expr, vt0, vt1):
        l1 = self.lab('noflag')
        self.emit(f'''
        s_mov_b64 exec, 1
        v_mov_b32 v{vt0}, {hx(CNT + 4 * cnt_idx)}
        v_mov_b32 v{vt1}, 1
        ds_add_rtn_u32 v{vt1}, v{vt0}, v{vt1}
        s_waitcnt lgkmcnt(0)
        v_cmp_ne_u32 vcc, {last}, v{vt1}
        s_cbranch_vccnz {l1}''')
        self.emit(flag_soff_expr)
        self.emit(f'''
        v_mov_b32 v{vt1}, 1
        v_mov_b32 v{vt0}, 0
        buffer_store_dword v{vt1}, v{vt0}, {srd(sWS)}, s{S_T0} offen sc1 ;@skip
        {l1}:
        s_mov_b64 exec, -1''')

    Q0, Q1, K0, K1, V0, V1 = 0, 16, 32, 48, 64, 80
    F = [dict(x0=96, x1=100, wq=104, wk=108, wv=112), dict(x0=116, x1=120, wq=124, wk=128, wv=132)]
    GWF, GACC = 136, 140
    vWr, vWa, vXr, vXa, vDW, vDX, vGa = 142, 143, 144, 148, 149, 150, 151
    vL, vL16, vHf = 253, 254, 255
    vT = 155
    vDummy = 164
    vDb = 165

    def prologue(self):
        e = self.emit
        vL, vL16, vHf, vT = self.vL, self.vL16, self.vHf, self.vT
        t0, t1, t2 = vT, vT + 1, vT + 2
        e(f"""
        s_cmp_ge_u32 s2, 256
        s_cbranch_scc1 L_end
        s_load_dwordx4 s[28:31], s[0:1], 0
        s_load_dwordx4 s[32:35], s[0:1], 16
        s_load_dwordx4 s[36:39], s[0:1], 40
        s_load_dwordx4 s[40:43], s[0:1], 56
        s_load_dwordx4 s[44:47], s[0:1], 72
        v_and_b32 v{vL}, 63, v0
        v_lshrrev_b32 v{vT}, 6, v0
        v_lshlrev_b32 v{vL16}, 4, v{vL}
        v_readfirstlane_b32 s{S_W}, v{vT}
        v_lshrrev_b32 v{vHf}, 5, v{vL}
        s_and_b32 s{S_T0}, s2, 7
        s_lshr_b32 s{S_T1}, s2, 3
        s_and_b32 s{S_T2}, s{S_T1}, 1
        s_lshl_b32 s{S_HP}, s{S_T0}, 1
        s_add_u32 s{S_HP}, s{S_HP}, s{S_T2}
        s_xor_b32 s{S_HP}, s{S_HP}, {self.cfg.get('hpx', 0)}
        s_lshr_b32 s{S_MB}, s{S_T1}, 1
        s_lshr_b32 s{S_BR}, s{S_W}, 2
        s_lshr_b32 s{S_C}, s{S_W}, 1
        s_and_b32 s{S_HD}, s{S_C}, 1
        s_and_b32 s{S_TT}, s{S_W}, 1
        s_lshl_b32 s{S_HEAD}, s{S_HP}, 1
        s_add_u32 s{S_HEAD}, s{S_HEAD}, s{S_HD}""")
        e(f"""
        s_lshl_b32 s{S_T0}, s{S_MB}, 7
        s_lshl_b32 s{S_T1}, s{S_W}, 3
        s_add_u32 s{S_T0}, s{S_T0}, s{S_T1}
        v_lshrrev_b32 v{t0}, 3, v{vL}
        v_add_u32 v{t0}, s{S_T0}, v{t0}
        v_lshlrev_b32 v{t0}, 11, v{t0}
        s_lshl_b32 s{S_T1}, s{S_TT}, 2
        v_lshrrev_b32 v{t1}, 4, v{vL}
        v_add_u32 v{t1}, s{S_T1}, v{t1}
        v_xor_b32 v{t1}, v{t1}, v{vL}
        v_and_b32 v{t1}, 7, v{t1}
        v_lshl_add_u32 v{self.vDX}, v{t1}, 4, v{t0}
        s_lshl_b32 s{S_DXL}, s{S_W}, 10
        s_add_u32 s{S_DXL}, s{S_DXL}, {hx(XS)}""")
        e(f"""
        s_and_b32 s{S_T0}, s{S_W}, 3
        s_lshl_b32 s{S_T1}, s{S_T0}, 3
        v_bfe_u32 v{t0}, v{vL}, 2, 3
        v_add_u32 v{t0}, s{S_T1}, v{t0}
        v_mul_u32_u24 v{t0}, 6144, v{t0}
        v_lshl_add_u32 v{t0}, v{vHf}, 6, v{t0}
        v_and_b32 v{t1}, 3, v{vL}
        v_lshl_add_u32 v{t0}, v{t1}, 4, v{t0}
        s_lshl_b32 s{S_T1}, s{S_HP}, 7
        v_add_u32 v{self.vDW}, s{S_T1}, v{t0}
        s_lshl_b32 s{S_T0}, s{S_T0}, 10
        s_mul_i32 s{S_T1}, s{S_BR}, 12288
        s_add_u32 s{S_DWL}, s{S_T0}, s{S_T1}
        s_add_u32 s{S_DWL}, s{S_DWL}, {hx(WSL)}
        v_mov_b32 v156, 0
        v_mov_b32 v157, 0
        v_mov_b32 v158, 0
        v_mov_b32 v159, 0
        s_waitcnt lgkmcnt(0)""")
        self.stamp(0)
        self.make_srd(sX, 28, 29, 4 << 20)
        e(f"""
        s_cmp_eq_u32 s{S_BR}, 1
        s_cselect_b32 s{sW}, s36, s30
        s_cselect_b32 s{sW+1}, s37, s31
        s_mov_b32 s{sW+2}, {hx(6 << 20)}
        s_mov_b32 s{sW+3}, 0x20000""")
        self.make_srd(sWS, 46, 47, WS_SIZE)
        lc = self.lab('noclear')
        e(f"""
        s_or_b32 s{S_T0}, s2, s{S_W}
        s_cmp_lg_u32 s{S_T0}, 0
        s_cbranch_scc1 {lc}""")
        for i in range(8):
            e(f"""
            s_mov_b32 s{S_T1}, {hx(FLG_OFF + i * 1024)}
            buffer_store_dwordx4 v[156:159], v{vL16}, {srd(sWS)}, s{S_T1} offen sc1 ;@skip""")
        e(f'{lc}:')
        e('@vmclear')
        self.dma_x_const(0, 0)
        self.dma_w_const(0)
        self.dma_x_const(0, 1)
        e(f"""
        s_cmp_eq_u32 s{S_BR}, 1
        s_cselect_b32 s{sT}, s40, s32
        s_cselect_b32 s{sT+1}, s41, s33
        s_movk_i32 s{sT+2}, 2048
        s_cselect_b32 s{sT+2}, s{sT+2}, 0x10000
        s_mov_b32 s{sT+3}, 0x20000
        s_and_b32 s{S_T0}, s{S_W}, 3
        s_lshl_b32 s{S_T0}, s{S_T0}, 10
        s_lshl_b32 s{S_T1}, s{S_HP}, 12
        s_add_u32 s{S_T1}, s{S_T1}, s{S_T0}
        s_add_u32 s{S_T0}, s{S_T0}, {hx(WPHI)}
        s_lshl_b32 s{S_T2}, s{S_TT}, 10
        s_add_u32 s{S_T3}, s{S_T2}, {hx(GW)}
        s_cmp_eq_u32 s{S_BR}, 1
        s_cselect_b32 s{S_T1}, s{S_T2}, s{S_T1}
        s_cselect_b32 m0, s{S_T3}, s{S_T0}
        s_nop 0
        buffer_load_dwordx4 v{vL16}, {srd(sT)}, s{S_T1} offen lds ;@first""")
        for sp in range(-3, 0):
            self.dma_w_const(sp + 4)
            u = (sp + 5) >> 1
            h = (sp + 1) & 1
            self.dma_x_const(u, h)
        if self.cfg.get('code_prefetch', True):
            e(f"""
            s_getpc_b64 s[24:25]
            L_pcbase:
            s_mov_b32 s26, L_codeend-L_pcbase
            s_mov_b32 s27, 0x20000
            v_lshlrev_b32 v{vT+1}, 7, v0
            buffer_load_dword v{self.vDummy}, v{vT+1}, {srd(sT)}, 0 offen""")
        if self.cfg.get('pf', 0):
            self.input_prefetch()
        if self.cfg.get('mallpf', 1) == 2:
            lq = self.lab('nomp')
            e(f's_cmp_eq_u32 s{S_BR}, 0')
            e(f's_cbranch_scc0 {lq}')
            self.mall_prefetch(vT + 1)
            e(f'{lq}:')
        e(f"""
        v_lshlrev_b32 v{vT+1}, 2, v0
        v_add_u32 v{vT+1}, {hx(LOG)}, v{vT+1}
        ds_write_b32 v{vT+1}, v158
        s_mov_b32 s{S_L2E}, {hx(f2u(L2E))}
        s_mov_b32 s{S_QS}, {hx(f2u(QS))}
        s_mov_b32 s{S_4096}, 4096""")
        e(f"""
        v_bfe_u32 v{t0}, v{vL}, 2, 2
        v_lshlrev_b32 v{t0}, 6, v{t0}
        v_bfe_u32 v{t1}, v{vL}, 4, 1
        v_lshl_add_u32 v{t0}, v{t1}, 5, v{t0}
        v_and_b32 v{t1}, 3, v{vL}
        v_lshl_add_u32 v{t0}, v{t1}, 3, v{t0}
        v_lshl_add_u32 v{self.vWr}, v{vHf}, 10, v{t0}
        s_mul_i32 s{S_T0}, s{S_BR}, 12288
        s_lshl_b32 s{S_T1}, s{S_HD}, 9
        s_add_u32 s{S_T0}, s{S_T0}, s{S_T1}
        s_add_u32 s{S_T0}, s{S_T0}, {hx(WSL)}
        v_add_u32 v{self.vWr}, s{S_T0}, v{self.vWr}""")
        e(f"""
        v_and_b32 v{t0}, 31, v{vL}
        s_lshl_b32 s{S_T0}, s{S_TT}, 6
        v_add_u32 v{t0}, s{S_T0}, v{t0}
        v_lshlrev_b32 v{t0}, 7, v{t0}
        v_bfe_u32 v{t1}, v{vL}, 1, 3
        v_xor_b32 v{t1}, v{t1}, v{vHf}""")
        for sg in range(4):
            e(f"""
            v_xor_b32 v{t2}, {2*sg}, v{t1}
            v_lshl_add_u32 v{self.vXr+sg}, v{t2}, 4, v{t0}""")
        e(f"""
        s_lshl_b32 s{S_T0}, s{S_C}, 5
        s_add_u32 s{S_T0}, s{S_T0}, {hx(GW)}
        v_lshlrev_b32 v{t0}, 4, v{vHf}
        v_add_u32 v{self.vGa}, s{S_T0}, v{t0}
        v_mov_b32 v{self.GACC}, 0
        v_mov_b32 v{self.GACC+1}, 0""")
        for r in range(0, 96):
            e(f'v_mov_b32 v{r}, 0')
        self.make_srd(sOUT, 42, 43, 4 << 20)
        self.make_srd(sDBG, 44, 45, 256)
        e(f"""
        s_mov_b32 s{S_WC}, 0
        s_mov_b32 s{S_XC}, 0
        s_mov_b32 s{S_XN}, 16384
        s_mov_b32 s{S_XNN}, 32768
        s_mov_b32 s{S_WK}, {hx(4 * 196608)}
        s_mov_b32 s{S_U}, 0
        v_mov_b32 v{self.vWa}, v{self.vWr}
        v_mov_b32 v{self.vXa}, v{self.vXr}
        @wait first
        s_waitcnt lgkmcnt(0)
        s_barrier""")
        self.stamp(1)
        lc = self.lab('nopub')
        e(f"""
        s_or_b32 s{S_T0}, s2, s{S_W}
        s_cmp_lg_u32 s{S_T0}, 0
        s_cbranch_scc1 {lc}
        v_mov_b32 v{t0}, 1
        buffer_store_dword v{t0}, off, {srd(sDBG)}, 0 sc1 ;@skip
        {lc}:""")
        F0 = self.F[0]
        e(self.frag_reads(F0, 0))
        e(f'ds_read_b128 {vr(self.GWF)}, v{self.vGa}')
        e('s_waitcnt lgkmcnt(0)')

    def input_prefetch(self):
        e = self.emit
        t0 = self.vT
        mode = self.cfg.get('pf')
        e(f'''
        s_lshl_b32 s{S_T0}, s2, 3
        s_add_u32 s{S_T0}, s{S_T0}, s{S_W}''')
        if mode == 2:
            e(f'''
            s_lshl_b32 s{S_T0}, s{S_W}, 8
            s_add_u32 s{S_T0}, s{S_T0}, s2''')
        e(f'''
        s_mov_b32 s{sT}, s28
        s_mov_b32 s{sT+1}, s29
        s_mov_b32 s{sT+2}, {hx(4 << 20)}
        s_cmp_ge_u32 s{S_T0}, 512
        s_cselect_b32 s{sT}, s30, s{sT}
        s_cselect_b32 s{sT+1}, s31, s{sT+1}
        s_cselect_b32 s{sT+2}, {hx(6 << 20)}, s{sT+2}
        s_cselect_b32 s{S_T1}, 512, 0
        s_cmp_ge_u32 s{S_T0}, 1280
        s_cselect_b32 s{sT}, s36, s{sT}
        s_cselect_b32 s{sT+1}, s37, s{sT+1}
        s_cselect_b32 s{S_T1}, 1280, s{S_T1}
        s_sub_u32 s{S_T0}, s{S_T0}, s{S_T1}
        s_lshl_b32 s{S_T0}, s{S_T0}, 13
        v_lshlrev_b32 v{t0}, 7, v{self.vL}
        buffer_load_dword v{self.vDummy}, v{t0}, {srd(sT)}, s{S_T0} offen''')

    def dma_x_const(self, u, h):
        self.emit(f'''
        s_add_u32 m0, s{S_DXL}, {hx((u % 3) * 16384 + h * 8192)}
        s_mov_b32 s{S_T0}, {hx(h * 131072 + u * 128)}
        buffer_load_dwordx4 v{self.vDX}, {srd(sX)}, s{S_T0} offen lds''')

    def dma_w_const(self, st):
        for i in range(3):
            self.emit(f'''
            s_add_u32 m0, s{S_DWL}, {hx((st % 4) * 24576 + i * 4096)}
            s_mov_b32 s{S_T0}, {hx(st * 196608 + i * 2048)}
            buffer_load_dwordx4 v{self.vDW}, {srd(sW)}, s{S_T0} offen lds''')

    def frag_reads(self, F, step):
        o = step * 2048
        L = [f'ds_read_b128 {vr(F["x0"])}, v{self.vXa}',
             f'ds_read_b64_tr_b16 {vr(F["wq"], 2)}, v{self.vWa} offset:{o}',
             f'ds_read_b64_tr_b16 {vr(F["wq"] + 2, 2)}, v{self.vWa} offset:{o + 256}',
             f'ds_read_b128 {vr(F["x1"])}, v{self.vXa} offset:4096',
             f'ds_read_b64_tr_b16 {vr(F["wk"], 2)}, v{self.vWa} offset:{o + 4096}',
             f'ds_read_b64_tr_b16 {vr(F["wk"] + 2, 2)}, v{self.vWa} offset:{o + 4096 + 256}',
             f'ds_read_b64_tr_b16 {vr(F["wv"], 2)}, v{self.vWa} offset:{o + 8192}',
             f'ds_read_b64_tr_b16 {vr(F["wv"] + 2, 2)}, v{self.vWa} offset:{o + 8192 + 256}']
        return L

    def gemm_mfmas(self, F):
        if 'mf16' in self.cfg.get('exp', ''):
            pairs = [(self.Q0, F['wq'], F['x0']), (self.Q1, F['wq'], F['x1']), (self.K0, F['wk'], F['x0']),
                     (self.K1, F['wk'], F['x1']), (self.V0, F['x0'], F['wv']), (self.V1, F['x1'], F['wv'])]
            L = []
            for i, (d, A, B) in enumerate(pairs):
                d2, A2, B2 = pairs[(i + 3) % 6]
                o = 4 * self.par16
                L.append(mf16(d + o, A, B) + '\n' + mf16(d2 + 8 + o, A2, B2))
            self.par16 ^= 1
            return L
        return [mf32(self.Q0, F['wq'], F['x0']), mf32(self.Q1, F['wq'], F['x1']),
                mf32(self.K0, F['wk'], F['x0']), mf32(self.K1, F['wk'], F['x1']),
                mf32(self.V0, F['x0'], F['wv']), mf32(self.V1, F['x1'], F['wv'])]

    def gate_dots(self, F, sigma):
        l = self.lab('nogate')
        L = [f's_cmp_eq_u32 s{S_C}, {sigma}', f's_cbranch_scc0 {l}']
        for i in range(4):
            L.append(f'v_dot2_f32_bf16 v{self.GACC}, v{F["x0"]+i}, v{self.GWF+i}, v{self.GACC}')
            L.append(f'v_dot2_f32_bf16 v{self.GACC+1}, v{F["x1"]+i}, v{self.GWF+i}, v{self.GACC+1}')
        L.append(f'{l}:')
        return L

    def gemm_step(self, sigma, wdma=True, xdma=True, wait=8, last=False, extra=()):
        e = self.emit
        cur = self.F[sigma & 1]
        nxt = self.F[(sigma + 1) & 1]
        mf = self.gemm_mfmas(cur)
        second = sigma & 1
        pre = []
        if second and not last:
            pre += [f's_add_u32 s{S_T1}, s{S_WC}, 24576',
                    f's_cmp_eq_u32 s{S_T1}, 98304',
                    f's_cselect_b32 s{S_T1}, 0, s{S_T1}',
                    f'v_add_u32 v{self.vWa}, s{S_T1}, v{self.vWr}']
        xs = S_XN if sigma == 3 else S_XC
        if not last:
            pre += [f'v_add_u32 v{self.vXa}, s{xs}, v{self.vXr + ((sigma + 1) & 3)}']
        reads = self.frag_reads(nxt, 0 if second else 1) if not last else []
        dw, dx = [], []
        if second and wdma:
            dw += [f's_add_u32 s{S_T2}, s{S_DWL}, s{S_WC}']
            for i in range(3):
                dw += [f's_add_u32 m0, s{S_T2}, {i * 4096}',
                       f's_add_u32 s{S_T0}, s{S_WK}, {i * 2048}',
                       f'buffer_load_dwordx4 v{self.vDW}, {srd(sW)}, s{S_T0} offen lds']
        if second and xdma:
            if sigma == 1:
                dx += [f's_add_u32 s{S_T2}, s{S_DXL}, s{S_XNN}',
                       f's_add_u32 m0, s{S_T2}, 8192',
                       f's_lshl_b32 s{S_T0}, s{S_U}, 7',
                       f's_add_u32 s{S_T0}, s{S_T0}, {hx(131072 + 256)}']
            else:
                dx += [f's_add_u32 m0, s{S_DXL}, s{S_XC}',
                       f's_lshl_b32 s{S_T0}, s{S_U}, 7',
                       f's_add_u32 s{S_T0}, s{S_T0}, 384']
            dx += [f'buffer_load_dwordx4 v{self.vDX}, {srd(sX)}, s{S_T0} offen lds']
        post = []
        if second and not last:
            if wdma:
                post.append(f's_add_u32 s{S_WK}, s{S_WK}, {hx(196608)}')
            post.append(f's_mov_b32 s{S_WC}, s{S_T1}')
        e(pre)
        e(mf[0]); e(reads[0:3])
        e(mf[1]); e(reads[3:6])
        e(mf[2]); e(reads[6:8])
        self.emit(self.gate_dots(cur, sigma))
        if sigma == 3 and not last:
            e(f'v_add_u32 v{self.vGa}, 128, v{self.vGa}')
            e(f'ds_read_b128 {vr(self.GWF)}, v{self.vGa}')
        if second:
            e(mf[3]); e(dw[:7])
            e(mf[4]); e(dw[7:] + dx + post + list(extra))
            e(mf[5])
            if not last:
                e('s_waitcnt lgkmcnt(0)')
        else:
            e(mf[3]); e(mf[4]); e(mf[5])
            if wait is None:
                e('s_waitcnt lgkmcnt(0)')
            else:
                e(f's_waitcnt vmcnt({wait}) lgkmcnt(0)')
                e('s_barrier')

    def gemm_rotate(self):
        self.emit(f'''
        s_mov_b32 s{S_T0}, s{S_XC}
        s_mov_b32 s{S_XC}, s{S_XN}
        s_mov_b32 s{S_XN}, s{S_XNN}
        s_mov_b32 s{S_XNN}, s{S_T0}
        s_add_u32 s{S_U}, s{S_U}, 1''')

    def gemm_loop(self):
        e = self.emit
        e('L_gemm:')
        for sg in range(4):
            self.gemm_step(sg)
        self.gemm_rotate()
        e(f'''
        s_cmp_lt_u32 s{S_U}, 13
        s_cbranch_scc1 L_gemm''')
        self.gemm_step(0); self.gemm_step(1); self.gemm_step(2); self.gemm_step(3, xdma=False)
        self.gemm_rotate()
        self.gemm_step(0, wait=7)
        l0, l1 = self.lab('dbgw'), self.lab('dbgx')
        self.gemm_step(1, wdma=False, xdma=False,
                       extra=[f's_cmp_eq_u32 s{S_W}, 4', f's_cbranch_scc1 {l0}',
                              f'buffer_load_dword v{self.vDb}, off, {srd(sX)}, 0',
                              f's_branch {l1}', f'{l0}:',
                              f'buffer_load_dword v{self.vDb}, off, {srd(sDBG)}, 0 sc1', f'{l1}:'])
        self.gemm_step(2, wait=4)
        self.gemm_step(3, wdma=False, xdma=False)
        self.gemm_rotate()
        self.gemm_step(0, wait=1)
        self.gemm_step(1, wdma=False, xdma=False)
        self.gemm_step(2, wait=None)
        self.gemm_step(3, wdma=False, xdma=False, last=True)
        t0 = self.vT
        self.stamp(2)
        e(f'''
        v_permlane32_swap_b32 v{self.GACC}, v{self.GACC+1}
        s_lshl_b32 s{S_T0}, s{S_TT}, 8
        s_lshl_b32 s{S_T1}, s{S_C}, 9
        s_add_u32 s{S_T0}, s{S_T0}, s{S_T1}
        s_add_u32 s{S_T0}, s{S_T0}, {hx(LOGP)}
        v_lshl_add_u32 v{t0}, v{self.vL}, 2, s{S_T0}
        v_add_f32 v{self.GACC}, v{self.GACC}, v{self.GACC+1}
        ds_write_b32 v{t0}, v{self.GACC}''')
        self.stamp(3)

    Sa, Sb, Ca, Cb, Oa, Ob = 0, 16, 32, 48, 64, 80
    QF = 96
    Pa, Pb = 112, 120
    la, lb = 128, 132
    ONES = 136
    KVB = [140, 156, 172, 188]
    vKV = 204
    vMa, vMb = 205, 206
    vA = 207

    def epi_B(self):
        e = self.emit
        t0 = self.vT
        e('L_epiB:')
        e(f'''
        s_lshl_b32 s{S_T0}, s{S_HEAD}, 18
        s_lshl_b32 s{S_T1}, s{S_MB}, 14
        s_add_u32 s{S_T0}, s{S_T0}, s{S_T1}
        s_lshl_b32 s{S_T1}, s{S_TT}, 13
        s_add_u32 s{S_T0}, s{S_T0}, s{S_T1}
        v_add_u32 v{t0}, s{S_T0}, v{self.vL16}''')
        kf, vf = 112, 128
        for tau, acc in ((0, self.K0), (1, self.K1)):
            for i in range(8):
                e(cvt(kf + tau * 8 + i, acc + 2 * i, acc + 2 * i + 1))
            so = '0' if tau == 0 else f's{S_4096}'
            e(f'buffer_store_dwordx4 {vr(kf + tau * 8)}, v{t0}, {srd(sWS)}, {so} offen sc1')
            e(f'buffer_store_dwordx4 {vr(kf + tau * 8 + 4)}, v{t0}, {srd(sWS)}, {so} offen offset:1024 sc1')
        for tau, acc in ((0, self.V0), (1, self.V1)):
            for i in range(8):
                e(cvt(vf + tau * 8 + i, acc + 2 * i, acc + 2 * i + 1))
            so = '0' if tau == 0 else f's{S_4096}'
            e(f'buffer_store_dwordx4 {vr(vf + tau * 8)}, v{t0}, {srd(sWS)}, {so} offen offset:2048 sc1')
            e(f'buffer_store_dwordx4 {vr(vf + tau * 8 + 4)}, v{t0}, {srd(sWS)}, {so} offen offset:3072 sc1')
        e(f'''
        s_lshl_b32 s{S_T0}, s{S_HD}, 1
        s_add_u32 s{S_T0}, s{S_T0}, s{S_TT}
        s_lshl_b32 s{S_T0}, s{S_T0}, 12
        s_add_u32 s{S_T0}, s{S_T0}, {QX}
        v_add_u32 v{t0+1}, s{S_T0}, v{self.vL16}''')
        for tau, acc in ((1, self.Q1), (0, self.Q0)):
            dst = self.QF + (0 if tau == 1 else 8)
            for r in range(16):
                e(f'v_mul_f32 v{acc+r}, s{S_QS}, v{acc+r}')
            for i in range(8):
                e(cvt(dst + i, acc + 2 * i, acc + 2 * i + 1))
            e(f'ds_write_b128 v{t0+1}, {vr(dst)} offset:{tau * 2048}')
            e(f'ds_write_b128 v{t0+1}, {vr(dst + 4)} offset:{tau * 2048 + 1024}')
        e('s_waitcnt vmcnt(0)')
        l = self.lab('dbgok')
        e(f'''
        s_cmp_lg_u32 s{S_W}, 4
        s_cbranch_scc1 {l}
        v_cmp_ne_u32 vcc, 1, v{self.vDb}
        s_cbranch_vccz {l}
        v_mov_b32 v{t0+2}, 0''')
        self.poll(t0 + 2, 0, self.vDb, srdb=sDBG)
        e(f'{l}:')
        self.count_and_flag(0, 3, f'''
        s_lshl_b32 s{S_T0}, s{S_HP}, 7
        s_lshl_b32 s{S_T1}, s{S_MB}, 2
        s_add_u32 s{S_T0}, s{S_T0}, s{S_T1}
        s_add_u32 s{S_T0}, s{S_T0}, {hx(F1_OFF)}''', t0 + 2, t0 + 3)
        if self.cfg.get('wopf', 3) == 2:
            self.wo_prefetch(t0 + 2)
        e('''
        s_waitcnt lgkmcnt(0)
        s_barrier
        s_branch L_attn''')

    def wo_prefetch(self, t):
        e = self.emit
        e(f'''
        s_and_b32 s{S_T0}, s2, 7
        s_lshr_b32 s{S_T1}, s2, 3
        s_lshr_b32 s{S_T2}, s{S_T0}, 2
        s_lshl_b32 s{S_T2}, s{S_T2}, 3
        s_lshr_b32 s{S_T3}, s{S_T1}, 2
        s_add_u32 s{S_T2}, s{S_T2}, s{S_T3}
        s_lshl_b32 s{S_T2}, s{S_T2}, 7
        s_and_b32 s{S_T1}, s{S_T1}, 3
        s_lshl_b32 s{S_T1}, s{S_T1}, 2
        s_and_b32 s{S_T0}, s{S_W}, 3
        s_add_u32 s{S_T1}, s{S_T1}, s{S_T0}
        s_lshl_b32 s{S_T1}, s{S_T1}, 17
        s_add_u32 s{S_T2}, s{S_T2}, s{S_T1}
        v_lshlrev_b32 v{t}, 11, v{self.vL}
        s_mov_b32 s{sT}, s34
        s_mov_b32 s{sT+1}, s35
        s_mov_b32 s{sT+2}, {hx(2 << 20)}
        s_mov_b32 s{sT+3}, 0x20000
        buffer_load_dword v{self.vDummy}, v{t}, {srd(sT)}, s{S_T2} offen ;@skip
        s_mov_b32 s{sT}, s38
        s_mov_b32 s{sT+1}, s39
        buffer_load_dword v{self.vDummy}, v{t}, {srd(sT)}, s{S_T2} offen ;@skip''')

    def mall_prefetch(self, t):
        e = self.emit
        e(f'''
        s_lshl_b32 s{S_T0}, s2, 2
        s_and_b32 s{S_T1}, s{S_W}, 3
        s_add_u32 s{S_T0}, s{S_T0}, s{S_T1}
        s_cmp_ge_u32 s{S_T0}, 512
        s_cselect_b32 s{sT}, s38, s34
        s_cselect_b32 s{sT+1}, s39, s35
        s_mov_b32 s{sT+2}, {hx(2 << 20)}
        s_mov_b32 s{sT+3}, 0x20000
        s_and_b32 s{S_T0}, s{S_T0}, 511
        s_lshl_b32 s{S_T0}, s{S_T0}, 12
        v_lshlrev_b32 v{t}, 7, v{self.vL}
        s_mov_b32 exec_hi, 0
        buffer_load_dword v{self.vDummy}, v{t}, {srd(sT)}, s{S_T0} offen ;@skip
        s_mov_b64 exec, -1''')

    def spf_base(self, lo, hi):
        return [f's_and_b32 s{S_T0}, s2, 7',
                f's_lshr_b32 s{S_T1}, s2, 3',
                f's_lshr_b32 s{S_T2}, s{S_T0}, 2',
                f's_lshl_b32 s{S_T2}, s{S_T2}, 3',
                f's_lshr_b32 s{S_T3}, s{S_T1}, 2',
                f's_add_u32 s{S_T2}, s{S_T2}, s{S_T3}',
                f's_lshl_b32 s{S_T2}, s{S_T2}, 7',
                f's_and_b32 s{S_T1}, s{S_T1}, 3',
                f's_lshl_b32 s{S_T1}, s{S_T1}, 3',
                f's_add_u32 s{S_T1}, s{S_T1}, s{S_W}',
                f's_lshl_b32 s{S_T1}, s{S_T1}, 16',
                f's_add_u32 s{S_T2}, s{S_T2}, s{S_T1}',
                f's_add_u32 s{S_PB}, s{lo}, s{S_T2}',
                f's_addc_u32 s{S_PB+1}, s{hi}, 0']

    def spf_loads(self, r0, n):
        L = []
        for r in range(r0, min(r0 + n, 32)):
            x = [f's_load_dword s{S_PD}, s[{S_PB}:{S_PB+1}], {hx(r * 2048)}']
            if self.cfg.get('spf2', 0):
                x.append(f's_load_dword s{S_PD+1}, s[{S_PB}:{S_PB+1}], {hx(r * 2048 + 64)}')
            L.append(x)
        return L

    def make_ident(self, I0, t):
        e = self.emit
        e(f'''
        v_and_b32 v{t}, 31, v{self.vL}
        v_lshlrev_b32 v{t+1}, 2, v{self.vHf}
        v_sub_u32 v{t}, v{t}, v{t+1}
        v_and_b32 v{t+1}, 1, v{t}
        v_lshlrev_b32 v{t+1}, 4, v{t+1}
        v_mov_b32 v{t+2}, 0x3f80
        v_lshlrev_b32 v{t+1}, v{t+1}, v{t+2}
        v_ashrrev_i32 v{t}, 1, v{t}''')
        for s in range(2):
            for i in range(4):
                key = 8 * s + (i & 1) + 4 * (i >> 1)
                e(f'v_cmp_eq_u32 vcc, {key}, v{t}')
                e(f'v_cndmask_b32 v{I0 + 4 * s + i}, 0, v{t+1}, vcc')

    def make_ones16(self, d, t):
        e = self.emit
        e(f'''
        v_lshrrev_b32 v{t}, 2, v{self.vL}
        v_lshrrev_b32 v{t+1}, 4, v{self.vL}
        v_xor_b32 v{t}, v{t}, v{t+1}
        v_and_b32 v{t}, 1, v{t}
        v_mov_b32 v{t+1}, 0x3f803f80
        v_cmp_eq_u32 vcc, 0, v{t}''')
        for i in range(4):
            e(f'v_cndmask_b32 v{d+i}, 0, v{t+1}, vcc')

    def dual_softmax(self, X, E, P1, P2, t):
        e = self.emit
        mx, nm, u, w = t, t + 1, t + 2, t + 3
        e(f'v_max3_f32 v{mx}, v{X}, v{X+1}, v{X+2}')
        e(f'v_max3_f32 v{nm}, -v{X}, -v{X+1}, -v{X+2}')
        for i in range(3, 15, 2):
            e(f'v_max3_f32 v{mx}, v{mx}, v{X+i}, v{X+i+1}')
            e(f'v_max3_f32 v{nm}, v{nm}, -v{X+i}, -v{X+i+1}')
        e(f'v_max_f32 v{mx}, v{mx}, v{X+15}')
        e(f'v_max_f32 v{nm}, v{nm}, -v{X+15}'.replace('v_max_f32', 'v_max_f32_e64'))
        e(f'''
        v_permlane32_swap_b32 v{mx}, v{nm}
        v_max_f32 v{mx}, v{mx}, v{nm}
        v_mov_b32 v{nm}, v{mx}
        v_permlane32_swap_b32 v{mx}, v{nm}
        v_mul_f32 v{mx}, s{S_L2E}, v{mx}
        v_mul_f32 v{nm}, s{S_L2E}, v{nm}''')
        for r in range(16):
            e(f'v_fma_f32 v{E+r}, v{X+r}, s{S_L2E}, -v{mx}')
            e(f'v_fma_f32 v{X+r}, v{X+r}, -s{S_L2E}, -v{nm}')
        for r in range(16):
            e(f'v_exp_f32 v{E+r}, v{E+r}')
            e(f'v_exp_f32 v{X+r}, v{X+r}')
        e(f'v_add_f32 v{u}, v{E}, v{E+1}')
        e(f'v_add_f32 v{w}, v{X}, v{X+1}')
        for r in range(2, 16):
            e(f'v_add_f32 v{u}, v{u}, v{E+r}')
            e(f'v_add_f32 v{w}, v{w}, v{X+r}')
        e(f'''
        v_permlane32_swap_b32 v{u}, v{w}
        v_add_f32 v{u}, v{u}, v{w}
        v_mov_b32 v{w}, v{u}
        v_permlane32_swap_b32 v{u}, v{w}
        v_rcp_f32 v{u}, v{u}
        v_rcp_f32 v{w}, v{w}''')
        for r in range(16):
            e(f'v_mul_f32 v{E+r}, v{E+r}, v{u}')
            e(f'v_mul_f32 v{X+r}, v{X+r}, v{w}')
        for i in range(8):
            e(cvt(P1 + i, E + 2 * i, E + 2 * i + 1))
            e(cvt(P2 + i, X + 2 * i, X + 2 * i + 1))

    def epi_A(self):
        e = self.emit
        t0 = self.vT
        qf, kf, vf, wf, I0, ones = 96, 112, 128, 144, 166, 174
        zf, zs = 178, 182
        E, P1, P2, T1, T2, tt = 186, 202, 210, 218, 234, 159
        kv1, kv2 = self.V0, self.V1
        e('L_epiA:')
        if self.cfg.get('wopf', 3) == 1:
            self.wo_prefetch(t0)
        if self.cfg.get('mallpf', 1) == 1:
            self.mall_prefetch(t0)
        e(f'''
        v_bfe_u32 v{t0}, v{self.vL}, 2, 2
        v_lshlrev_b32 v{t0}, 6, v{t0}
        v_bfe_u32 v{t0+1}, v{self.vL}, 4, 1
        v_lshl_add_u32 v{t0}, v{t0+1}, 5, v{t0}
        v_and_b32 v{t0+1}, 3, v{self.vL}
        v_lshl_add_u32 v{t0}, v{t0+1}, 3, v{t0}
        v_lshl_add_u32 v{t0}, v{self.vHf}, 8, v{t0}
        s_lshl_b32 s{S_T0}, s{S_HD}, 11
        s_add_u32 s{S_T0}, s{S_T0}, {hx(WPHI)}
        v_add_u32 v{t0}, s{S_T0}, v{t0}''')
        for s in range(2):
            e(f'ds_read_b64_tr_b16 {vr(wf + 4 * s, 2)}, v{t0} offset:{s * 1024}')
            e(f'ds_read_b64_tr_b16 {vr(wf + 4 * s + 2, 2)}, v{t0} offset:{s * 1024 + 512}')
        for base, accs in ((kf, (self.K0, self.K1)), (vf, (self.V0, self.V1)), (qf, (self.Q0, self.Q1))):
            for tau in range(2):
                for i in range(8):
                    e(cvt(base + tau * 8 + i, accs[tau] + 2 * i, accs[tau] + 2 * i + 1))
        self.make_ident(I0, tt)
        self.make_ones16(ones, tt)
        e(f'''
        s_mul_i32 s{S_T0}, s{S_TT}, 0x80008000
        s_waitcnt lgkmcnt(0)''')
        for i in range(8):
            e(f'v_xor_b32 v{wf+i}, s{S_T0}, v{wf+i}')
        for acc, fr in ((self.K0, kf), (self.K1, kf + 8), (self.Q0, qf), (self.Q1, qf + 8)):
            e(mf32(acc, wf, fr, 'z'))
            e(mf32(acc, wf + 4, fr + 4))
        for tau, acc in ((0, self.K0), (1, self.K1)):
            self.dual_softmax(acc, E, P1, P2, tt)
            e(mf32(T1, P1, I0, 'z')); e(mf32(T2, P2, I0, 'z'))
            e(mf32(T1, P1 + 4, I0 + 4)); e(mf32(T2, P2 + 4, I0 + 4))
            for i in range(8):
                e(cvt(P1 + i, T1 + 2 * i, T1 + 2 * i + 1))
            for i in range(8):
                e(cvt(P2 + i, T2 + 2 * i, T2 + 2 * i + 1))
            z = 'z' if tau == 0 else None
            e(mf32(kv1, vf + tau * 8, P1, z)); e(mf32(kv2, vf + tau * 8, P2, z))
            e(mf32(kv1, vf + tau * 8 + 4, P1 + 4)); e(mf32(kv2, vf + tau * 8 + 4, P2 + 4))
            e(mf16(zf, ones, P1, z)); e(mf16(zs, ones, P2, z))
            e(mf16(zf, ones, P1 + 4)); e(mf16(zs, ones, P2 + 4))
        e(f'''
        s_lshl_b32 s{S_T0}, s{S_HD}, 1
        s_xor_b32 s{S_T1}, s{S_TT}, 1
        s_add_u32 s{S_T0}, s{S_T0}, s{S_T1}
        s_lshl_b32 s{S_T1}, s{S_T0}, 12
        s_add_u32 s{S_T1}, s{S_T1}, {hx(KVX)}
        v_add_u32 v{t0}, s{S_T1}, v{self.vL16}
        s_lshl_b32 s{S_T0}, s{S_T0}, 8
        s_add_u32 s{S_T0}, s{S_T0}, {hx(KVZ)}
        v_lshlrev_b32 v{t0+1}, 2, v{self.vL}
        v_add_u32 v{t0+1}, s{S_T0}, v{t0+1}''')
        for q in range(4):
            e(f'ds_write_b128 v{t0}, {vr(kv2 + 4 * q)} offset:{q * 1024}')
        e(f'ds_write_b32 v{t0+1}, v{zs}')
        e(f'''
        s_lshl_b32 s{S_T0}, s{S_HD}, 1
        s_add_u32 s{S_T0}, s{S_T0}, s{S_TT}
        s_lshl_b32 s{S_T0}, s{S_T0}, 13
        s_add_u32 s{S_T0}, s{S_T0}, {hx(PHI)}
        s_lshl_b32 s{S_T1}, s{S_TT}, 11
        s_add_u32 s{S_T1}, s{S_T1}, s{S_T0}
        v_add_u32 v{t0+2}, s{S_T1}, v{self.vL16}
        v_xor_b32 v{t0+3}, 2048, v{t0+2}''')
        for tau, acc in ((0, self.Q0), (1, self.Q1)):
            self.dual_softmax(acc, E, P1, P2, tt)
            for s in range(2):
                e(f'ds_write_b128 v{t0+2}, {vr(P1 + 4 * s)} offset:{tau * 4096 + s * 1024}')
                e(f'ds_write_b128 v{t0+3}, {vr(P2 + 4 * s)} offset:{tau * 4096 + s * 1024}')
        e('''
        s_waitcnt lgkmcnt(0)
        s_barrier''')
        e(f'''
        s_lshl_b32 s{S_T0}, s{S_HD}, 1
        s_add_u32 s{S_T0}, s{S_T0}, s{S_TT}
        s_lshl_b32 s{S_T1}, s{S_T0}, 12
        s_add_u32 s{S_T1}, s{S_T1}, {hx(KVX)}
        v_add_u32 v{t0}, s{S_T1}, v{self.vL16}
        s_lshl_b32 s{S_T1}, s{S_T0}, 8
        s_add_u32 s{S_T1}, s{S_T1}, {hx(KVZ)}
        v_lshlrev_b32 v{t0+1}, 2, v{self.vL}
        v_add_u32 v{t0+1}, s{S_T1}, v{t0+1}
        s_lshl_b32 s{S_T1}, s{S_T0}, 12
        s_add_u32 s{S_T1}, s{S_T1}, {QX}
        v_add_u32 v{t0+2}, s{S_T1}, v{self.vL16}''')
        for q in range(4):
            e(f'ds_read_b128 {vr(T1 + 4 * q)}, v{t0} offset:{q * 1024}')
        e(f'ds_read_b32 v{zs}, v{t0+1}')
        for q in range(4):
            e(f'ds_read_b128 {vr(self.QF + 4 * q)}, v{t0+2} offset:{q * 1024}')
        e('s_waitcnt lgkmcnt(4)')
        for r in range(16):
            e(f'v_add_f32 v{kv1+r}, v{kv1+r}, v{T1+r}')
        e(f'v_add_f32 v{zf}, v{zf}, v{zs}')
        for i in range(8):
            e(cvt(P1 + i, kv1 + 2 * i, kv1 + 2 * i + 1))
        e(f'''
        s_lshl_b32 s{S_T1}, s{S_HP}, 4
        s_add_u32 s{S_T1}, s{S_T1}, s{S_MB}
        s_lshl_b32 s{S_T1}, s{S_T1}, 2
        s_add_u32 s{S_T1}, s{S_T1}, s{S_T0}
        s_lshl_b32 s{S_T1}, s{S_T1}, 11
        s_add_u32 s{S_T1}, s{S_T1}, {hx(KVP_OFF)}
        buffer_store_dwordx4 {vr(P1)}, v{self.vL16}, {srd(sWS)}, s{S_T1} offen sc1
        buffer_store_dwordx4 {vr(P1 + 4)}, v{self.vL16}, {srd(sWS)}, s{S_T1} offen offset:1024 sc1
        s_lshl_b32 s{S_T1}, s{S_HP}, 2
        s_add_u32 s{S_T1}, s{S_T1}, s{S_T0}
        s_lshl_b32 s{S_T1}, s{S_T1}, 4
        s_add_u32 s{S_T1}, s{S_T1}, s{S_MB}
        s_lshl_b32 s{S_T1}, s{S_T1}, 7
        s_add_u32 s{S_T1}, s{S_T1}, {hx(ZP_OFF)}
        v_lshlrev_b32 v{t0}, 2, v{self.vL}
        s_mov_b32 exec_hi, 0
        buffer_store_dword v{zf}, v{t0}, {srd(sWS)}, s{S_T1} offen sc1
        s_mov_b64 exec, -1
        s_waitcnt lgkmcnt(0)''')

    def kv_loads(self, slot, so):
        b = self.KVB[slot]
        return [f'buffer_load_dwordx4 {vr(b + 4 * q)}, v{self.vKV}, {srd(sWS)}, {so} offen offset:{q * 1024} sc1'
                .replace(' offset:0 ', ' ') for q in range(4)]

    def tile_off(self, dst, j_expr_sreg):
        return [f's_add_u32 s{dst}, s{j_expr_sreg}, s{S_ROT}',
                f's_and_b32 s{dst}, s{dst}, 31',
                f's_lshl_b32 s{dst}, s{dst}, 12',
                f's_cmp_ge_u32 s{j_expr_sreg}, 32',
                f's_cselect_b32 s{dst}, {hx(BIGOFF)}, s{dst}']

    def first_loads(self):
        e = self.emit
        for j in range(3):
            e(f's_mov_b32 s{S_J}, {j}')
            e(self.tile_off(S_T0, S_J))
            e(self.kv_loads(j, f's{S_T0}'))
        e(f's_mov_b32 s{S_J}, 3')

    def exp_block(self, S, P):
        L = []
        for q in range(4):
            for j in range(4):
                L.append(f'v_exp_f32 v{S + 4 * q + j}, v{S + 4 * q + j}')
            L.append(cvt(P + 2 * q, S + 4 * q, S + 4 * q + 1))
            L.append(cvt(P + 2 * q + 1, S + 4 * q + 2, S + 4 * q + 3))
        return L

    def wave_rowmax(self, S, dst, t):
        e = self.emit
        e(f'v_max3_f32 v{dst}, v{S}, v{S+1}, v{S+2}')
        for i in range(3, 15, 2):
            e(f'v_max3_f32 v{dst}, v{dst}, v{S+i}, v{S+i+1}')
        e(f'v_max_f32 v{dst}, v{dst}, v{S+15}')

    def cross_half_max(self, d, t):
        self.emit(f'''
        v_mov_b32 v{t}, v{d}
        v_permlane32_swap_b32 v{d}, v{t}
        v_max_f32 v{d}, v{d}, v{t}''')

    def attention(self):
        e = self.emit
        Sa, Sb, Ca, Cb, Oa, Ob = self.Sa, self.Sb, self.Ca, self.Cb, self.Oa, self.Ob
        Qa, Qb = self.QF, self.QF + 8
        Pa, Pb, la, lb, ONES = self.Pa, self.Pb, self.la, self.lb, self.ONES
        KVB = self.KVB
        tA = self.vA
        e('L_attn:')
        self.stamp(4)
        self.make_ones16(ONES, tA)
        e(f'''
        s_lshl_b32 s{S_T0}, s{S_HEAD}, 18
        s_lshl_b32 s{S_T1}, s{S_BR}, 17
        s_add_u32 s{S_T0}, s{S_T0}, s{S_T1}
        v_add_u32 v{self.vKV}, s{S_T0}, v{self.vL16}
        s_lshl_b32 s{S_ROT}, s{S_MB}, 1
        s_mov_b32 s{S_RETRY}, 0
        v_and_b32 v{tA}, 15, v{self.vL}
        v_lshlrev_b32 v{tA}, 2, v{tA}
        s_lshl_b32 s{S_T0}, s{S_HP}, 7
        v_add_u32 v{tA}, s{S_T0}, v{tA}''')
        self.poll(tA, F1_OFF, tA + 1)
        self.stamp(5)
        ln = self.lab('noF1b')
        e(f'''
        s_cmp_eq_u32 s{S_BR}, 0
        s_cbranch_scc0 {ln}''')
        self.count_and_flag(1, 3, f'''
        s_lshl_b32 s{S_T0}, s{S_HP}, 7
        s_lshl_b32 s{S_T1}, s{S_MB}, 2
        s_add_u32 s{S_T0}, s{S_T0}, s{S_T1}
        s_add_u32 s{S_T0}, s{S_T0}, {hx(F1B_OFF)}''', tA, tA + 1)
        e(f'{ln}:')
        self.first_loads()
        K0 = KVB[0]
        e('s_waitcnt vmcnt(10)')
        e(mf32(Sa, K0, Qa, 'z')); e(mf32(Sb, K0, Qb, 'z'))
        e(mf32(Sa, K0 + 4, Qa + 4)); e(mf32(Sb, K0 + 4, Qb + 4))
        self.wave_rowmax(Sa, self.vMa, tA)
        self.wave_rowmax(Sb, self.vMb, tA)
        self.cross_half_max(self.vMa, tA)
        self.cross_half_max(self.vMb, tA)
        e(f'v_add_f32 v{self.vMa}, {hx(f2u(MOFF))}, v{self.vMa}')
        e(f'v_add_f32 v{self.vMb}, {hx(f2u(MOFF))}, v{self.vMb}')
        e('L_attn_go:')
        V3 = KVB[3] + 8
        for r in range(8):
            e(f'v_mov_b32 v{V3 + r}, 0')
            e(f'v_mov_b32 v{Pb + r}, 0')
        for r in range(4):
            e(f'v_mov_b32 v{la + r}, 0')
            e(f'v_mov_b32 v{lb + r}, 0')
        for r in range(16):
            e(f'v_sub_f32 v{Ca + r}, 0, v{self.vMa}')
        e(mf32(Oa, V3, V3, 'z')); e(mf32(Ob, V3, V3, 'z'))
        for r in range(16):
            e(f'v_sub_f32 v{Cb + r}, 0, v{self.vMb}')
        e(mf32(Sa, K0, Qa, Ca)); e(mf32(Sa, K0 + 4, Qa + 4))
        e(f's_mov_b32 s{S_IT}, 0')
        e('L_attn_loop:')
        for i4 in range(4):
            cur, prev, nxt = KVB[i4], KVB[(i4 - 1) % 4], KVB[(i4 + 1) % 4]
            mfA = [mf32(Sb, cur, Qb, Cb), mf32(Sb, cur + 4, Qb + 4),
                   mf32(Ob, prev + 8, Pb), mf16(lb, ONES, Pb),
                   mf32(Ob, prev + 12, Pb + 4), mf16(lb, ONES, Pb + 4)]
            e(interleave(mfA, self.exp_block(Sa, Pa)))
            e(self.tile_off(S_T0, S_J))
            e(f's_add_u32 s{S_J}, s{S_J}, 1')
            e('s_waitcnt vmcnt(6)')
            mfB = [mf32(Sa, nxt, Qa, Ca), mf32(Sa, nxt + 4, Qa + 4),
                   mf32(Oa, cur + 8, Pa), mf16(la, ONES, Pa),
                   mf32(Oa, cur + 12, Pa + 4), mf16(la, ONES, Pa + 4)]
            body = interleave(mfB, self.exp_block(Sb, Pb))
            loads = self.kv_loads((i4 + 3) % 4, f's{S_T0}')
            out = []
            li = 0
            for n, x in enumerate(body):
                out.append(x)
                if n in (4, 9, 14, 19):
                    out.append(loads[li]); li += 1
            e(out)
        e(f'''
        s_add_u32 s{S_IT}, s{S_IT}, 1
        s_cmp_lt_u32 s{S_IT}, 8
        s_cbranch_scc1 L_attn_loop''')
        prev = KVB[3]
        e(mf32(Ob, prev + 8, Pb)); e(mf16(lb, ONES, Pb))
        e(mf32(Ob, prev + 12, Pb + 4)); e(mf16(lb, ONES, Pb + 4))
        e('s_waitcnt vmcnt(0)')
        self.stamp(6)
        e(f'v_add_f32 v{tA}, v{la}, v{lb}')
        e(f'v_pk_add_f32 {vr(Sa, 2)}, {vr(Oa, 2)}, {vr(Oa + 2, 2)}')
        for r in range(4, 32, 2):
            e(f'v_pk_add_f32 {vr(Sa, 2)}, {vr(Sa, 2)}, {vr(Oa + r, 2)}')
        e(f'''
        v_add_f32 v{tA}, v{tA}, v{Sa}
        v_add_f32 v{tA}, v{tA}, v{Sa+1}
        v_mov_b32 v{tA+1}, 0x207
        v_cmp_class_f32 vcc, v{tA}, v{tA+1}
        s_cbranch_vccz L_attn_done
        s_cmp_lg_u32 s{S_RETRY}, 0
        s_cbranch_scc1 L_attn_done
        s_mov_b32 s{S_RETRY}, 1''')
        e(f'''
        v_mov_b32 v{self.vMa}, 0xff800000
        v_mov_b32 v{self.vMb}, 0xff800000
        s_mov_b32 s{S_J}, 0
        L_truemax:''')
        e(self.tile_off(S_T0, S_J))
        e(self.kv_loads(0, f's{S_T0}')[:2])
        e('s_waitcnt vmcnt(0)')
        e(mf32(Sa, K0, Qa, 'z')); e(mf32(Sb, K0, Qb, 'z'))
        e(mf32(Sa, K0 + 4, Qa + 4)); e(mf32(Sb, K0 + 4, Qb + 4))
        for S, M in ((Sa, self.vMa), (Sb, self.vMb)):
            for i in range(0, 16, 2):
                e(f'v_max3_f32 v{M}, v{M}, v{S+i}, v{S+i+1}')
        e(f'''
        s_add_u32 s{S_J}, s{S_J}, 1
        s_cmp_lt_u32 s{S_J}, 32
        s_cbranch_scc1 L_truemax''')
        self.cross_half_max(self.vMa, tA)
        self.cross_half_max(self.vMb, tA)
        self.first_loads()
        e('''
        s_waitcnt vmcnt(10)
        s_branch L_attn_go
        L_attn_done:''')

    def finalize_attn(self):
        e = self.emit
        Oa, Ob, la, lb = self.Oa, self.Ob, self.la, self.lb
        tA = self.vA
        I0 = 240
        ACC = 224
        ZL = 208
        vAd = 216
        bufs = list(range(0, 64, 4)) + list(range(140, 204, 4))
        e(f'''
        v_and_b32 v{vAd}, 15, v{self.vL}
        v_lshlrev_b32 v{vAd}, 2, v{vAd}
        s_lshl_b32 s{S_T0}, s{S_HP}, 7
        v_add_u32 v{vAd}, s{S_T0}, v{vAd}''')
        self.poll(vAd, F1B_OFF, vAd + 1)
        self.stamp(7)
        e(f'''
        s_lshl_b32 s{S_T0}, s{S_HP}, 6
        s_lshl_b32 s{S_T1}, s{S_HD}, 1
        s_add_u32 s{S_T1}, s{S_T1}, s{S_BR}
        s_add_u32 s{S_T0}, s{S_T0}, s{S_T1}
        s_lshl_b32 s{S_T0}, s{S_T0}, 11
        s_add_u32 s{S_T0}, s{S_T0}, {hx(KVP_OFF)}''')
        for m in range(16):
            for s in range(2):
                b = bufs[m * 2 + s]
                e(f'buffer_load_dwordx4 {vr(b)}, v{self.vL16}, {srd(sWS)}, s{S_T0} offen' +
                  (f' offset:{s * 1024}' if s else '') + ' sc1')
            e(f's_add_u32 s{S_T0}, s{S_T0}, 8192')
        e(f'''
        s_lshl_b32 s{S_T0}, s{S_HP}, 2
        s_add_u32 s{S_T0}, s{S_T0}, s{S_T1}
        s_lshl_b32 s{S_T0}, s{S_T0}, 11
        s_add_u32 s{S_T0}, s{S_T0}, {hx(ZP_OFF)}
        v_and_b32 v{vAd}, 31, v{self.vL}
        v_lshlrev_b32 v{vAd}, 2, v{vAd}
        v_lshl_add_u32 v{vAd}, v{self.vHf}, 7, v{vAd}''')
        for i in range(8):
            e(f'buffer_load_dword v{ZL + i}, v{vAd}, {srd(sWS)}, s{S_T0} offen' +
              (f' offset:{i * 256}' if i else '') + ' sc1')
        self.make_ident(I0, vAd + 1)
        PH = 112
        e(f'''
        s_lshl_b32 s{S_T0}, s{S_HD}, 1
        s_add_u32 s{S_T0}, s{S_T0}, s{S_TT}
        s_lshl_b32 s{S_T0}, s{S_T0}, 13
        s_add_u32 s{S_T0}, s{S_T0}, {hx(PHI)}
        s_mul_i32 s{S_T1}, s{S_BR}, 6144
        s_add_u32 s{S_T0}, s{S_T0}, s{S_T1}
        v_add_u32 v{vAd}, s{S_T0}, v{self.vL16}
        s_lshl_b32 s{S_T1}, s{S_BR}, 13
        s_sub_u32 s{S_T0}, s{S_T0}, s{S_T1}
        s_add_u32 s{S_T0}, s{S_T0}, 4096
        v_add_u32 v{vAd+1}, s{S_T0}, v{self.vL16}
        ds_read_b128 {vr(PH)}, v{vAd}
        ds_read_b128 {vr(PH+4)}, v{vAd} offset:1024
        ds_read_b128 {vr(PH+8)}, v{vAd+1}
        ds_read_b128 {vr(PH+12)}, v{vAd+1} offset:1024''')
        e(f'''
        s_lshl_b32 s{S_T0}, s{S_TT}, 6
        s_lshl_b32 s{S_T1}, s{S_BR}, 5
        s_add_u32 s{S_T0}, s{S_T0}, s{S_T1}
        s_lshl_b32 s{S_T0}, s{S_T0}, 2
        s_add_u32 s{S_T0}, s{S_T0}, {hx(LOG)}
        v_and_b32 v{vAd+2}, 31, v{self.vL}
        v_lshlrev_b32 v{vAd+2}, 2, v{vAd+2}
        v_add_u32 v{vAd+2}, s{S_T0}, v{vAd+2}
        ds_read_b32 v{vAd+3}, v{vAd+2}''')
        vG = vAd + 3
        for O, l, M in ((Oa, la, self.vMa), (Ob, lb, self.vMb)):
            e(f'v_rcp_f32 v{l+1}, v{l}')
            e(f'v_log_f32 v{l+2}, v{l}')
            e(f'v_add_f32 v{l+2}, v{l+2}, v{M}')
            for r in range(16):
                e(f'v_mul_f32 v{O+r}, v{O+r}, v{l+1}')
        La, Lb = la + 2, lb + 2
        for n in range(32):
            e(f's_waitcnt vmcnt({8 + 31 - n})')
            e(mf32(ACC, bufs[n], I0 + 4 * (n & 1), 'z' if n == 0 else None))
        e('s_waitcnt vmcnt(0)')
        e(f'v_add_f32 v{ZL}, v{ZL}, v{ZL+1}')
        for i in range(2, 8):
            e(f'v_add_f32 v{ZL}, v{ZL}, v{ZL+i}')
        e(f'''
        v_mov_b32 v{ZL+1}, v{ZL}
        v_permlane32_swap_b32 v{ZL}, v{ZL+1}
        v_add_f32 v{ZL}, v{ZL}, v{ZL+1}
        v_cvt_pk_bf16_f32 v{ZL}, v{ZL}, v{ZL}
        s_lshl_b32 s{S_T0}, s{S_W}, 7
        s_add_u32 s{S_T0}, s{S_T0}, {hx(ZT)}
        v_and_b32 v{ZL+1}, 31, v{self.vL}
        v_lshlrev_b32 v{ZL+1}, 1, v{ZL+1}
        v_add_u32 v{ZL+1}, s{S_T0}, v{ZL+1}
        ds_write_b16 v{ZL+1}, v{ZL}
        v_lshlrev_b32 v{ZL+2}, 3, v{self.vHf}
        v_add_u32 v{ZL+2}, s{S_T0}, v{ZL+2}
        s_waitcnt lgkmcnt(0)''')
        ZF = 0
        for s in range(2):
            e(f'ds_read_b64 {vr(ZF + 4 * s, 2)}, v{ZL+2} offset:{s * 32}')
            e(f'ds_read_b64 {vr(ZF + 4 * s + 2, 2)}, v{ZL+2} offset:{s * 32 + 16}')
        KT = 8
        for i in range(8):
            e(cvt(KT + i, ACC + 2 * i, ACC + 2 * i + 1))
        e(f'''
        v_cmp_ne_u32 vcc, 0, v{self.ONES}
        s_waitcnt lgkmcnt(0)''')
        for i in range(8):
            e(f'v_cndmask_b32 v{ZF+i}, 0, v{ZF+i}, vcc')
        Na, Nb, Da, Db = 16, 32, 48, 52
        for N, D, P in ((Nb, Db, PH + 8), (Na, Da, PH)):
            e(mf32(N, KT, P, 'z')); e(mf32(N, KT + 4, P + 4))
            e(mf16(D, ZF, P, 'z')); e(mf16(D, ZF + 4, P + 4))
        e(f'''
        s_mul_i32 s{S_T0}, s{S_W}, {MRG_STRIDE}
        s_add_u32 s{S_T0}, s{S_T0}, {hx(MRG)}
        v_add_u32 v{vAd}, s{S_T0}, v{self.vL16}
        v_lshlrev_b32 v{vAd+1}, 3, v{self.vL}
        v_add_u32 v{vAd+1}, s{S_T0}, v{vAd+1}
        s_xor_b32 s{S_T1}, s{S_W}, 4
        s_mul_i32 s{S_T0}, s{S_T1}, {MRG_STRIDE}
        s_add_u32 s{S_T0}, s{S_T0}, {hx(MRG)}
        v_add_u32 v{vAd+4}, s{S_T0}, v{self.vL16}
        v_lshlrev_b32 v{vAd+5}, 3, v{self.vL}
        v_add_u32 v{vAd+5}, s{S_T0}, v{vAd+5}''')
        for q in range(4):
            e(f'ds_write_b128 v{vAd}, {vr(Ob + 4 * q)} offset:{q * 1024}')
        for q in range(4):
            e(f'ds_write_b128 v{vAd}, {vr(Nb + 4 * q)} offset:{4096 + q * 1024}')
        e(f'''
        v_mov_b32 v56, v{Lb}
        v_mov_b32 v57, v{Db}
        ds_write_b64 v{vAd+1}, v[56:57] offset:8192''')
        e(f'''
        v_mul_f32 v{vG}, s{S_L2E}, v{vG}
        v_exp_f32 v58, -v{vG}
        v_add_f32 v58, 1.0, v58
        v_rcp_f32 v58, v58
        v_sub_f32 v59, 1.0, v58
        s_waitcnt lgkmcnt(0)
        s_barrier''')
        self.stamp(8)
        RO, RN = 140, 156
        for q in range(4):
            e(f'ds_read_b128 {vr(RO + 4 * q)}, v{vAd+4} offset:{q * 1024}')
        e(f'ds_read_b64 v[56:57], v{vAd+5} offset:8192')
        for q in range(4):
            e(f'ds_read_b128 {vr(RN + 4 * q)}, v{vAd+4} offset:{4096 + q * 1024}')
        e(f'''
        s_waitcnt lgkmcnt(4)
        v_max_f32 v60, v{La}, v56
        v_sub_f32 v61, v{La}, v60
        v_sub_f32 v62, v56, v60
        v_exp_f32 v61, v61
        v_exp_f32 v62, v62
        v_add_f32 v63, v61, v62
        v_rcp_f32 v63, v63
        v_mul_f32 v63, v63, v59
        v_mul_f32 v61, v61, v63
        v_mul_f32 v62, v62, v63
        v_add_f32 v57, v57, v{Da}
        v_add_f32 v57, {hx(f2u(1e-6))}, v57
        v_rcp_f32 v57, v57
        v_mul_f32 v57, v57, v58''')
        for r in range(16):
            e(f'v_mul_f32 v{Oa+r}, v{Oa+r}, v61')
            e(f'v_fma_f32 v{Oa+r}, v{RO+r}, v62, v{Oa+r}')
        OBF, OAF = 96, 104
        for i in range(8):
            e(cvt(OBF + i, Oa + 2 * i, Oa + 2 * i + 1))
        e(f'''
        s_lshl_b32 s{S_T0}, s{S_MB}, 2
        s_lshl_b32 s{S_T1}, s{S_TT}, 1
        s_add_u32 s{S_T0}, s{S_T0}, s{S_T1}
        s_add_u32 s{S_T0}, s{S_T0}, s{S_BR}
        s_lshl_b32 s{S_T0}, s{S_T0}, 17
        s_lshl_b32 s{S_T1}, s{S_HEAD}, 11
        s_add_u32 s{S_T0}, s{S_T0}, s{S_T1}
        s_add_u32 s{S_T0}, s{S_T0}, {hx(O_OFF)}
        s_add_u32 s{S_T1}, s{S_T0}, 65536
        buffer_store_dwordx4 {vr(OBF)}, v{self.vL16}, {srd(sWS)}, s{S_T1} offen sc1
        buffer_store_dwordx4 {vr(OBF+4)}, v{self.vL16}, {srd(sWS)}, s{S_T1} offen offset:1024 sc1
        s_waitcnt lgkmcnt(0)''')
        for r in range(16):
            e(f'v_add_f32 v{Na+r}, v{Na+r}, v{RN+r}')
            e(f'v_mul_f32 v{Na+r}, v{Na+r}, v57')
        for i in range(8):
            e(cvt(OAF + i, Na + 2 * i, Na + 2 * i + 1))
        e(f'''
        buffer_store_dwordx4 {vr(OAF)}, v{self.vL16}, {srd(sWS)}, s{S_T0} offen sc1
        buffer_store_dwordx4 {vr(OAF+4)}, v{self.vL16}, {srd(sWS)}, s{S_T0} offen offset:1024 sc1''')

    def outproj(self):
        e = self.emit
        ACC0, ACC1 = 0, 16
        WB = [32, 40, 48, 56]
        OB = [64, 128]
        vD3, vR3, vR3b, vO3, vE = 200, 201, 202, 203, 204
        S_MB3, S_CT = S_MB, S_HP
        self.stamp(9)
        e('s_barrier')
        e(f'''
        s_lshl_b32 s{S_T2}, s{S_MB}, 7
        s_lshl_b32 s{S_T3}, s{S_HP}, 2
        s_add_u32 s{S_J}, s{S_T2}, s{S_T3}
        s_add_u32 s{S_J}, s{S_J}, {hx(F2_OFF)}
        s_and_b32 s{S_T0}, s2, 7
        s_lshr_b32 s{S_T1}, s2, 3
        s_and_b32 s{S_T2}, s{S_T0}, 3
        s_lshl_b32 s{S_T2}, s{S_T2}, 2
        s_and_b32 s{S_T3}, s{S_T1}, 3
        s_add_u32 s{S_MB3}, s{S_T2}, s{S_T3}
        s_lshr_b32 s{S_T2}, s{S_T0}, 2
        s_lshl_b32 s{S_T2}, s{S_T2}, 3
        s_lshr_b32 s{S_T3}, s{S_T1}, 2
        s_add_u32 s{S_CT}, s{S_T2}, s{S_T3}
        s_cmp_eq_u32 s{S_BR}, 1
        s_cselect_b32 s{sW}, s38, s34
        s_cselect_b32 s{sW+1}, s39, s35
        s_mov_b32 s{sW+2}, {hx(2 << 20)}
        s_mov_b32 s{sW+3}, 0x20000
        s_and_b32 s{S_T0}, s{S_W}, 3
        s_lshl_b32 s{S_T1}, s{S_T0}, 4
        v_bfe_u32 v{vD3}, v{self.vL}, 2, 3
        v_add_u32 v{vD3}, s{S_T1}, v{vD3}
        v_lshlrev_b32 v{vD3}, 11, v{vD3}
        v_lshl_add_u32 v{vD3}, v{self.vHf}, 6, v{vD3}
        v_and_b32 v{vE}, 3, v{self.vL}
        v_lshl_add_u32 v{vD3}, v{vE}, 4, v{vD3}
        s_lshl_b32 s{S_T1}, s{S_CT}, 7
        v_add_u32 v{vD3}, s{S_T1}, v{vD3}
        s_lshl_b32 s{S_DWL}, s{S_BR}, 13
        s_lshl_b32 s{S_T0}, s{S_T0}, 11
        s_add_u32 s{S_DWL}, s{S_DWL}, s{S_T0}''')

        def dma(stage):
            L = []
            for i in range(2):
                L += [f's_add_u32 m0, s{S_DWL}, {hx((stage % 8) * 16384 + i * 1024)}',
                      f's_mov_b32 s{S_T0}, {hx(stage * 131072 + i * 16384)}',
                      f'buffer_load_dwordx4 v{vD3}, {srd(sW)}, s{S_T0} offen lds']
            return L
        for st in range(8):
            e(dma(st))
        e('s_waitcnt vmcnt(16)')
        self.count_and_flag(2, 7, f's_mov_b32 s{S_T0}, s{S_J}', vE, vE + 1)
        e(f'''
        v_bfe_u32 v{vR3}, v{self.vL}, 2, 2
        v_lshlrev_b32 v{vR3}, 6, v{vR3}
        v_bfe_u32 v{vE}, v{self.vL}, 4, 1
        v_lshl_add_u32 v{vR3}, v{vE}, 5, v{vR3}
        v_and_b32 v{vE}, 3, v{self.vL}
        v_lshl_add_u32 v{vR3}, v{vE}, 3, v{vR3}
        v_lshl_add_u32 v{vR3}, v{self.vHf}, 8, v{vR3}
        s_lshl_b32 s{S_T0}, s{S_BR}, 13
        v_add_u32 v{vR3}, s{S_T0}, v{vR3}
        v_add_u32 v{vR3b}, 0x10000, v{vR3}
        s_lshl_b32 s{S_T0}, s{S_MB3}, 2
        s_and_b32 s{S_T1}, s{S_W}, 3
        s_add_u32 s{S_T0}, s{S_T0}, s{S_T1}
        s_lshl_b32 s{S_T0}, s{S_T0}, 17
        s_lshl_b32 s{S_T1}, s{S_BR}, 16
        s_add_u32 s{S_T0}, s{S_T0}, s{S_T1}
        s_add_u32 s{S_T0}, s{S_T0}, {hx(O_OFF)}
        v_add_u32 v{vO3}, s{S_T0}, v{self.vL16}
        v_and_b32 v{vE}, 15, v{self.vL}
        v_lshlrev_b32 v{vE}, 2, v{vE}
        s_lshl_b32 s{S_T0}, s{S_MB3}, 7
        v_add_u32 v{vE}, s{S_T0}, v{vE}''')
        self.poll(vE, F2_OFF, vE + 1)
        self.stamp(10)

        def oloads(m):
            L = []
            for g in range(4):
                L.append(f's_mov_b32 s{S_T0}, {hx((m * 16 + g * 4) * 1024)}')
                for q in range(4):
                    L.append(f'buffer_load_dwordx4 {vr(OB[m & 1] + 16 * g + 4 * q)}, v{vO3}, {srd(sWS)}, s{S_T0} offen' +
                             (f' offset:{q * 1024}' if q else '') + ' sc1')
            return L

        def wreads(m, n):
            q, h2, s = n >> 2, (n >> 1) & 1, n & 1
            slot = (4 * m + q) % 8
            base = vR3 if slot < 4 else vR3b
            o = (slot & 3) * 16384 + (h2 * 4 + 2 * s) * 1024
            b = WB[n & 3]
            return [f'ds_read_b64_tr_b16 {vr(b, 2)}, v{base} offset:{o}',
                    f'ds_read_b64_tr_b16 {vr(b + 2, 2)}, v{base} offset:{o + 1024}',
                    f'ds_read_b64_tr_b16 {vr(b + 4, 2)}, v{base} offset:{o + 512}',
                    f'ds_read_b64_tr_b16 {vr(b + 6, 2)}, v{base} offset:{o + 1536}']

        def macro(m):
            e(wreads(m, 0)); e(wreads(m, 1))
            for n in range(16):
                if n + 2 < 16:
                    e(wreads(m, n + 2))
                    e('s_waitcnt lgkmcnt(8)')
                elif n == 14:
                    e('s_waitcnt lgkmcnt(4)')
                else:
                    e('s_waitcnt lgkmcnt(0)')
                b = WB[n & 3]
                of = OB[m & 1] + 4 * n
                first = 'z' if (m == 0 and n == 0) else None
                e(mf32(ACC0, b, of, first))
                e(mf32(ACC1, b + 4, of, first))
        e(oloads(0)); e(oloads(1))
        e('s_waitcnt vmcnt(16)')
        e('s_barrier')
        macro(0)
        e('s_barrier')
        for st in range(8, 12):
            e(dma(st))
        e(oloads(2))
        e('s_waitcnt vmcnt(24)')
        macro(1)
        e('s_waitcnt vmcnt(16)')
        e('s_barrier')
        for st in range(12, 16):
            e(dma(st))
        e(oloads(3))
        e('s_waitcnt vmcnt(24)')
        macro(2)
        e('s_waitcnt vmcnt(16)')
        e('s_barrier')
        e('s_waitcnt vmcnt(0)')
        macro(3)
        self.stamp(11)
        lA = self.lab('keep1')
        lB = self.lab('kept')
        e(f'''
        s_lshl_b32 s{S_T0}, s{S_W}, 12
        s_add_u32 s{S_T0}, s{S_T0}, {hx(XCH)}
        v_add_u32 v{vE}, s{S_T0}, v{self.vL16}
        s_xor_b32 s{S_T1}, s{S_W}, 4
        s_lshl_b32 s{S_T0}, s{S_T1}, 12
        s_add_u32 s{S_T0}, s{S_T0}, {hx(XCH)}
        v_add_u32 v{vE+1}, s{S_T0}, v{self.vL16}
        s_cmp_eq_u32 s{S_BR}, 1
        s_cbranch_scc1 {lA}''')
        for q in range(4):
            e(f'ds_write_b128 v{vE}, {vr(ACC1 + 4 * q)} offset:{q * 1024}')
        e(f's_branch {lB}')
        e(f'{lA}:')
        for q in range(4):
            e(f'ds_write_b128 v{vE}, {vr(ACC0 + 4 * q)} offset:{q * 1024}')
        for r in range(16):
            e(f'v_mov_b32 v{ACC0+r}, v{ACC1+r}')
        e(f'{lB}:')
        e('''
        s_waitcnt lgkmcnt(0)
        s_barrier''')
        R = 32
        for q in range(4):
            e(f'ds_read_b128 {vr(R + 4 * q)}, v{vE+1} offset:{q * 1024}')
        e(f'''
        s_lshl_b32 s{S_T0}, s{S_MB3}, 7
        s_and_b32 s{S_T1}, s{S_W}, 3
        s_lshl_b32 s{S_T1}, s{S_T1}, 5
        s_add_u32 s{S_T0}, s{S_T0}, s{S_T1}
        v_and_b32 v{vE}, 31, v{self.vL}
        v_add_u32 v{vE}, s{S_T0}, v{vE}
        v_lshlrev_b32 v{vE}, 11, v{vE}
        v_lshl_add_u32 v{vE}, v{self.vHf}, 4, v{vE}
        s_lshl_b32 s{S_T0}, s{S_CT}, 7
        s_lshl_b32 s{S_T1}, s{S_BR}, 6
        s_add_u32 s{S_T0}, s{S_T0}, s{S_T1}
        v_add_u32 v{vE}, s{S_T0}, v{vE}
        s_waitcnt lgkmcnt(0)''')
        for r in range(16):
            e(f'v_add_f32 v{ACC0+r}, v{ACC0+r}, v{R+r}')
        P = 48
        for i in range(8):
            e(cvt(P + i, ACC0 + 2 * i, ACC0 + 2 * i + 1))
        for u in range(2):
            e(f'v_permlane32_swap_b32 v{P+4*u}, v{P+4*u+2}')
            e(f'v_permlane32_swap_b32 v{P+4*u+1}, v{P+4*u+3}')
        for u in range(2):
            e(f'buffer_store_dwordx4 {vr(P + 4 * u)}, v{vE}, {srd(sOUT)}, 0 offen' + (f' offset:{u * 32}' if u else ''))
        e('s_waitcnt vmcnt(0)')

    XACC, XB, XI, XZ = 224, 240, 248, 208
    vD3p, vO3, vR3, vR3b, vPF, vFa, vG1, vFv = 224, 225, 226, 227, 228, 229, 230, 231
    vS = 232

    def check_flags(self, vaddr, vval, off, tag):
        l = self.lab('flagok')
        self.emit(f"""
        @wait {tag}
        v_cmp_ne_u32 vcc, 1, v{vval}
        s_cbranch_vccz {l}""")
        self.poll(vaddr, off, vval)
        self.emit(f'{l}:')

    def kv2(self, j):
        b = self.KVB[j % 4]
        L = []
        for q in range(4):
            t = f'K{j}' if q < 2 else f'V{j}'
            x = f'buffer_load_dwordx4 {vr(b + 4 * q)}, v{self.vKV}, {srd(sWS)}, s{S_OFF} offen' + \
                (f' offset:{q * 1024}' if q else '') + f' sc1 ;@{t}'
            L.append([x])
        L[3] += [f's_add_u32 s{S_OFF}, s{S_OFF}, 4096', f's_and_b32 s{S_OFF}, s{S_OFF}, 0x1ffff']
        return L

    def wo_dma(self, stage, i, tag):
        return [f's_add_u32 s{S_T1}, s{S_R}, {stage % 8}',
                f's_and_b32 s{S_T1}, s{S_T1}, 7',
                f's_lshl_b32 s{S_T1}, s{S_T1}, 17',
                f's_add_u32 m0, s{S_DWL}, {hx((stage % 8) * 16384 + i * 1024)}',
                f's_add_u32 s{S_T1}, s{S_T1}, {hx(i * 16384)}',
                f'buffer_load_dwordx4 v{self.vD3p}, {srd(sW)}, s{S_T1} offen lds ;@{tag}']

    def make_ident_half(self, I0, t):
        e = self.emit
        e(f"""
        v_and_b32 v{t}, 31, v{self.vL}
        v_lshlrev_b32 v{t+1}, 2, v{self.vHf}
        v_sub_u32 v{t}, v{t}, v{t+1}
        s_lshl_b32 s{S_T0}, s{S_TT}, 4
        v_subrev_u32 v{t}, s{S_T0}, v{t}
        v_and_b32 v{t+1}, 1, v{t}
        v_lshlrev_b32 v{t+1}, 4, v{t+1}
        v_mov_b32 v{t+2}, 0x3f80
        v_lshlrev_b32 v{t+1}, v{t+1}, v{t+2}
        v_ashrrev_i32 v{t}, 1, v{t}""")
        for i in range(4):
            key = (i & 1) + 4 * (i >> 1)
            e(f'v_cmp_eq_u32 vcc, {key}, v{t}')
            e(f'v_cndmask_b32 v{I0 + i}, 0, v{t+1}, vcc')

    def attention2(self):
        e = self.emit
        Sa, Sb, Ca, Cb, Oa, Ob = self.Sa, self.Sb, self.Ca, self.Cb, self.Oa, self.Ob
        Qa, Qb = self.QF, self.QF + 8
        Pa, Pb, la, lb, ONES = self.Pa, self.Pb, self.la, self.lb, self.ONES
        KVB = self.KVB
        tA = self.vA
        TF = self.cfg.get('tf', 3)
        TX0 = TF + 2
        XR = self.cfg.get('xr', 2)
        NX = 16 // XR
        TM = TX0 + NX + 1
        XBUF = [240, 244, 216, 220]
        XACC, XB, XI, XZ = self.XACC, self.XB, self.XI, self.XZ
        e('L_attn:')
        self.stamp(4)
        self.make_ones16(ONES, tA)
        self.make_ident_half(XI, tA)
        e(f"""
        s_lshl_b32 s{S_T0}, s{S_HEAD}, 18
        s_lshl_b32 s{S_T1}, s{S_BR}, 17
        s_add_u32 s{S_T0}, s{S_T0}, s{S_T1}
        v_add_u32 v{self.vKV}, s{S_T0}, v{self.vL16}
        s_lshl_b32 s{S_ROT}, s{S_MB}, 1
        s_lshl_b32 s{S_OFF}, s{S_MB}, 13
        s_lshl_b32 s{S_T0}, s{S_HP}, 6
        s_lshl_b32 s{S_T1}, s{S_HD}, 1
        s_add_u32 s{S_T1}, s{S_T1}, s{S_BR}
        s_add_u32 s{S_T0}, s{S_T0}, s{S_T1}
        s_lshl_b32 s{S_T0}, s{S_T0}, 11
        s_lshl_b32 s{S_T2}, s{S_TT}, 10
        s_add_u32 s{S_T0}, s{S_T0}, s{S_T2}
        s_add_u32 s{S_X}, s{S_T0}, {hx(KVP_OFF)}
        s_lshl_b32 s{S_T0}, s{S_HP}, 2
        s_add_u32 s{S_T0}, s{S_T0}, s{S_T1}
        s_lshl_b32 s{S_T0}, s{S_T0}, 11
        s_add_u32 s{S_J}, s{S_T0}, {hx(ZP_OFF)}
        s_lshl_b32 s{S_T2}, s{S_MB}, 7
        s_lshl_b32 s{S_T3}, s{S_HP}, 2
        s_add_u32 s{S_FA}, s{S_T2}, s{S_T3}
        s_add_u32 s{S_FB}, s{S_FA}, {hx(F2B_OFF)}
        s_add_u32 s{S_FA}, s{S_FA}, {hx(F2A_OFF)}
        s_and_b32 s{S_T0}, s2, 7
        s_lshr_b32 s{S_T1}, s2, 3
        s_and_b32 s{S_T2}, s{S_T0}, 3
        s_lshl_b32 s{S_T2}, s{S_T2}, 2
        s_and_b32 s{S_T3}, s{S_T1}, 3
        s_add_u32 s{S_MB3}, s{S_T2}, s{S_T3}
        s_lshr_b32 s{S_T2}, s{S_T0}, 2
        s_lshl_b32 s{S_T2}, s{S_T2}, 3
        s_lshr_b32 s{S_T3}, s{S_T1}, 2
        s_add_u32 s{S_CT}, s{S_T2}, s{S_T3}
        s_and_b32 s{S_R}, s{S_CT}, {self.cfg.get('rotmask', 7)}
        s_mov_b32 s{sW}, s34
        s_mov_b32 s{sW+1}, s35
        s_mov_b32 s{sW+2}, {hx(2 << 20)}
        s_mov_b32 s{sW+3}, 0x20000
        s_mov_b32 s{sT}, s38
        s_mov_b32 s{sT+1}, s39
        s_mov_b32 s{sT+2}, {hx(2 << 20)}
        s_mov_b32 s{sT+3}, 0x20000
        s_and_b32 s{S_T0}, s{S_W}, 3
        s_lshl_b32 s{S_DWL}, s{S_BR}, 13
        s_lshl_b32 s{S_T0}, s{S_T0}, 11
        s_add_u32 s{S_DWL}, s{S_DWL}, s{S_T0}
        v_and_b32 v{tA}, 15, v{self.vL}
        v_lshlrev_b32 v{tA}, 2, v{tA}
        s_lshl_b32 s{S_T0}, s{S_HP}, 7
        v_add_u32 v{tA}, s{S_T0}, v{tA}""")
        self.poll(tA, F1_OFF, tA + 1)
        self.stamp(5)
        ln = self.lab('noF1b')
        e(f"""
        s_cmp_eq_u32 s{S_BR}, 0
        s_cbranch_scc0 {ln}""")
        self.count_and_flag(1, 3, f"""
        s_lshl_b32 s{S_T0}, s{S_HP}, 7
        s_lshl_b32 s{S_T1}, s{S_MB}, 2
        s_add_u32 s{S_T0}, s{S_T0}, s{S_T1}
        s_add_u32 s{S_T0}, s{S_T0}, {hx(F1B_OFF)}""", tA, tA + 1)
        e(f'{ln}:')
        e('@vmclear')
        for j in range(3):
            for x in self.kv2(j):
                e(x)
        K0 = KVB[0]
        e('@wait K0')
        e(mf32(Sa, K0, Qa, 'z')); e(mf32(Sb, K0, Qb, 'z'))
        e(mf32(Sa, K0 + 4, Qa + 4)); e(mf32(Sb, K0 + 4, Qb + 4))
        self.wave_rowmax(Sa, self.vMa, tA)
        self.wave_rowmax(Sb, self.vMb, tA)
        self.cross_half_max(self.vMa, tA)
        self.cross_half_max(self.vMb, tA)
        e(f'v_add_f32 v{self.vMa}, {hx(f2u(MOFF))}, v{self.vMa}')
        e(f'v_add_f32 v{self.vMb}, {hx(f2u(MOFF))}, v{self.vMb}')
        for r in range(16):
            e(f'v_sub_f32 v{Ca + r}, 0, v{self.vMa}')
        e(mf32(Sa, K0, Qa, Ca)); e(mf32(Sa, K0 + 4, Qa + 4))
        for r in range(16):
            e(f'v_sub_f32 v{Cb + r}, 0, v{self.vMb}')
        v205, v206, v207 = 205, 206, 207
        low = set(self.cfg.get('low', [1, 4, 8, 11, 15, 18, 21, 24, 27, 30]))
        curp = -1
        if low:
            e('s_setprio 1')
        for T in range(32):
            cur, prev, nxt = KVB[T % 4], KVB[(T - 1) % 4], KVB[(T + 1) % 4]
            self.tstamp(T)
            if low:
                want = 0 if T in low else 2
                if want != curp:
                    l = self.lab('pr')
                    e(f's_cmp_eq_u32 s{S_BR}, 0')
                    e(f's_cbranch_scc0 {l}')
                    e(f's_setprio {want}')
                    e(f'{l}:')
                    curp = want
            if T == TX0:
                self.check_flags(v206, v207, F1B_OFF, 'f1b')
            if T == 29 and self.cfg.get('tail', 3) == 3:
                self.check_flags(self.vFa, self.vFv, F2A_OFF, 'f2a')
            mfA = [mf32(Sb, cur, Qb, Cb), mf32(Sb, cur + 4, Qb + 4)]
            if T > 0:
                z = 'z' if T == 1 else None
                mfA += [mf32(Ob, prev + 8, Pb, z), mf16(lb, ONES, Pb, z),
                        mf32(Ob, prev + 12, Pb + 4), mf16(lb, ONES, Pb + 4)]
            e(interleave(mfA, self.exp_block(Sa, Pa)))
            e(f'@wait K{T+1}' if T < 31 else '@wait V31')
            mfB = []
            i = T - 2 - TX0
            if 0 <= i < NX:
                e(f'@wait X{XR * i + XR - 1}')
                for m in range(XR * i, XR * i + XR):
                    mfB.append(mf32(XACC, XBUF[m % (2 * XR)], XI, 'z' if m == 0 else None))
            if T < 31:
                mfB += [mf32(Sa, nxt, Qa, Ca), mf32(Sa, nxt + 4, Qa + 4)]
            z = 'z' if T == 0 else None
            mfB += [mf32(Oa, cur + 8, Pa, z), mf16(la, ONES, Pa, z),
                    mf32(Oa, cur + 12, Pa + 4), mf16(la, ONES, Pa + 4)]
            body = interleave(mfB, self.exp_block(Sb, Pb))
            ex = []
            i = T - TX0
            if 0 <= i < NX:
                for m in range(XR * i, XR * i + XR):
                    ex.append([f'buffer_load_dwordx4 {vr(XBUF[m % (2 * XR)])}, v{self.vL16}, {srd(sWS)}, s{S_X} offen sc1 ;@X{m}',
                               f's_add_u32 s{S_X}, s{S_X}, 8192'])
            if T == TX0:
                ex.append([f'v_and_b32 v{v207}, 31, v{self.vL}',
                           f'v_lshlrev_b32 v{v207}, 2, v{v207}',
                           f'v_lshl_add_u32 v{v207}, v{self.vHf}, 7, v{v207}'])
            if T in (TX0, TX0 + 1):
                for i in range(4 * (T - TX0), 4 * (T - TX0) + 4):
                    ex.append([f'buffer_load_dword v{XZ + i}, v{v207}, {srd(sWS)}, s{S_J} offen' +
                               (f' offset:{i * 256}' if i else '') + ' sc1 ;@z'])
            if T == TF:
                ex.append([f'v_and_b32 v{v206}, 15, v{self.vL}',
                           f'v_lshlrev_b32 v{v206}, 2, v{v206}',
                           f's_lshl_b32 s{S_T0}, s{S_HP}, 7',
                           f'v_add_u32 v{v206}, s{S_T0}, v{v206}',
                           f's_mov_b32 s{S_T1}, {hx(F1B_OFF)}',
                           f'buffer_load_dword v{v207}, v{v206}, {srd(sWS)}, s{S_T1} offen sc1 ;@f1b'])
            k = T - TM - 1
            t3 = self.cfg.get('tail', 3) == 3
            late = []
            if 0 <= k < (8 if t3 else 7):
                (late if self.cfg.get('dmalate', 1) else ex).append(self.wo_dma(k, 0, 'woA'))
                (late if self.cfg.get('dmalate', 1) else ex).append(self.wo_dma(k, 1, 'woA'))
            spf = self.cfg.get('spf', '')
            if k == 2 and (not self.cfg.get('wopf', 3) or 'v' in spf):
                (late if self.cfg.get('dmalate', 1) else ex).append(
                    [f'buffer_load_dword v{self.vS}, v{self.vPF}, {srd(sT)}, 0 offen'])
                (late if self.cfg.get('dmalate', 1) else ex).append(
                    [f's_mov_b32 s{S_T1}, {hx(64 * 2048)}',
                     f'buffer_load_dword v{self.vS}, v{self.vPF}, {srd(sT)}, s{S_T1} offen'])
            if self.cfg.get('wopf', 3) == 3:
                pn = self.cfg.get('spfn', 3)
                ta, tb = self.cfg.get('spfa', 0), TM + 3
                if T == ta:
                    ex.append(self.spf_base(34, 35))
                if T == tb:
                    ex.append(self.spf_base(38, 39))
                for t0_, nm in ((ta, 'A'), (tb, 'B')):
                    if nm in spf and T >= t0_ and (t0_ == tb or T < TM - 1):
                        ex += self.spf_loads((T - t0_) * pn, pn)
            if T == (self.cfg.get('tf2a', 27) if t3 else 30):
                ex.append([f's_mov_b32 s{S_T1}, {hx(F2A_OFF)}',
                           f'buffer_load_dword v{self.vFv}, v{self.vFa}, {srd(sWS)}, s{S_T1} offen sc1 ;@f2a'])
            if t3 and T >= 29:
                ex += self.oload_group(0, T - 29)
            if T + 3 <= 31:
                ex += self.kv2(T + 3)
            ex += late
            xcons = 0 <= T - 2 - TX0 < NX
            e(spread(body, ex, first=(4 * XR - 2 if xcons else 2)))
            if k == 1:
                e('@wait oa')
                self.count_and_flag(2, 7, f's_mov_b32 s{S_T0}, s{S_FA}', self.vS + 1, self.vS + 2)
            if T == TM:
                self.midblock()
        prev = KVB[3]
        if low:
            e('s_setprio 0')
        e(mf32(Ob, prev + 8, Pb)); e(mf16(lb, ONES, Pb))
        e(mf32(Ob, prev + 12, Pb + 4)); e(mf16(lb, ONES, Pb + 4))
        e(f'v_add_f32 v{tA}, v{la}, v{lb}')
        e(f'v_pk_add_f32 {vr(Sa, 2)}, {vr(Oa, 2)}, {vr(Oa + 2, 2)}')
        for r in range(4, 32, 2):
            e(f'v_pk_add_f32 {vr(Sa, 2)}, {vr(Sa, 2)}, {vr(Oa + r, 2)}')
        e(f"""
        v_add_f32 v{tA}, v{tA}, v{Sa}
        v_add_f32 v{tA}, v{tA}, v{Sa+1}
        v_mov_b32 v{tA+1}, 0x207
        v_cmp_class_f32 vcc, v{tA}, v{tA+1}
        s_cbranch_vccnz L_retry
        L_attn_done:""")

    def retry_path(self):
        e = self.emit
        Sa, Sb, Ca, Cb, Oa, Ob = self.Sa, self.Sb, self.Ca, self.Cb, self.Oa, self.Ob
        Qa, Qb = self.QF, self.QF + 8
        Pa, Pb, la, lb, ONES = self.Pa, self.Pb, self.la, self.lb, self.ONES
        KVB = self.KVB
        tA = self.vA
        K0 = KVB[0]
        e(f"""
        L_retry:
        s_waitcnt vmcnt(0)
        v_mov_b32 v{self.vMa}, 0xff800000
        v_mov_b32 v{self.vMb}, 0xff800000
        s_mov_b32 s{S_J}, 0
        L_truemax:""")
        e(self.tile_off(S_T0, S_J))
        e(self.kv_loads(0, f's{S_T0}')[:2])
        e('s_waitcnt vmcnt(0)')
        e(mf32(Sa, K0, Qa, 'z')); e(mf32(Sb, K0, Qb, 'z'))
        e(mf32(Sa, K0 + 4, Qa + 4)); e(mf32(Sb, K0 + 4, Qb + 4))
        for S, M in ((Sa, self.vMa), (Sb, self.vMb)):
            for i in range(0, 16, 2):
                e(f'v_max3_f32 v{M}, v{M}, v{S+i}, v{S+i+1}')
        e(f"""
        s_add_u32 s{S_J}, s{S_J}, 1
        s_cmp_lt_u32 s{S_J}, 32
        s_cbranch_scc1 L_truemax""")
        self.cross_half_max(self.vMa, tA)
        self.cross_half_max(self.vMb, tA)
        self.first_loads()
        e('s_waitcnt vmcnt(10)')
        V3 = KVB[3] + 8
        for r in range(8):
            e(f'v_mov_b32 v{V3 + r}, 0')
            e(f'v_mov_b32 v{Pb + r}, 0')
        for r in range(4):
            e(f'v_mov_b32 v{la + r}, 0')
            e(f'v_mov_b32 v{lb + r}, 0')
        for r in range(16):
            e(f'v_sub_f32 v{Ca + r}, 0, v{self.vMa}')
        e(mf32(Oa, V3, V3, 'z')); e(mf32(Ob, V3, V3, 'z'))
        for r in range(16):
            e(f'v_sub_f32 v{Cb + r}, 0, v{self.vMb}')
        e(mf32(Sa, K0, Qa, Ca)); e(mf32(Sa, K0 + 4, Qa + 4))
        e(f's_mov_b32 s{S_IT}, 0')
        e('L_retry_loop:')
        for i4 in range(4):
            cur, prev, nxt = KVB[i4], KVB[(i4 - 1) % 4], KVB[(i4 + 1) % 4]
            mfA = [mf32(Sb, cur, Qb, Cb), mf32(Sb, cur + 4, Qb + 4),
                   mf32(Ob, prev + 8, Pb), mf16(lb, ONES, Pb),
                   mf32(Ob, prev + 12, Pb + 4), mf16(lb, ONES, Pb + 4)]
            e(interleave(mfA, self.exp_block(Sa, Pa)))
            e(self.tile_off(S_T0, S_J))
            e(f's_add_u32 s{S_J}, s{S_J}, 1')
            e('s_waitcnt vmcnt(6)')
            mfB = [mf32(Sa, nxt, Qa, Ca), mf32(Sa, nxt + 4, Qa + 4),
                   mf32(Oa, cur + 8, Pa), mf16(la, ONES, Pa),
                   mf32(Oa, cur + 12, Pa + 4), mf16(la, ONES, Pa + 4)]
            body = interleave(mfB, self.exp_block(Sb, Pb))
            e(spread(body, [[x] for x in self.kv_loads((i4 + 3) % 4, f's{S_T0}')], first=4))
        e(f"""
        s_add_u32 s{S_IT}, s{S_IT}, 1
        s_cmp_lt_u32 s{S_IT}, 8
        s_cbranch_scc1 L_retry_loop""")
        prev = KVB[3]
        e(mf32(Ob, prev + 8, Pb)); e(mf16(lb, ONES, Pb))
        e(mf32(Ob, prev + 12, Pb + 4)); e(mf16(lb, ONES, Pb + 4))
        e('s_waitcnt vmcnt(0)')
        if self.cfg.get('tail', 3) == 3:
            for g in range(3):
                for x in self.oload_group(0, g, skip=True):
                    e(x)
        e("""
        s_waitcnt vmcnt(0)
        s_branch L_attn_done""")

    def midblock(self):
        e = self.emit
        ACC, Z = self.XACC, self.XZ
        KT, PH = 208, 224
        ZF = [240, 244, 248, 116]
        N, D = self.Sb, self.Pa
        vLg, vA1, vA2, vA3 = 205, 206, 207, 113
        KP = 216
        self.stamp(7)
        e('@wait z')
        e(f'v_add_f32 v{Z}, v{Z}, v{Z+1}')
        for i in range(2, 8):
            e(f'v_add_f32 v{Z}, v{Z}, v{Z+i}')
        for i in range(8):
            e(cvt(KP + i, ACC + 2 * i, ACC + 2 * i + 1))
        e(f"""
        v_mov_b32 v{Z+1}, v{Z}
        s_lshl_b32 s{S_T0}, s{S_HD}, 1
        s_add_u32 s{S_T0}, s{S_T0}, s{S_BR}
        v_permlane32_swap_b32 v{Z}, v{Z+1}
        s_lshl_b32 s{S_T1}, s{S_T0}, 11
        s_add_u32 s{S_T1}, s{S_T1}, {hx(KTX)}
        v_add_u32 v{vA1}, s{S_T1}, v{self.vL16}
        v_add_f32 v{Z}, v{Z}, v{Z+1}
        s_lshl_b32 s{S_T1}, s{S_T0}, 6
        s_add_u32 s{S_T1}, s{S_T1}, {hx(ZT2)}
        v_and_b32 v{vA2}, 31, v{self.vL}
        v_lshlrev_b32 v{Z+1}, 1, v{vA2}
        v_add_u32 v{Z+1}, s{S_T1}, v{Z+1}
        v_cvt_pk_bf16_f32 v{Z}, v{Z}, v{Z}
        s_lshl_b32 s{S_T1}, s{S_TT}, 4
        s_lshl_b32 s{S_T1}, 0xffff, s{S_T1}
        ds_write_b16 v{Z+1}, v{Z}
        s_mov_b32 exec_lo, s{S_T1}
        s_mov_b32 exec_hi, s{S_T1}
        ds_write_b128 v{vA1}, {vr(KP)}
        ds_write_b128 v{vA1}, {vr(KP + 4)} offset:1024
        s_mov_b64 exec, -1
        s_lshl_b32 s{S_T0}, s{S_TT}, 6
        s_lshl_b32 s{S_T1}, s{S_BR}, 5
        s_add_u32 s{S_T0}, s{S_T0}, s{S_T1}
        s_lshl_b32 s{S_T0}, s{S_T0}, 2
        s_add_u32 s{S_T0}, s{S_T0}, {hx(LOGP)}
        v_lshlrev_b32 v{vA2}, 2, v{vA2}
        v_add_u32 v{vA2}, s{S_T0}, v{vA2}
        ds_read_b32 v{vLg}, v{vA2}
        ds_read_b32 v{vA3}, v{vA2} offset:512
        ds_read_b32 v{vA3+1}, v{vA2} offset:1024
        ds_read_b32 v{vA3+2}, v{vA2} offset:1536
        s_lshl_b32 s{S_T0}, s{S_HD}, 1
        s_add_u32 s{S_T0}, s{S_T0}, s{S_TT}
        s_lshl_b32 s{S_T0}, s{S_T0}, 13
        s_lshl_b32 s{S_T1}, s{S_BR}, 12
        s_add_u32 s{S_T0}, s{S_T0}, s{S_T1}
        s_add_u32 s{S_T0}, s{S_T0}, {hx(PHI)}
        v_add_u32 v{vA2}, s{S_T0}, v{self.vL16}""")
        for q in range(4):
            e(f'ds_read_b128 {vr(PH + 4 * q)}, v{vA2} offset:{(q >> 1) * 2048 + (q & 1) * 1024}')
        e(f"""
        s_waitcnt lgkmcnt(4)
        v_add_f32 v{vLg}, v{vLg}, v{vA3}
        v_add_f32 v{vA3+1}, v{vA3+1}, v{vA3+2}
        s_lshl_b32 s{S_T0}, s{S_HD}, 12
        s_add_u32 s{S_T0}, s{S_T0}, {hx(KTX)}
        v_add_f32 v{vLg}, v{vLg}, v{vA3+1}
        v_add_u32 v{vA1}, s{S_T0}, v{self.vL16}
        s_lshl_b32 s{S_T0}, s{S_HD}, 7
        s_add_u32 s{S_T0}, s{S_T0}, {hx(ZT2)}
        v_lshl_add_u32 v{vA3}, v{self.vHf}, 3, s{S_T0}
        v_mov_b32 v{vA3+1}, {hx(ZT0)}
        v_cmp_ne_u32 vcc, 0, v{self.ONES}
        v_cndmask_b32 v{vA3}, v{vA3+1}, v{vA3}, vcc
        s_waitcnt lgkmcnt(0)
        s_barrier""")
        for q in range(4):
            e(f'ds_read_b128 {vr(KT + 4 * q)}, v{vA1} offset:{(q >> 1) * 2048 + (q & 1) * 1024}')
        for q in range(4):
            o = (q >> 1) * 64 + (q & 1) * 32
            e(f'ds_read_b64 {vr(ZF[q], 2)}, v{vA3} offset:{o}')
            e(f'ds_read_b64 {vr(ZF[q] + 2, 2)}, v{vA3} offset:{o + 16}')
        e(f"""
        v_mul_f32 v{vLg}, s{S_L2E}, v{vLg}
        v_exp_f32 v{vLg}, -v{vLg}
        v_add_f32 v{vLg}, 1.0, v{vLg}
        v_rcp_f32 v{vLg}, v{vLg}
        s_waitcnt lgkmcnt(0)
        s_barrier""")
        for q in range(4):
            z = 'z' if q == 0 else None
            e(mf32(N, KT + 4 * q, PH + 4 * q, z))
            e(mf16(D, ZF[q], PH + 4 * q, z))
        t = self.vS
        assert t >= 232
        e(f"""
        s_and_b32 s{S_T0}, s{S_W}, 3
        s_lshl_b32 s{S_T1}, s{S_T0}, 4
        v_bfe_u32 v{self.vD3p}, v{self.vL}, 2, 3
        v_add_u32 v{self.vD3p}, s{S_T1}, v{self.vD3p}
        v_lshlrev_b32 v{self.vD3p}, 11, v{self.vD3p}
        v_lshl_add_u32 v{self.vD3p}, v{self.vHf}, 6, v{self.vD3p}
        v_and_b32 v{self.vO3}, 3, v{self.vL}
        v_lshl_add_u32 v{self.vD3p}, v{self.vO3}, 4, v{self.vD3p}
        s_lshl_b32 s{S_T1}, s{S_CT}, 7
        s_lshl_b32 s{S_T2}, s{S_BR}, 20
        s_add_u32 s{S_T2}, s{S_T2}, s{S_T1}
        v_add_u32 v{self.vD3p}, s{S_T2}, v{self.vD3p}
        v_bfe_u32 v{self.vR3}, v{self.vL}, 2, 2
        v_lshlrev_b32 v{self.vR3}, 6, v{self.vR3}
        v_bfe_u32 v{self.vR3b}, v{self.vL}, 4, 1
        v_lshl_add_u32 v{self.vR3}, v{self.vR3b}, 5, v{self.vR3}
        v_lshl_add_u32 v{self.vR3}, v{self.vO3}, 3, v{self.vR3}
        v_lshl_add_u32 v{self.vR3}, v{self.vHf}, 8, v{self.vR3}
        s_lshl_b32 s{S_T2}, s{S_BR}, 13
        v_add_u32 v{self.vR3}, s{S_T2}, v{self.vR3}
        v_add_u32 v{self.vR3b}, 0x10000, v{self.vR3}
        s_lshl_b32 s{S_T2}, s{S_MB3}, 2
        s_add_u32 s{S_T2}, s{S_T2}, s{S_T0}
        s_lshl_b32 s{S_T2}, s{S_T2}, 17
        s_lshl_b32 s{S_T3}, s{S_BR}, 15
        s_add_u32 s{S_T2}, s{S_T2}, s{S_T3}
        s_add_u32 s{S_T2}, s{S_T2}, {hx(O_OFF)}
        v_add_u32 v{self.vO3}, s{S_T2}, v{self.vL16}
        s_lshl_b32 s{S_T2}, s{S_W}, 7
        v_add_u32 v{self.vPF}, s{S_T2}, v{self.vL}
        v_lshlrev_b32 v{self.vPF}, 11, v{self.vPF}
        v_add_u32 v{self.vPF}, s{S_T1}, v{self.vPF}
        v_and_b32 v{self.vFa}, 15, v{self.vL}
        v_lshlrev_b32 v{self.vFa}, 2, v{self.vFa}
        s_lshl_b32 s{S_T2}, s{S_MB3}, 7
        v_add_u32 v{self.vFa}, s{S_T2}, v{self.vFa}
        v_sub_f32 v{self.vG1}, 1.0, v{vLg}
        v_add_f32 v{vA1}, {hx(f2u(1e-6))}, v{D}
        v_rcp_f32 v{vA1}, v{vA1}
        s_lshl_b32 s{S_T0}, s{S_MB}, 2
        s_lshl_b32 s{S_T1}, s{S_TT}, 1
        s_add_u32 s{S_T0}, s{S_T0}, s{S_T1}
        s_add_u32 s{S_T0}, s{S_T0}, s{S_BR}
        s_lshl_b32 s{S_T0}, s{S_T0}, 17
        s_lshl_b32 s{S_T1}, s{S_HEAD}, 11
        s_add_u32 s{S_T0}, s{S_T0}, s{S_T1}
        s_add_u32 s{S_X}, s{S_T0}, {hx(O_OFF)}
        v_mul_f32 v{vA1}, v{vA1}, v{vLg}""")
        for r in range(16):
            e(f'v_mul_f32 v{N+r}, v{N+r}, v{vA1}')
        for i in range(8):
            e(cvt(KT + i, N + 2 * i, N + 2 * i + 1))
        e(f"""
        buffer_store_dwordx4 {vr(KT)}, v{self.vL16}, {srd(sWS)}, s{S_X} offen sc1 ;@oa
        buffer_store_dwordx4 {vr(KT + 4)}, v{self.vL16}, {srd(sWS)}, s{S_X} offen offset:1024 sc1 ;@oa
        s_add_u32 s{S_X}, s{S_X}, 65536""")
        self.stamp(8)

    def tail2(self):
        e = self.emit
        Oa, Ob, la, lb = self.Oa, self.Ob, self.la, self.lb
        ACC0, ACC1 = 0, 16
        WB = [32, 40, 48, 56]
        OB = [140, 64]
        vR3, vR3b, vO3, vE = self.vR3, self.vR3b, self.vO3, self.vS
        t = self.vS

        def oloads(m):
            L = []
            for g in range(4):
                L += [f's_add_u32 s{S_T0}, s{S_R}, {(m & 1) * 4 + g}',
                      f's_and_b32 s{S_T0}, s{S_T0}, 7',
                      f's_lshl_b32 s{S_T0}, s{S_T0}, 12']
                if m >> 1:
                    L.append(f's_add_u32 s{S_T0}, s{S_T0}, 65536')
                for q in range(4):
                    L.append(f'buffer_load_dwordx4 {vr(OB[m & 1] + 16 * g + 4 * q)}, v{vO3}, {srd(sWS)}, s{S_T0} offen' +
                             (f' offset:{q * 1024}' if q else '') + f' sc1 ;@o{m}_{4 * g + q}')
            return L

        def wreads(m, n):
            q, h2, s = n >> 2, (n >> 1) & 1, n & 1
            slot = (4 * m + q) % 8
            base = vR3 if slot < 4 else vR3b
            o = (slot & 3) * 16384 + (h2 * 4 + 2 * s) * 1024
            b = WB[n & 3]
            return [f'ds_read_b64_tr_b16 {vr(b, 2)}, v{base} offset:{o}',
                    f'ds_read_b64_tr_b16 {vr(b + 2, 2)}, v{base} offset:{o + 1024}',
                    f'ds_read_b64_tr_b16 {vr(b + 4, 2)}, v{base} offset:{o + 512}',
                    f'ds_read_b64_tr_b16 {vr(b + 6, 2)}, v{base} offset:{o + 1536}']

        def macro(m):
            e(wreads(m, 0)); e(wreads(m, 1))
            for n in range(16):
                if n + 2 < 16:
                    e(wreads(m, n + 2))
                    e('s_waitcnt lgkmcnt(8)')
                elif n == 14:
                    e('s_waitcnt lgkmcnt(4)')
                else:
                    e('s_waitcnt lgkmcnt(0)')
                e(f'@wait o{m}_{n}')
                b = WB[n & 3]
                of = OB[m & 1] + 4 * n
                first = 'z' if (m == 0 and n == 0) else None
                e(mf32(ACC0, b, of, first))
                e(mf32(ACC1, b + 4, of, first))

        self.stamp(6)
        self.tstamp2()
        e(f"""
        v_sub_f32 v{self.vMa}, 0, v{self.Ca}
        v_sub_f32 v{self.vMb}, 0, v{self.Cb}""")
        self.check_flags(self.vFa, self.vFv, F2A_OFF, 'f2a')
        self.tstamp2()
        e(oloads(0))
        self.tstamp2()
        e(f"""
        v_rcp_f32 v{lb+1}, v{lb}
        v_log_f32 v{lb+2}, v{lb}
        s_mul_i32 s{S_T0}, s{S_W}, {MRG2_STRIDE}
        s_add_u32 s{S_T0}, s{S_T0}, {hx(MRG2)}
        v_add_u32 v{t}, s{S_T0}, v{self.vL16}
        v_lshlrev_b32 v{t+1}, 2, v{self.vL}
        v_add_u32 v{t+2}, s{S_T0}, v{t+1}
        v_add_f32 v{lb+2}, v{lb+2}, v{self.vMb}""")
        for q in range(4):
            for r in range(4):
                e(f'v_mul_f32 v{Ob+4*q+r}, v{Ob+4*q+r}, v{lb+1}')
            e(f'ds_write_b128 v{t}, {vr(Ob + 4 * q)} offset:{q * 1024}')
        e(f"""
        ds_write_b32 v{t+2}, v{lb+2} offset:4096
        v_rcp_f32 v{la+1}, v{la}
        v_log_f32 v{la+2}, v{la}
        s_xor_b32 s{S_T1}, s{S_W}, 4
        s_mul_i32 s{S_T0}, s{S_T1}, {MRG2_STRIDE}
        s_add_u32 s{S_T0}, s{S_T0}, {hx(MRG2)}
        v_add_u32 v{t}, s{S_T0}, v{self.vL16}
        v_add_u32 v{t+2}, s{S_T0}, v{t+1}
        v_add_f32 v{la+2}, v{la+2}, v{self.vMa}""")
        for r in range(16):
            e(f'v_mul_f32 v{Oa+r}, v{Oa+r}, v{la+1}')
        self.tstamp2()
        e("""
        s_waitcnt lgkmcnt(0)
        @wait woA
        s_barrier""")
        self.tstamp2()
        RO, RL = 0, 16
        e(f'ds_read_b32 v{RL}, v{t+2} offset:4096')
        for q in range(4):
            e(f'ds_read_b128 {vr(RO + 4 * q)}, v{t} offset:{q * 1024}')
        La = la + 2
        e(f"""
        s_waitcnt lgkmcnt(4)
        v_max_f32 v20, v{La}, v{RL}
        v_sub_f32 v21, v{La}, v20
        v_sub_f32 v22, v{RL}, v20
        v_exp_f32 v21, v21
        v_exp_f32 v22, v22
        v_add_f32 v23, v21, v22
        v_rcp_f32 v23, v23
        v_mul_f32 v23, v23, v{self.vG1}
        v_mul_f32 v21, v21, v23
        v_mul_f32 v22, v22, v23
        s_waitcnt lgkmcnt(0)
        s_barrier""")
        self.tstamp2()
        e(self.wo_dma(7, 0, 'wo7')); e(self.wo_dma(7, 1, 'wo7'))
        for r in range(16):
            e(f'v_mul_f32 v{Oa+r}, v{Oa+r}, v21')
            e(f'v_fma_f32 v{Oa+r}, v{RO+r}, v22, v{Oa+r}')
        OBF = 128
        for i in range(8):
            e(cvt(OBF + i, Oa + 2 * i, Oa + 2 * i + 1))
        e(f"""
        buffer_store_dwordx4 {vr(OBF)}, v{self.vL16}, {srd(sWS)}, s{S_X} offen sc1 ;@ob
        buffer_store_dwordx4 {vr(OBF+4)}, v{self.vL16}, {srd(sWS)}, s{S_X} offen offset:1024 sc1 ;@ob""")
        e(oloads(1))
        self.stamp(9)
        self.tstamp2()
        macro(0)
        self.tstamp2()
        e('@wait ob')
        self.tstamp2()
        self.count_and_flag(3, 7, f's_mov_b32 s{S_T0}, s{S_FB}', t, t + 1)
        e(f"""
        s_mov_b32 s{sW}, s38
        s_mov_b32 s{sW+1}, s39
        s_barrier""")
        self.tstamp2()
        for st in range(8, 12):
            e(self.wo_dma(st, 0, 'wo8')); e(self.wo_dma(st, 1, 'wo8'))
        self.tstamp2()
        macro(1)
        self.tstamp2()
        self.poll(self.vFa, F2B_OFF, self.vFv)
        e('@vmclear')
        self.stamp(10)
        self.tstamp2()
        e(oloads(2)); e(oloads(3))
        self.tstamp2()
        e('s_barrier')
        self.tstamp2()
        for st in range(12, 16):
            e(self.wo_dma(st, 0, 'wo12')); e(self.wo_dma(st, 1, 'wo12'))
        macro(2)
        self.tstamp2()
        e('@wait wo12')
        e('s_barrier')
        self.tstamp2()
        macro(3)
        self.tstamp2()
        self.stamp(11)
        self.final_store()

    OBK = [140, 64]

    def oload_group(self, m, g, skip=False):
        L = []
        for q in range(4):
            x = []
            if q == 0:
                x += [f's_add_u32 s{S_OO}, s{S_R}, {(m & 1) * 4 + g}',
                      f's_and_b32 s{S_OO}, s{S_OO}, 7',
                      f's_lshl_b32 s{S_OO}, s{S_OO}, 12']
                if m >> 1:
                    x.append(f's_add_u32 s{S_OO}, s{S_OO}, 65536')
            tag = 'skip' if skip else f'o{m}_{4 * g + q}'
            x.append(f'buffer_load_dwordx4 {vr(self.OBK[m & 1] + 16 * g + 4 * q)}, v{self.vO3}, {srd(sWS)}, s{S_OO} offen' +
                     (f' offset:{q * 1024}' if q else '') + f' sc1 ;@{tag}')
            L.append(x)
        return L

    def tail3(self):
        e = self.emit
        cfg = self.cfg
        Oa, Ob, la, lb = self.Oa, self.Ob, self.la, self.lb
        ACC0, ACC1 = 0, 16
        WB = [32, 40, 48, 56]
        OB = self.OBK
        vR3, vR3b = self.vR3, self.vR3b
        t = self.vS

        def wreads(s):
            st, h2, k = s >> 2, (s >> 1) & 1, s & 1
            slot = st % 8
            base = vR3 if slot < 4 else vR3b
            o = (slot & 3) * 16384 + (h2 * 4 + 2 * k) * 1024
            b = WB[s & 3]
            return [f'ds_read_b64_tr_b16 {vr(b, 2)}, v{base} offset:{o}',
                    f'ds_read_b64_tr_b16 {vr(b + 2, 2)}, v{base} offset:{o + 1024}',
                    f'ds_read_b64_tr_b16 {vr(b + 4, 2)}, v{base} offset:{o + 512}',
                    f'ds_read_b64_tr_b16 {vr(b + 6, 2)}, v{base} offset:{o + 1536}']

        ol = lambda m: [x for g in range(4) for x in self.oload_group(m, g)]
        o1, o2, o3 = ol(1), ol(2), ol(3)
        pre1 = cfg.get('pre1', 2)

        self.stamp(6)
        self.tstamp2()
        for x in self.oload_group(0, 3):
            e(x)
        early = o1[16 - 4 * pre1:]
        body = f"""
        v_sub_f32 v{self.vMa}, 0, v{self.Ca}
        v_sub_f32 v{self.vMb}, 0, v{self.Cb}
        v_rcp_f32 v{lb+1}, v{lb}
        v_log_f32 v{lb+2}, v{lb}
        s_mul_i32 s{S_T0}, s{S_W}, {MRG3_STRIDE}
        s_add_u32 s{S_T0}, s{S_T0}, {hx(MRG3)}
        v_add_u32 v{t}, s{S_T0}, v{self.vL16}
        v_lshlrev_b32 v{t+1}, 2, v{self.vL}
        v_add_u32 v{t+2}, s{S_T0}, v{t+1}
        v_add_f32 v{lb+2}, v{lb+2}, v{self.vMb}
        s_mov_b32 s{sW}, s38
        s_mov_b32 s{sW+1}, s39""".split('\n')
        for h in range(2):
            for r in range(8):
                body.append(f'v_mul_f32 v{Ob+8*h+r}, v{Ob+8*h+r}, v{lb+1}')
            for i in range(4):
                body.append(cvt(4 * h + i, Ob + 8 * h + 2 * i, Ob + 8 * h + 2 * i + 1))
            body.append(f'ds_write_b128 v{t}, {vr(4 * h)} offset:{h * 1024}')
        body += f"""
        ds_write_b32 v{t+2}, v{lb+2} offset:2048
        v_rcp_f32 v{la+1}, v{la}
        v_log_f32 v{la+2}, v{la}
        s_xor_b32 s{S_T1}, s{S_W}, 4
        s_mul_i32 s{S_T0}, s{S_T1}, {MRG3_STRIDE}
        s_add_u32 s{S_T0}, s{S_T0}, {hx(MRG3)}
        v_add_u32 v{t}, s{S_T0}, v{self.vL16}
        v_add_u32 v{t+2}, s{S_T0}, v{t+1}
        v_add_f32 v{la+2}, v{la+2}, v{self.vMa}""".split('\n')
        n0 = len(body)
        for r in range(16):
            body.append(f'v_mul_f32 v{Oa+r}, v{Oa+r}, v{la+1}')
        e(spread(body, early, first=n0 - 9 if cfg.get('late1', 1) else 4))
        self.tstamp2()
        e("""
        s_waitcnt lgkmcnt(0)
        @wait woA
        s_barrier""")
        self.tstamp2()
        RO, RL = 8, 16
        e(f'ds_read_b32 v{RL}, v{t+2} offset:2048')
        for q in range(2):
            e(f'ds_read_b128 {vr(RO + 4 * q)}, v{t} offset:{q * 1024}')
        e(wreads(0)); e(wreads(1))
        La = la + 2
        e(f"""
        s_waitcnt lgkmcnt(10)
        v_max_f32 v20, v{La}, v{RL}
        v_sub_f32 v21, v{La}, v20
        v_sub_f32 v22, v{RL}, v20
        v_exp_f32 v21, v21
        v_exp_f32 v22, v22
        v_mov_b32 v24, 0xffff0000
        v_add_f32 v23, v21, v22
        v_rcp_f32 v23, v23
        v_mul_f32 v23, v23, v{self.vG1}
        v_mul_f32 v21, v21, v23
        v_mul_f32 v22, v22, v23
        s_waitcnt lgkmcnt(8)""")
        OBF = 128
        for i in range(8):
            e(f'v_lshlrev_b32 v25, 16, v{RO+i}')
            e(f'v_and_b32 v26, v24, v{RO+i}')
            e(f'v_mul_f32 v{Oa+2*i}, v{Oa+2*i}, v21')
            e(f'v_mul_f32 v{Oa+2*i+1}, v{Oa+2*i+1}, v21')
            e(f'v_fma_f32 v{Oa+2*i}, v25, v22, v{Oa+2*i}')
            e(f'v_fma_f32 v{Oa+2*i+1}, v26, v22, v{Oa+2*i+1}')
            e(cvt(OBF + i, Oa + 2 * i, Oa + 2 * i + 1))
            if i in (3, 7):
                h = i >> 2
                e(f'buffer_store_dwordx4 {vr(OBF + 4 * h)}, v{self.vL16}, {srd(sWS)}, s{S_X} offen' +
                  (' offset:1024' if h else '') + ' sc1 ;@ob')
        self.stamp(9)
        self.tstamp2()
        post = {s: [] for s in range(64)}
        pre = {s: [] for s in range(64)}
        rest1 = o1[:16 - 4 * pre1]
        for n, x in enumerate(rest1):
            post[n].append(x)
        nf = cfg.get('nf', 4)
        lnf = self.lab('noflagB')
        post[nf].insert(0, ['@wait ob', 's_mov_b64 exec, 1', f'v_mov_b32 v{t}, {hx(CNT + 12)}', f'v_mov_b32 v{t+1}, 1',
                            f'ds_add_rtn_u32 v{t+1}, v{t}, v{t+1}', 's_mov_b64 exec, -1'])
        post[nf + 2].insert(0, ['s_mov_b64 exec, 1', f'v_cmp_ne_u32 vcc, 7, v{t+1}', f's_cbranch_vccnz {lnf}',
                                f'v_mov_b32 v{t+1}, 1', f'v_mov_b32 v{t}, 0',
                                f'buffer_store_dword v{t+1}, v{t}, {srd(sWS)}, s{S_FB} offen sc1 ;@skip',
                                f'{lnf}:', 's_mov_b64 exec, -1'])
        bar = {}
        for j in range(6):
            s0 = 8 * j + 7
            bar[s0] = None if j < 2 else f'wo{8 + 2 * (j - 2)}'
            if j < 4:
                w = [self.wo_dma(st, i, f'wo{8 + 2 * j}') for st in (8 + 2 * j, 9 + 2 * j) for i in range(2)]
                for n, x in enumerate(w):
                    post[s0 + n * cfg.get('wstep', 1)].append(x)
        nc = cfg.get('nc', 28)
        nb = nc - cfg.get('nbd', 4)
        post[nb].append([f's_mov_b32 s{S_T1}, {hx(F2B_OFF)}',
                         f'buffer_load_dword v{self.vFv}, v{self.vFa}, {srd(sWS)}, s{S_T1} offen sc1 ;@f2b'])
        for n, x in enumerate(o2):
            post[min(nc + (n * cfg.get('o2n', 8)) // 16, 63)].append(x)
        s3 = cfg.get('s3', 36)
        for n, x in enumerate(o3):
            post[max(s3 + (n * cfg.get('o3n', 16)) // 16, 16 + n)].append(x)
        marks = set(cfg.get('marks', [15, 19, 31, 47]))
        for s in range(64):
            m, n = s >> 4, s & 15
            if s == nc:
                self.tstamp2()
                self.check_flags(self.vFa, self.vFv, F2B_OFF, 'f2b')
                self.stamp(10)
                self.tstamp2()
            if s + 2 < 64:
                e(wreads(s + 2))
                e('s_waitcnt lgkmcnt(8)')
            elif s == 62:
                e('s_waitcnt lgkmcnt(4)')
            else:
                e('s_waitcnt lgkmcnt(0)')
            e(f'@wait o{m}_{n}')
            b = WB[s & 3]
            of = OB[m & 1] + 4 * n
            first = 'z' if s == 0 else None
            e(mf32(ACC0, b, of, first))
            e(mf32(ACC1, b + 4, of, first))
            if s in bar:
                if bar[s]:
                    e(f'@wait {bar[s]}')
                e('s_barrier')
            for x in post[s]:
                e(x)
            if s in marks:
                self.tstamp2()
        self.tstamp2()
        self.stamp(11)
        self.final_store()

    def final_store(self):
        e = self.emit
        ACC0, ACC1 = 0, 16
        vE = self.vS
        lA = self.lab('keep1')
        lB = self.lab('kept')
        e(f"""
        s_lshl_b32 s{S_T0}, s{S_W}, 12
        s_add_u32 s{S_T0}, s{S_T0}, {hx(XCH2)}
        v_add_u32 v{vE}, s{S_T0}, v{self.vL16}
        s_xor_b32 s{S_T1}, s{S_W}, 4
        s_lshl_b32 s{S_T0}, s{S_T1}, 12
        s_add_u32 s{S_T0}, s{S_T0}, {hx(XCH2)}
        v_add_u32 v{vE+1}, s{S_T0}, v{self.vL16}
        s_cmp_eq_u32 s{S_BR}, 1
        s_cbranch_scc1 {lA}""")
        for q in range(4):
            e(f'ds_write_b128 v{vE}, {vr(ACC1 + 4 * q)} offset:{q * 1024}')
        e(f's_branch {lB}')
        e(f'{lA}:')
        for q in range(4):
            e(f'ds_write_b128 v{vE}, {vr(ACC0 + 4 * q)} offset:{q * 1024}')
        for r in range(16):
            e(f'v_mov_b32 v{ACC0+r}, v{ACC1+r}')
        e(f'{lB}:')
        e("""
        s_waitcnt lgkmcnt(0)
        s_barrier""")
        R = 32
        for q in range(4):
            e(f'ds_read_b128 {vr(R + 4 * q)}, v{vE+1} offset:{q * 1024}')
        e(f"""
        s_lshl_b32 s{S_T0}, s{S_MB3}, 7
        s_and_b32 s{S_T1}, s{S_W}, 3
        s_lshl_b32 s{S_T1}, s{S_T1}, 5
        s_add_u32 s{S_T0}, s{S_T0}, s{S_T1}
        v_and_b32 v{vE}, 31, v{self.vL}
        v_add_u32 v{vE}, s{S_T0}, v{vE}
        v_lshlrev_b32 v{vE}, 11, v{vE}
        v_lshl_add_u32 v{vE}, v{self.vHf}, 4, v{vE}
        s_lshl_b32 s{S_T0}, s{S_CT}, 7
        s_lshl_b32 s{S_T1}, s{S_BR}, 6
        s_add_u32 s{S_T0}, s{S_T0}, s{S_T1}
        v_add_u32 v{vE}, s{S_T0}, v{vE}
        s_waitcnt lgkmcnt(0)""")
        for r in range(16):
            e(f'v_add_f32 v{ACC0+r}, v{ACC0+r}, v{R+r}')
        P = 48
        for i in range(8):
            e(cvt(P + i, ACC0 + 2 * i, ACC0 + 2 * i + 1))
        for u in range(2):
            e(f'v_permlane32_swap_b32 v{P+4*u}, v{P+4*u+2}')
            e(f'v_permlane32_swap_b32 v{P+4*u+1}, v{P+4*u+3}')
        for u in range(2):
            e(f'buffer_store_dwordx4 {vr(P + 4 * u)}, v{vE}, {srd(sOUT)}, 0 offen' + (f' offset:{u * 32}' if u else ''))

    def build(self):
        e = self.emit
        stop = self.cfg.get('stop', 'full')
        self.prologue()
        self.gemm_loop()
        e(f'''
        s_cmp_eq_u32 s{S_BR}, 1
        s_cbranch_scc1 L_epiB''')
        self.epi_A()
        e('s_branch L_attn')
        self.epi_B()
        if self.cfg.get('v', 2) == 1:
            self.attention()
            if stop != 'attn':
                self.finalize_attn()
                if stop != 'fin':
                    self.outproj()
        else:
            self.attention2()
            self.tail3() if self.cfg.get('tail', 3) == 3 else self.tail2()
        e('s_waitcnt vmcnt(0) lgkmcnt(0)')
        self.stamp(12)
        self.dump_stamps()
        e('''
        s_waitcnt vmcnt(0) lgkmcnt(0)
        L_end:
        s_endpgm''')
        if self.cfg.get('v', 2) != 1:
            self.retry_path()
            e('s_endpgm')
        e('L_codeend:')
        body = self.a.finalize(report=self.cfg.get('report', False))
        return body


HEADER = open(os.path.join(os.path.dirname(os.path.abspath(__file__)), 'header.txt')).read()


def make(cfg):
    g = Gen(cfg)
    body = g.build()
    k = NAME + '_kernel'
    src = HEADER + f'''; @launch grid=(256,1,1) block=(512,1,1) lds={LDS_SIZE}
.amdgcn_target "amdgcn-amd-amdhsa--gfx950"
.text
.globl {k}
.p2align 8
.type {k},@function
{k}:
{body}.section .rodata,"a"
.p2align 6
.amdhsa_kernel {k}
  .amdhsa_next_free_vgpr 256
  .amdhsa_next_free_sgpr 96
  .amdhsa_accum_offset 256
  .amdhsa_group_segment_fixed_size 0
  .amdhsa_kernarg_size 88
  .amdhsa_user_sgpr_count 2
  .amdhsa_user_sgpr_kernarg_segment_ptr 1
  .amdhsa_system_sgpr_workgroup_id_x 1
  .amdhsa_float_denorm_mode_32 3
.end_amdhsa_kernel
'''
    return src, g


if __name__ == '__main__':
    import argparse, json
    ap = argparse.ArgumentParser()
    ap.add_argument('-o', default='cdna_kernels/' + NAME + '.s')
    ap.add_argument('--cfg', default='{}')
    args = ap.parse_args()
    cfg = json.loads(args.cfg)
    src, g = make(cfg)
    open(args.o, 'w').write(src)
    print('wrote', args.o, 'instructions', g.a.count, 'nops inserted', len(g.a.inserted))
```

```python
import re

REG_RE = re.compile(r'^(-|\|)?([vs])(\d+)\|?$')
RNG_RE = re.compile(r'^(-|\|)?([vs])\[(\d+):(\d+)\]\|?$')
TRANS = ('v_exp_f32', 'v_log_f32', 'v_rcp_f32', 'v_rsq_f32', 'v_sqrt_f32', 'v_sin_f32', 'v_cos_f32')


def regs_of(tok):
    tok = tok.strip()
    m = REG_RE.match(tok)
    if m:
        return {(m.group(2), int(m.group(3)))}
    m = RNG_RE.match(tok)
    if m:
        return {(m.group(2), i) for i in range(int(m.group(3)), int(m.group(4)) + 1)}
    if tok in ('vcc', '-vcc'):
        return {('s', 'vcc_lo'), ('s', 'vcc_hi')}
    if tok in ('vcc_lo', 'vcc_hi'):
        return {('s', tok)}
    if tok == 'exec':
        return {('s', 'exec_lo'), ('s', 'exec_hi')}
    if tok in ('exec_lo', 'exec_hi'):
        return {('s', tok)}
    if tok == 'm0':
        return {('s', 'm0')}
    return set()


def split_ops(rest):
    ops = []
    depth = 0
    cur = ''
    for ch in rest:
        if ch == '[':
            depth += 1
        if ch == ']':
            depth -= 1
        if ch == ',' and depth == 0:
            ops.append(cur.strip())
            cur = ''
        else:
            cur += ch
    if cur.strip():
        ops.append(cur.strip())
    return ops


class Ins:
    __slots__ = ('text', 'op', 'kind', 'defs', 'uses', 'A', 'B', 'C', 'D', 'passes', 'states',
                 'target', 'label', 'mods', 'data', 'wide', 'vuse', 'suse')

    def __init__(self, text):
        self.text = text
        self.label = None
        self.target = None
        self.defs = set()
        self.uses = set()
        self.A = self.B = self.C = self.D = set()
        self.passes = 0
        self.states = 1
        self.mods = ''
        self.data = set()
        self.wide = False
        t = text.split(';')[0].strip()
        if t.endswith(':'):
            self.label = t[:-1]
            self.kind = 'label'
            self.op = ''
            self.states = 0
            return
        if t == '' or t.startswith('.'):
            self.kind = 'dir'
            self.op = ''
            self.states = 0
            return
        parts = t.split(None, 1)
        op = parts[0]
        self.op = op
        rest = parts[1] if len(parts) > 1 else ''
        ops = split_ops(rest)
        if ops:
            last = ops[-1].split()
            self.mods = ' '.join(last[1:])
            ops[-1] = last[0]
        R = [regs_of(o) for o in ops]
        if op.startswith('v_smfmac'):
            self.kind = 'mfma'
            self.D, self.A, self.B, self.C = R[0], R[1] | R[3], R[2], R[0]
            self.defs = set(R[0])
            self.uses = R[0] | R[1] | R[2] | R[3]
            self.passes = 8
        elif op.startswith('v_mfma'):
            self.kind = 'mfma'
            self.D, self.A, self.B, self.C = R[0], R[1], R[2], R[3]
            self.defs = set(R[0])
            self.uses = R[1] | R[2] | R[3]
            self.passes = 8 if '32x32x16' in op else 4
        elif op.startswith('v_'):
            self.kind = 'valu'
            if op.startswith('v_permlane') or op.startswith('v_swap'):
                self.defs = R[0] | R[1]
                self.uses = R[0] | R[1]
            elif op.startswith('v_cmp'):
                self.defs = R[0]
                self.uses = set().union(*R[1:])
            else:
                self.defs = R[0]
                self.uses = set().union(*R[1:]) if len(R) > 1 else set()
                if op.startswith('v_fmac') or op.startswith('v_dot2c') or op.startswith('v_mac') \
                        or op.startswith('v_pk_fmac'):
                    self.uses |= R[0]
                if op.startswith('v_cndmask_b32') and len(R) == 3:
                    self.uses |= regs_of('vcc')
                if op.startswith('v_writelane'):
                    self.uses |= R[0]
        elif op.startswith('ds_'):
            self.kind = 'ds'
            if op.startswith('ds_read') or '_rtn_' in op or op.startswith('ds_bpermute') \
                    or op.startswith('ds_permute') or op.startswith('ds_swizzle'):
                self.defs = R[0]
                self.uses = set().union(*R[1:]) if len(R) > 1 else set()
            else:
                self.uses = set().union(*R)
        elif op.startswith('buffer_') or op.startswith('global_'):
            self.kind = 'vmem'
            islds = ' lds' in (' ' + self.mods)
            if op.startswith('buffer_load') or op.startswith('global_load'):
                if islds:
                    self.uses = set().union(*R) | {('s', 'm0')}
                    self.kind = 'ldsdma'
                else:
                    self.defs = R[0]
                    self.uses = set().union(*R[1:])
            elif 'atomic' in op and ('sc0' in self.mods):
                self.defs = R[0]
                self.uses = set().union(*R)
            else:
                self.uses = set().union(*R)
                self.data = R[0]
                self.wide = op.endswith('x4') or op.endswith('x3')
        elif op.startswith('s_'):
            self.kind = 'salu'
            if op == 's_nop':
                self.states = int(ops[0], 0) + 1
            elif op in ('s_branch',) or op.startswith('s_cbranch'):
                self.target = ops[0]
            elif op.startswith('s_cmp') or op in ('s_waitcnt', 's_barrier', 's_endpgm', 's_sleep', 's_setprio'):
                self.uses = set().union(*R) if R else set()
            else:
                self.defs = R[0] if R else set()
                self.uses = set().union(*R[1:]) if len(R) > 1 else set()
                if 'saveexec' in op:
                    self.defs = self.defs | regs_of('exec')
        else:
            raise ValueError('unknown instruction: ' + text)


def V(s):
    return {r for r in s if r[0] == 'v'}


def S(s):
    return {r for r in s if r[0] == 's'}


def required(p, c):
    need = 0
    pk, ck = p.kind, c.kind
    if pk == 'valu':
        pv = V(p.defs)
        ps = S(p.defs)
        if ck == 'mfma' and pv & c.uses:
            need = max(need, 2)
        if ck == 'valu':
            if p.op in TRANS and c.op not in TRANS and pv & c.uses:
                need = max(need, 1)
            if c.op.startswith('v_permlane') and pv & c.uses:
                need = max(need, 2)
            if (c.op.startswith('v_readlane') or c.op.startswith('v_readfirstlane')) and pv & c.uses:
                need = max(need, 1)
            if ('row_' in c.mods or 'quad_perm' in c.mods or 'wave_' in c.mods) and pv & c.uses:
                need = max(need, 2)
            if ps & c.uses:
                need = max(need, 4 if c.op.startswith(('v_readlane', 'v_writelane')) else 2)
            if p.op.startswith('v_dot') and pv & (c.uses | c.defs):
                same_c = c.op == p.op
                if not same_c:
                    need = max(need, 3)
        if p.op.startswith('v_dot') and ck != 'valu' and pv & (c.uses | c.defs):
            need = max(need, 3)
        if p.op in TRANS and ck in ('ds', 'vmem') and pv & c.uses:
            need = max(need, 1)
        if ck in ('vmem', 'ldsdma') and ps & c.uses:
            need = max(need, 5)
    elif pk == 'mfma':
        D = p.D
        big = p.passes == 8
        if ck == 'mfma':
            if D & c.C:
                if not (D == c.C and p.passes == c.passes):
                    need = max(need, 10 if big else 6)
            if D & (c.A | c.B):
                need = max(need, 12 if big else 8)
            if D & c.D and not (D & c.C):
                if p.passes != c.passes:
                    need = max(need, 10 if big else 6)
        elif ck in ('valu', 'ds', 'vmem', 'ldsdma'):
            if D & (c.uses | c.defs):
                need = max(need, 12 if big else 8)
            if ck == 'valu' and (p.C & V(c.defs)):
                need = max(need, 7 if big else 3)
    elif pk == 'salu':
        if ('s', 'm0') in p.defs and ck == 'ldsdma':
            need = max(need, 1)
    elif pk == 'vmem':
        if p.wide and p.data & V(c.defs):
            need = max(need, 2 if ck == 'valu' else 1)
    return need


MAXLOOK = 14


class Asm:
    def __init__(self):
        self.lines = []

    def __call__(self, text):
        for ln in text.split('\n'):
            ln = ln.strip()
            if ln:
                self.lines.append(ln)

    def label(self, name):
        self.lines.append(name + ':')

    def finalize(self, report=False):
        ins = [Ins(l) for l in self.lines]
        labels = {x.label: i for i, x in enumerate(ins) if x.label}
        assert len(labels) == sum(1 for x in ins if x.label), 'duplicate label'
        preds = [[] for _ in ins]
        for i, x in enumerate(ins):
            if x.target is not None:
                preds[labels[x.target]].append(i)
            if i + 1 < len(ins) and x.op not in ('s_branch', 's_endpgm'):
                preds[i + 1].append(i)
        pre = [0] * len(ins)
        inserted = []
        for i, c in enumerate(ins):
            if c.kind in ('label', 'dir'):
                continue
            worst = 0
            why = None
            stack = [(q, 0) for q in preds[i]]
            seen = {}
            while stack:
                j, d = stack.pop()
                if j in seen and seen[j] <= d:
                    continue
                seen[j] = d
                p = ins[j]
                if p.kind not in ('label', 'dir'):
                    r = required(p, c)
                    if r - d > worst:
                        worst = r - d
                        why = p
                nd = d + p.states + pre[j]
                if nd < MAXLOOK:
                    for q in preds[j]:
                        stack.append((q, nd))
            if worst > 0:
                pre[i] = worst
                inserted.append((worst, why.text, c.text))
        if report:
            for w, a, b in inserted:
                print('  nop %d  between [%s] and [%s]' % (w, a, b))
        self.inserted = inserted
        out = []
        self.count = 0
        for i, x in enumerate(ins):
            if pre[i]:
                out.append('    s_nop %d' % (pre[i] - 1))
                self.count += 1
            if x.kind == 'label':
                out.append(x.text)
            else:
                out.append('    ' + x.text)
                self.count += 1
        return '\n'.join(out) + '\n'
```

```python
import sys, struct, os
sys.path.insert(0, os.path.dirname(os.path.abspath(__file__)))
from asmlib import Asm

NAME = 'gated_mix__linear_kernel_hedgehog__mha_block__prompt'
L2E = 1.4426950408889634
QS = L2E / (32 ** 0.5)


def f2u(x):
    return struct.unpack('<I', struct.pack('<f', x))[0]


def hx(x):
    return '0x%x' % x


KV_OFF = 0
O_OFF = 8 << 20
KVP_OFF = 16 << 20
ZP_OFF = 18 << 20
FLG_OFF = 19 << 20
F1_OFF = FLG_OFF
F1B_OFF = FLG_OFF + 2048
F2_OFF = FLG_OFF + 4096
F2A_OFF = FLG_OFF + 4096
F2B_OFF = FLG_OFF + 6144
WS_SIZE = 20 << 20
XS = 0
WSL = 49152
WPHI = 147456
GW = 151552
LOGP = GW
LOG = 161792
CNT = 162304
FL = 161792
ZT2 = 162368
ZT0 = 162624
KTX = 153600
MRG2 = 126976
MRG2_STRIDE = 4352
XCH2 = 0
MRG3 = 131072
MRG3_STRIDE = 2304
QX = 75776
PHI = 16384
KVX = 49152
KVZ = 65536
MRG = 66560
MRG_STRIDE = 9216
ZT = 140288
XCH = 131072
LDS_SIZE = 163840
SPIN = 1 << 16
BIGOFF = 0x7000000
MOFF = 100.0

sX, sW, sWS, sOUT, sDBG, sT = 4, 8, 12, 16, 20, 24
S_W, S_BR, S_HD, S_TT, S_HP, S_MB, S_C, S_HEAD = 48, 49, 50, 51, 52, 53, 54, 55
S_DWL, S_DXL, S_WC, S_XC, S_XN, S_XNN, S_WK, S_U = 56, 57, 58, 59, 60, 61, 62, 63
S_T0, S_T1, S_T2, S_T3, S_T4 = 64, 65, 66, 67, 68
S_L2E, S_QS, S_SPIN, S_RETRY, S_J, S_ROT, S_IT = 69, 70, 71, 72, 73, 74, 75
S_4096 = 76
S_EX = 78
S_OFF, S_X, S_MB3, S_CT, S_FA, S_FB, S_R = 77, 80, 81, 82, 83, 84, 85
S_OO = 86
S_PB, S_PD = 88, 90


def srd(b):
    return 's[%d:%d]' % (b, b + 3)


def vr(b, n=4):
    return 'v[%d:%d]' % (b, b + n - 1)


def mf32(d, A, B, C=None):
    c = vr(d, 16) if C is None else ('0' if C == 'z' else vr(C, 16))
    return 'v_mfma_f32_32x32x16_bf16 %s, %s, %s, %s' % (vr(d, 16), vr(A), vr(B), c)


def mf16(d, A, B, C=None):
    c = vr(d, 4) if C is None else ('0' if C == 'z' else vr(C, 4))
    return 'v_mfma_f32_16x16x32_bf16 %s, %s, %s, %s' % (vr(d, 4), vr(A), vr(B), c)


def smf(d, A, B, idx):
    return 'v_smfmac_f32_16x16x64_bf16 %s, %s, %s, v%d' % (vr(d, 4), vr(A), vr(B, 8), idx)


def cvt(d, a, b):
    return 'v_cvt_pk_bf16_f32 v%d, v%d, v%d' % (d, a, b)


def interleave(mf, other, per=None):
    out = []
    n = len(mf)
    k = len(other)
    pos = 0
    for i, m in enumerate(mf):
        out.append(m)
        end = (k * (i + 1)) // n if per is None else min(k, pos + per[i])
        out += other[pos:end]
        pos = end
    out += other[pos:]
    return out


class VM:
    def __init__(self, emit):
        self.ops = []
        self.seen = set()
        self.emit = emit

    def issue(self, text, tag):
        self.ops.append(tag)
        return text

    def wait_text(self, tag):
        assert tag in self.seen, 'wait on a tag that was never issued: ' + tag
        idx = max((i for i, t in enumerate(self.ops) if t == tag), default=-1)
        if idx < 0:
            return []
        n = len(self.ops) - 1 - idx
        assert n <= 63, n
        self.ops = self.ops[idx + 1:]
        return ['s_waitcnt vmcnt(%d)' % n]

    def wait(self, tag):
        self.emit(self.wait_text(tag))

    def clear(self):
        self.ops = []


def spread(body, extra, first=1, last=None):
    if not extra:
        return list(body)
    last = len(body) if last is None else last
    pos = [first + ((last - first) * i) // len(extra) for i in range(len(extra))]
    out = []
    k = 0
    for n, x in enumerate(body):
        while k < len(extra) and pos[k] <= n:
            out += extra[k]; k += 1
        out.append(x)
    while k < len(extra):
        out += extra[k]; k += 1
    return out


def is_mfma(x):
    return x.startswith(('v_mfma', 'v_smfmac'))


def is_vmem(x):
    return x.startswith(('buffer_', 'global_'))


def shadow(body, extra, skip=0):
    if not extra:
        return list(body)
    mpos = [n for n, x in enumerate(body) if is_mfma(x)]
    mpos = mpos[min(skip, len(mpos) - 1):]
    k, m = len(extra), len(mpos)
    slots = [[] for _ in mpos]
    for i, it in enumerate(extra):
        slots[(i * m) // k if k > m else min(m - 1, i + (m - k) * (i + 1) // (k + 1))].append(it)
    out = []
    for n, x in enumerate(body):
        its = slots[mpos.index(n)] if n in mpos else []
        if its:
            first = its[0]
            v = next((j for j, y in enumerate(first) if is_vmem(y)), 0)
            hoist = all(y.startswith('s_') for y in first[:v])
            if hoist:
                out += first[:v]
            out.append(x)
            out += first[v:] if hoist else first
            for it in its[1:]:
                out += it
        else:
            out.append(x)
    return out


class Gen:
    def __init__(self, cfg):
        self.cfg = cfg
        self.a = Asm()
        self.uid = 0
        self.par16 = 0
        self.vm = VM(self.emit)

    def lab(self, s):
        self.uid += 1
        return 'L_%s_%d' % (s, self.uid)

    def emit(self, lines):
        if isinstance(lines, str):
            lines = [lines]
        for chunk in lines:
            for ln in chunk.split('\n'):
                ln = ln.strip()
                if not ln:
                    continue
                if ln.startswith('@wait '):
                    for x in self.vm.wait_text(ln[6:].strip()):
                        self.a(x)
                    continue
                if ln == '@vmclear':
                    self.vm.clear()
                    continue
                tag = 'anon'
                if ';@' in ln:
                    ln, tag = ln.split(';@')
                    ln = ln.rstrip()
                if ln.startswith('buffer_') and tag != 'skip':
                    self.vm.ops.append(tag)
                    self.vm.seen.add(tag)
                self.a(ln)

    def stamp(self, i):
        if self.cfg.get('stamps'):
            self.emit(f'''
            s_memrealtime s[94:95]
            s_memtime s[92:93]
            s_waitcnt lgkmcnt(0)
            v_writelane_b32 v252, s94, {i}
            v_writelane_b32 v252, s92, {16 + i}''')

    def tstamp(self, i):
        if self.cfg.get('tstamps'):
            self.emit(f'''
            s_memtime s[92:93]
            s_waitcnt lgkmcnt(0)
            v_writelane_b32 v252, s92, {32 + i}''')

    def tstamp2(self):
        if self.cfg.get('tst2'):
            i = self.t2 = getattr(self, 't2', -1) + 1
            self.emit(f'''
            s_memrealtime s[92:93]
            s_waitcnt lgkmcnt(0)
            v_writelane_b32 v252, s92, {32 + i}''')

    def tstamp3(self):
        if self.cfg.get('tst3'):
            i = self.t3 = getattr(self, 't3', -1) + 1
            self.emit(f'''
            s_memrealtime s[92:93]
            s_waitcnt lgkmcnt(0)
            v_writelane_b32 v252, s92, {32 + i}''')

    def tstamp4(self):
        if self.cfg.get('tst4'):
            i = self.t4 = getattr(self, 't4', -1) + 1
            self.emit(f'''
            s_memrealtime s[92:93]
            s_waitcnt lgkmcnt(0)
            v_writelane_b32 v252, s92, {32 + i}''')

    def dump_stamps(self):
        if not self.cfg.get('stamps'):
            return
        e = self.emit
        e(f'''
        s_mov_b32 s{sT}, s46
        s_mov_b32 s{sT+1}, s47
        s_mov_b32 s{sT+2}, {hx(64 << 20)}
        s_mov_b32 s{sT+3}, 0x20000
        s_lshl_b32 s{S_T0}, s2, 3
        s_add_u32 s{S_T0}, s{S_T0}, s{S_W}
        s_lshl_b32 s{S_T0}, s{S_T0}, 8
        s_add_u32 s{S_T0}, s{S_T0}, {hx(32 << 20)}
        v_lshlrev_b32 v1, 2, v{self.vL}
        buffer_store_dword v252, v1, {srd(sT)}, s{S_T0} offen''')

    def make_srd(self, b, lo, hi, size):
        self.emit(f'''
        s_mov_b32 s{b}, s{lo}
        s_mov_b32 s{b+1}, s{hi}
        s_mov_b32 s{b+2}, {hx(size)}
        s_mov_b32 s{b+3}, 0x20000''')

    def poll(self, voff, soff_imm, vtmp, srdb=sWS, want=1):
        l0 = self.lab('poll')
        l1 = self.lab('polled')
        self.emit(f'''
        s_mov_b32 s{S_SPIN}, 0
        s_mov_b32 s{S_T4}, {hx(soff_imm)}
        {l0}:
        buffer_load_dword v{vtmp}, v{voff}, {srd(srdb)}, s{S_T4} offen sc1 ;@skip
        s_waitcnt vmcnt(0)
        v_cmp_ne_u32 vcc, {want}, v{vtmp}
        s_cbranch_vccz {l1}
        s_add_u32 s{S_SPIN}, s{S_SPIN}, 1
        s_cmp_ge_u32 s{S_SPIN}, {hx(SPIN)}
        s_cbranch_scc1 {l1}
        s_sleep 1
        s_branch {l0}
        {l1}:''')

    def count_and_flag(self, cnt_idx, last, flag_soff_expr, vt0, vt1):
        l1 = self.lab('noflag')
        self.emit(f'''
        s_mov_b64 exec, 1
        v_mov_b32 v{vt0}, {hx(CNT + 4 * cnt_idx)}
        v_mov_b32 v{vt1}, 1
        ds_add_rtn_u32 v{vt1}, v{vt0}, v{vt1}
        s_waitcnt lgkmcnt(0)
        v_cmp_ne_u32 vcc, {last}, v{vt1}
        s_cbranch_vccnz {l1}''')
        self.emit(flag_soff_expr)
        self.emit(f'''
        v_mov_b32 v{vt1}, 1
        v_mov_b32 v{vt0}, 0
        buffer_store_dword v{vt1}, v{vt0}, {srd(sWS)}, s{S_T0} offen sc1 ;@skip
        {l1}:
        s_mov_b64 exec, -1''')

    Q0, Q1, K0, K1, V0, V1 = 0, 16, 32, 48, 64, 80
    F = [dict(x0=96, x1=100, wq=104, wk=108, wv=112), dict(x0=116, x1=120, wq=124, wk=128, wv=132)]
    GWF, GACC = 136, 140
    vWr, vWa, vXr, vXa, vDW, vDX, vGa = 142, 143, 144, 148, 149, 150, 151
    vL, vL16, vHf = 253, 254, 255
    vT = 155
    vDummy = 164
    vDb = 165

    def prologue(self):
        e = self.emit
        vL, vL16, vHf, vT = self.vL, self.vL16, self.vHf, self.vT
        t0, t1, t2 = vT, vT + 1, vT + 2
        e(f"""
        s_cmp_ge_u32 s2, 256
        s_cbranch_scc1 L_end
        s_load_dwordx4 s[28:31], s[0:1], 0
        s_load_dwordx4 s[32:35], s[0:1], 16
        s_load_dwordx4 s[36:39], s[0:1], 40
        s_load_dwordx4 s[40:43], s[0:1], 56
        s_load_dwordx4 s[44:47], s[0:1], 72
        v_and_b32 v{vL}, 63, v0
        v_lshrrev_b32 v{vT}, 6, v0
        v_lshlrev_b32 v{vL16}, 4, v{vL}
        v_readfirstlane_b32 s{S_W}, v{vT}
        v_lshrrev_b32 v{vHf}, 5, v{vL}
        s_and_b32 s{S_T0}, s2, 7
        s_lshr_b32 s{S_T1}, s2, 3
        s_and_b32 s{S_T2}, s{S_T1}, 1
        s_lshl_b32 s{S_HP}, s{S_T0}, 1
        s_add_u32 s{S_HP}, s{S_HP}, s{S_T2}
        s_xor_b32 s{S_HP}, s{S_HP}, {self.cfg.get('hpx', 0)}
        s_lshr_b32 s{S_MB}, s{S_T1}, 1
        s_lshr_b32 s{S_BR}, s{S_W}, 2
        s_lshr_b32 s{S_C}, s{S_W}, 1
        s_and_b32 s{S_HD}, s{S_C}, 1
        s_and_b32 s{S_TT}, s{S_W}, 1
        s_lshl_b32 s{S_HEAD}, s{S_HP}, 1
        s_add_u32 s{S_HEAD}, s{S_HEAD}, s{S_HD}""")
        e(f"""
        s_lshl_b32 s{S_T0}, s{S_MB}, 7
        s_lshl_b32 s{S_T1}, s{S_W}, 3
        s_add_u32 s{S_T0}, s{S_T0}, s{S_T1}
        v_lshrrev_b32 v{t0}, 3, v{vL}
        v_add_u32 v{t0}, s{S_T0}, v{t0}
        v_lshlrev_b32 v{t0}, 11, v{t0}
        s_lshl_b32 s{S_T1}, s{S_TT}, 2
        v_lshrrev_b32 v{t1}, 4, v{vL}
        v_add_u32 v{t1}, s{S_T1}, v{t1}
        v_xor_b32 v{t1}, v{t1}, v{vL}
        v_and_b32 v{t1}, 7, v{t1}
        v_lshl_add_u32 v{self.vDX}, v{t1}, 4, v{t0}
        s_lshl_b32 s{S_DXL}, s{S_W}, 10
        s_add_u32 s{S_DXL}, s{S_DXL}, {hx(XS)}""")
        e(f"""
        s_and_b32 s{S_T0}, s{S_W}, 3
        s_lshl_b32 s{S_T1}, s{S_T0}, 3
        v_bfe_u32 v{t0}, v{vL}, 2, 3
        v_add_u32 v{t0}, s{S_T1}, v{t0}
        v_mul_u32_u24 v{t0}, 6144, v{t0}
        v_lshl_add_u32 v{t0}, v{vHf}, 6, v{t0}
        v_and_b32 v{t1}, 3, v{vL}
        v_lshl_add_u32 v{t0}, v{t1}, 4, v{t0}
        s_lshl_b32 s{S_T1}, s{S_HP}, 7
        v_add_u32 v{self.vDW}, s{S_T1}, v{t0}
        s_lshl_b32 s{S_T0}, s{S_T0}, 10
        s_mul_i32 s{S_T1}, s{S_BR}, 12288
        s_add_u32 s{S_DWL}, s{S_T0}, s{S_T1}
        s_add_u32 s{S_DWL}, s{S_DWL}, {hx(WSL)}
        v_mov_b32 v156, 0
        v_mov_b32 v157, 0
        v_mov_b32 v158, 0
        v_mov_b32 v159, 0
        s_waitcnt lgkmcnt(0)""")
        self.stamp(0)
        self.make_srd(sX, 28, 29, 4 << 20)
        e(f"""
        s_cmp_eq_u32 s{S_BR}, 1
        s_cselect_b32 s{sW}, s36, s30
        s_cselect_b32 s{sW+1}, s37, s31
        s_mov_b32 s{sW+2}, {hx(6 << 20)}
        s_mov_b32 s{sW+3}, 0x20000""")
        self.make_srd(sWS, 46, 47, WS_SIZE)
        lc = self.lab('noclear')
        e(f"""
        s_or_b32 s{S_T0}, s2, s{S_W}
        s_cmp_lg_u32 s{S_T0}, 0
        s_cbranch_scc1 {lc}""")
        for i in range(8):
            e(f"""
            s_mov_b32 s{S_T1}, {hx(FLG_OFF + i * 1024)}
            buffer_store_dwordx4 v[156:159], v{vL16}, {srd(sWS)}, s{S_T1} offen sc1 ;@skip""")
        e(f'{lc}:')
        e('@vmclear')
        self.dma_x_const(0, 0)
        self.dma_w_const(0)
        self.dma_x_const(0, 1)
        e(f"""
        s_cmp_eq_u32 s{S_BR}, 1
        s_cselect_b32 s{sT}, s40, s32
        s_cselect_b32 s{sT+1}, s41, s33
        s_movk_i32 s{sT+2}, 2048
        s_cselect_b32 s{sT+2}, s{sT+2}, 0x10000
        s_mov_b32 s{sT+3}, 0x20000
        s_and_b32 s{S_T0}, s{S_W}, 3
        s_lshl_b32 s{S_T0}, s{S_T0}, 10
        s_lshl_b32 s{S_T1}, s{S_HP}, 12
        s_add_u32 s{S_T1}, s{S_T1}, s{S_T0}
        s_add_u32 s{S_T0}, s{S_T0}, {hx(WPHI)}
        s_lshl_b32 s{S_T2}, s{S_TT}, 10
        s_add_u32 s{S_T3}, s{S_T2}, {hx(GW)}
        s_cmp_eq_u32 s{S_BR}, 1
        s_cselect_b32 s{S_T1}, s{S_T2}, s{S_T1}
        s_cselect_b32 m0, s{S_T3}, s{S_T0}
        s_nop 0
        buffer_load_dwordx4 v{vL16}, {srd(sT)}, s{S_T1} offen lds ;@first""")
        for sp in range(-3, 0):
            self.dma_w_const(sp + 4)
            u = (sp + 5) >> 1
            h = (sp + 1) & 1
            self.dma_x_const(u, h)
        if self.cfg.get('code_prefetch', True):
            e(f"""
            s_getpc_b64 s[24:25]
            L_pcbase:
            s_mov_b32 s26, L_codeend-L_pcbase
            s_mov_b32 s27, 0x20000
            v_lshlrev_b32 v{vT+1}, 7, v0
            buffer_load_dword v{self.vDummy}, v{vT+1}, {srd(sT)}, 0 offen""")
        if self.cfg.get('pf', 0):
            self.input_prefetch()
        if self.cfg.get('mallpf', 1) == 2:
            lq = self.lab('nomp')
            e(f's_cmp_eq_u32 s{S_BR}, 0')
            e(f's_cbranch_scc0 {lq}')
            self.mall_prefetch(vT + 1)
            e(f'{lq}:')
        e(f"""
        v_lshlrev_b32 v{vT+1}, 2, v0
        v_add_u32 v{vT+1}, {hx(LOG)}, v{vT+1}
        ds_write_b32 v{vT+1}, v158
        s_mov_b32 s{S_L2E}, {hx(f2u(L2E))}
        s_mov_b32 s{S_QS}, {hx(f2u(QS))}
        s_mov_b32 s{S_4096}, 4096""")
        e(f"""
        v_bfe_u32 v{t0}, v{vL}, 2, 2
        v_lshlrev_b32 v{t0}, 6, v{t0}
        v_bfe_u32 v{t1}, v{vL}, 4, 1
        v_lshl_add_u32 v{t0}, v{t1}, 5, v{t0}
        v_and_b32 v{t1}, 3, v{vL}
        v_lshl_add_u32 v{t0}, v{t1}, 3, v{t0}
        v_lshl_add_u32 v{self.vWr}, v{vHf}, 10, v{t0}
        s_mul_i32 s{S_T0}, s{S_BR}, 12288
        s_lshl_b32 s{S_T1}, s{S_HD}, 9
        s_add_u32 s{S_T0}, s{S_T0}, s{S_T1}
        s_add_u32 s{S_T0}, s{S_T0}, {hx(WSL)}
        v_add_u32 v{self.vWr}, s{S_T0}, v{self.vWr}""")
        e(f"""
        v_and_b32 v{t0}, 31, v{vL}
        s_lshl_b32 s{S_T0}, s{S_TT}, 6
        v_add_u32 v{t0}, s{S_T0}, v{t0}
        v_lshlrev_b32 v{t0}, 7, v{t0}
        v_bfe_u32 v{t1}, v{vL}, 1, 3
        v_xor_b32 v{t1}, v{t1}, v{vHf}""")
        for sg in range(4):
            e(f"""
            v_xor_b32 v{t2}, {2*sg}, v{t1}
            v_lshl_add_u32 v{self.vXr+sg}, v{t2}, 4, v{t0}""")
        e(f"""
        s_lshl_b32 s{S_T0}, s{S_C}, 5
        s_add_u32 s{S_T0}, s{S_T0}, {hx(GW)}
        v_lshlrev_b32 v{t0}, 4, v{vHf}
        v_add_u32 v{self.vGa}, s{S_T0}, v{t0}
        v_mov_b32 v{self.GACC}, 0
        v_mov_b32 v{self.GACC+1}, 0""")
        for r in range(0, 96):
            e(f'v_mov_b32 v{r}, 0')
        self.make_srd(sOUT, 42, 43, 4 << 20)
        self.make_srd(sDBG, 44, 45, 256)
        e(f"""
        s_mov_b32 s{S_WC}, 0
        s_mov_b32 s{S_XC}, 0
        s_mov_b32 s{S_XN}, 16384
        s_mov_b32 s{S_XNN}, 32768
        s_mov_b32 s{S_WK}, {hx(4 * 196608)}
        s_mov_b32 s{S_U}, 0
        v_mov_b32 v{self.vWa}, v{self.vWr}
        v_mov_b32 v{self.vXa}, v{self.vXr}
        @wait first
        s_waitcnt lgkmcnt(0)
        s_barrier""")
        self.stamp(1)
        lc = self.lab('nopub')
        e(f"""
        s_or_b32 s{S_T0}, s2, s{S_W}
        s_cmp_lg_u32 s{S_T0}, 0
        s_cbranch_scc1 {lc}
        v_mov_b32 v{t0}, 1
        buffer_store_dword v{t0}, off, {srd(sDBG)}, 0 sc1 ;@skip
        {lc}:""")
        F0 = self.F[0]
        e(self.frag_reads(F0, 0))
        e(f'ds_read_b128 {vr(self.GWF)}, v{self.vGa}')
        e('s_waitcnt lgkmcnt(0)')

    def input_prefetch(self):
        e = self.emit
        t0 = self.vT
        mode = self.cfg.get('pf')
        e(f'''
        s_lshl_b32 s{S_T0}, s2, 3
        s_add_u32 s{S_T0}, s{S_T0}, s{S_W}''')
        if mode == 2:
            e(f'''
            s_lshl_b32 s{S_T0}, s{S_W}, 8
            s_add_u32 s{S_T0}, s{S_T0}, s2''')
        e(f'''
        s_mov_b32 s{sT}, s28
        s_mov_b32 s{sT+1}, s29
        s_mov_b32 s{sT+2}, {hx(4 << 20)}
        s_cmp_ge_u32 s{S_T0}, 512
        s_cselect_b32 s{sT}, s30, s{sT}
        s_cselect_b32 s{sT+1}, s31, s{sT+1}
        s_cselect_b32 s{sT+2}, {hx(6 << 20)}, s{sT+2}
        s_cselect_b32 s{S_T1}, 512, 0
        s_cmp_ge_u32 s{S_T0}, 1280
        s_cselect_b32 s{sT}, s36, s{sT}
        s_cselect_b32 s{sT+1}, s37, s{sT+1}
        s_cselect_b32 s{S_T1}, 1280, s{S_T1}
        s_sub_u32 s{S_T0}, s{S_T0}, s{S_T1}
        s_lshl_b32 s{S_T0}, s{S_T0}, 13
        v_lshlrev_b32 v{t0}, 7, v{self.vL}
        buffer_load_dword v{self.vDummy}, v{t0}, {srd(sT)}, s{S_T0} offen''')

    def dma_x_const(self, u, h):
        self.emit(f'''
        s_add_u32 m0, s{S_DXL}, {hx((u % 3) * 16384 + h * 8192)}
        s_mov_b32 s{S_T0}, {hx(h * 131072 + u * 128)}
        buffer_load_dwordx4 v{self.vDX}, {srd(sX)}, s{S_T0} offen lds''')

    def dma_w_const(self, st):
        for i in range(3):
            self.emit(f'''
            s_add_u32 m0, s{S_DWL}, {hx((st % 4) * 24576 + i * 4096)}
            s_mov_b32 s{S_T0}, {hx(st * 196608 + i * 2048)}
            buffer_load_dwordx4 v{self.vDW}, {srd(sW)}, s{S_T0} offen lds''')

    def frag_reads(self, F, step):
        o = step * 2048
        L = [f'ds_read_b128 {vr(F["x0"])}, v{self.vXa}',
             f'ds_read_b64_tr_b16 {vr(F["wq"], 2)}, v{self.vWa} offset:{o}',
             f'ds_read_b64_tr_b16 {vr(F["wq"] + 2, 2)}, v{self.vWa} offset:{o + 256}',
             f'ds_read_b128 {vr(F["x1"])}, v{self.vXa} offset:4096',
             f'ds_read_b64_tr_b16 {vr(F["wk"], 2)}, v{self.vWa} offset:{o + 4096}',
             f'ds_read_b64_tr_b16 {vr(F["wk"] + 2, 2)}, v{self.vWa} offset:{o + 4096 + 256}',
             f'ds_read_b64_tr_b16 {vr(F["wv"], 2)}, v{self.vWa} offset:{o + 8192}',
             f'ds_read_b64_tr_b16 {vr(F["wv"] + 2, 2)}, v{self.vWa} offset:{o + 8192 + 256}']
        return L

    def gemm_mfmas(self, F):
        if 'mf16' in self.cfg.get('exp', ''):
            pairs = [(self.Q0, F['wq'], F['x0']), (self.Q1, F['wq'], F['x1']), (self.K0, F['wk'], F['x0']),
                     (self.K1, F['wk'], F['x1']), (self.V0, F['x0'], F['wv']), (self.V1, F['x1'], F['wv'])]
            L = []
            for i, (d, A, B) in enumerate(pairs):
                d2, A2, B2 = pairs[(i + 3) % 6]
                o = 4 * self.par16
                L.append(mf16(d + o, A, B) + '\n' + mf16(d2 + 8 + o, A2, B2))
            self.par16 ^= 1
            return L
        return [mf32(self.Q0, F['wq'], F['x0']), mf32(self.Q1, F['wq'], F['x1']),
                mf32(self.K0, F['wk'], F['x0']), mf32(self.K1, F['wk'], F['x1']),
                mf32(self.V0, F['x0'], F['wv']), mf32(self.V1, F['x1'], F['wv'])]

    def gate_dots(self, F, sigma):
        l = self.lab('nogate')
        L = [f's_cmp_eq_u32 s{S_C}, {sigma}', f's_cbranch_scc0 {l}']
        for i in range(4):
            L.append(f'v_dot2_f32_bf16 v{self.GACC}, v{F["x0"]+i}, v{self.GWF+i}, v{self.GACC}')
            L.append(f'v_dot2_f32_bf16 v{self.GACC+1}, v{F["x1"]+i}, v{self.GWF+i}, v{self.GACC+1}')
        L.append(f'{l}:')
        return L

    def gemm_step(self, sigma, wdma=True, xdma=True, wait=8, last=False, extra=()):
        e = self.emit
        cur = self.F[sigma & 1]
        nxt = self.F[(sigma + 1) & 1]
        mf = self.gemm_mfmas(cur)
        second = sigma & 1
        pre = []
        if second and not last:
            pre += [f's_add_u32 s{S_T1}, s{S_WC}, 24576',
                    f's_cmp_eq_u32 s{S_T1}, 98304',
                    f's_cselect_b32 s{S_T1}, 0, s{S_T1}',
                    f'v_add_u32 v{self.vWa}, s{S_T1}, v{self.vWr}']
        xs = S_XN if sigma == 3 else S_XC
        if not last:
            pre += [f'v_add_u32 v{self.vXa}, s{xs}, v{self.vXr + ((sigma + 1) & 3)}']
        reads = self.frag_reads(nxt, 0 if second else 1) if not last else []
        dw, dx = [], []
        if second and wdma:
            dw += [f's_add_u32 s{S_T2}, s{S_DWL}, s{S_WC}']
            for i in range(3):
                dw += [f's_add_u32 m0, s{S_T2}, {i * 4096}',
                       f's_add_u32 s{S_T0}, s{S_WK}, {i * 2048}',
                       f'buffer_load_dwordx4 v{self.vDW}, {srd(sW)}, s{S_T0} offen lds']
        if second and xdma:
            if sigma == 1:
                dx += [f's_add_u32 s{S_T2}, s{S_DXL}, s{S_XNN}',
                       f's_add_u32 m0, s{S_T2}, 8192',
                       f's_lshl_b32 s{S_T0}, s{S_U}, 7',
                       f's_add_u32 s{S_T0}, s{S_T0}, {hx(131072 + 256)}']
            else:
                dx += [f's_add_u32 m0, s{S_DXL}, s{S_XC}',
                       f's_lshl_b32 s{S_T0}, s{S_U}, 7',
                       f's_add_u32 s{S_T0}, s{S_T0}, 384']
            dx += [f'buffer_load_dwordx4 v{self.vDX}, {srd(sX)}, s{S_T0} offen lds']
        post = []
        if second and not last:
            if wdma:
                post.append(f's_add_u32 s{S_WK}, s{S_WK}, {hx(196608)}')
            post.append(f's_mov_b32 s{S_WC}, s{S_T1}')
        e(pre)
        e(mf[0]); e(reads[0:3])
        e(mf[1]); e(reads[3:6])
        e(mf[2]); e(reads[6:8])
        self.emit(self.gate_dots(cur, sigma))
        if sigma == 3 and not last:
            e(f'v_add_u32 v{self.vGa}, 128, v{self.vGa}')
            e(f'ds_read_b128 {vr(self.GWF)}, v{self.vGa}')
        if second:
            e(mf[3]); e(dw[:7])
            e(mf[4]); e(dw[7:] + dx + post + list(extra))
            e(mf[5])
            if not last:
                e('s_waitcnt lgkmcnt(0)')
        else:
            e(mf[3]); e(mf[4]); e(mf[5])
            if wait is None:
                e('s_waitcnt lgkmcnt(0)')
            else:
                e(f's_waitcnt vmcnt({wait}) lgkmcnt(0)')
                e('s_barrier')

    def gemm_rotate(self):
        self.emit(f'''
        s_mov_b32 s{S_T0}, s{S_XC}
        s_mov_b32 s{S_XC}, s{S_XN}
        s_mov_b32 s{S_XN}, s{S_XNN}
        s_mov_b32 s{S_XNN}, s{S_T0}
        s_add_u32 s{S_U}, s{S_U}, 1''')

    def gemm_loop(self):
        e = self.emit
        e('L_gemm:')
        for sg in range(4):
            self.gemm_step(sg)
        self.gemm_rotate()
        e(f'''
        s_cmp_lt_u32 s{S_U}, 13
        s_cbranch_scc1 L_gemm''')
        self.gemm_step(0); self.gemm_step(1); self.gemm_step(2); self.gemm_step(3, xdma=False)
        self.gemm_rotate()
        self.gemm_step(0, wait=7)
        l0, l1 = self.lab('dbgw'), self.lab('dbgx')
        self.gemm_step(1, wdma=False, xdma=False,
                       extra=[f's_cmp_eq_u32 s{S_W}, 4', f's_cbranch_scc1 {l0}',
                              f'buffer_load_dword v{self.vDb}, off, {srd(sX)}, 0',
                              f's_branch {l1}', f'{l0}:',
                              f'buffer_load_dword v{self.vDb}, off, {srd(sDBG)}, 0 sc1', f'{l1}:'])
        self.gemm_step(2, wait=4)
        self.gemm_step(3, wdma=False, xdma=False)
        self.gemm_rotate()
        self.gemm_step(0, wait=1)
        self.gemm_step(1, wdma=False, xdma=False)
        self.gemm_step(2, wait=None)
        self.gemm_step(3, wdma=False, xdma=False, last=True)
        t0 = self.vT
        self.stamp(2)
        e(f'''
        v_permlane32_swap_b32 v{self.GACC}, v{self.GACC+1}
        s_lshl_b32 s{S_T0}, s{S_TT}, 8
        s_lshl_b32 s{S_T1}, s{S_C}, 9
        s_add_u32 s{S_T0}, s{S_T0}, s{S_T1}
        s_add_u32 s{S_T0}, s{S_T0}, {hx(LOGP)}
        v_lshl_add_u32 v{t0}, v{self.vL}, 2, s{S_T0}
        v_add_f32 v{self.GACC}, v{self.GACC}, v{self.GACC+1}
        ds_write_b32 v{t0}, v{self.GACC}''')
        self.stamp(3)

    Sa, Sb, Ca, Cb, Oa, Ob = 0, 16, 32, 48, 64, 80
    QF = 96
    Pa, Pb = 112, 120
    la, lb = 128, 132
    ONES = 136
    KVB = [140, 156, 172, 188]
    vKV = 204
    vMa, vMb = 205, 206
    vSI = 205
    vA = 207

    def epi_B(self):
        e = self.emit
        t0 = self.vT
        e('L_epiB:')
        if self.cfg.get('bprio', 0):
            e(f's_setprio {self.cfg.get("bprio", 0)}')
        e(f'''
        s_lshl_b32 s{S_T0}, s{S_HEAD}, 18
        s_lshl_b32 s{S_T1}, s{S_MB}, 14
        s_add_u32 s{S_T0}, s{S_T0}, s{S_T1}
        s_lshl_b32 s{S_T1}, s{S_TT}, 13
        s_add_u32 s{S_T0}, s{S_T0}, s{S_T1}
        v_add_u32 v{t0}, s{S_T0}, v{self.vL16}''')
        kf, vf = 112, 128
        for tau, acc in ((0, self.K0), (1, self.K1)):
            for i in range(8):
                e(cvt(kf + tau * 8 + i, acc + 2 * i, acc + 2 * i + 1))
            so = '0' if tau == 0 else f's{S_4096}'
            e(f'buffer_store_dwordx4 {vr(kf + tau * 8)}, v{t0}, {srd(sWS)}, {so} offen sc1')
            e(f'buffer_store_dwordx4 {vr(kf + tau * 8 + 4)}, v{t0}, {srd(sWS)}, {so} offen offset:1024 sc1')
        for tau, acc in ((0, self.V0), (1, self.V1)):
            for i in range(8):
                e(cvt(vf + tau * 8 + i, acc + 2 * i, acc + 2 * i + 1))
            so = '0' if tau == 0 else f's{S_4096}'
            e(f'buffer_store_dwordx4 {vr(vf + tau * 8)}, v{t0}, {srd(sWS)}, {so} offen offset:2048 sc1')
            e(f'buffer_store_dwordx4 {vr(vf + tau * 8 + 4)}, v{t0}, {srd(sWS)}, {so} offen offset:3072 sc1')
        e(f'''
        s_lshl_b32 s{S_T0}, s{S_HD}, 1
        s_add_u32 s{S_T0}, s{S_T0}, s{S_TT}
        s_lshl_b32 s{S_T0}, s{S_T0}, 12
        s_add_u32 s{S_T0}, s{S_T0}, {QX}
        v_add_u32 v{t0+1}, s{S_T0}, v{self.vL16}''')
        for tau, acc in ((1, self.Q1), (0, self.Q0)):
            dst = self.QF + (0 if tau == 1 else 8)
            for r in range(16):
                e(f'v_mul_f32 v{acc+r}, s{S_QS}, v{acc+r}')
            for i in range(8):
                e(cvt(dst + i, acc + 2 * i, acc + 2 * i + 1))
            e(f'ds_write_b128 v{t0+1}, {vr(dst)} offset:{tau * 2048}')
            e(f'ds_write_b128 v{t0+1}, {vr(dst + 4)} offset:{tau * 2048 + 1024}')
        NB = self.cfg.get('nobar', 0)
        if NB:
            e(f'''
            s_and_b32 s{S_T0}, s{S_W}, 3
            s_lshl_b32 s{S_T0}, s{S_T0}, 3
            s_add_u32 s{S_T0}, s{S_T0}, {FL + 4}
            v_mov_b32 v{t0+2}, s{S_T0}
            v_mov_b32 v{t0+3}, 1
            s_waitcnt lgkmcnt(0)
            ds_write_b32 v{t0+2}, v{t0+3}''')
        if self.cfg.get('bprio', 0) and not self.cfg.get('bhold', 0):
            e('s_setprio 0')
        e('s_waitcnt vmcnt(0)')
        l = self.lab('dbgok')
        e(f'''
        s_cmp_lg_u32 s{S_W}, 4
        s_cbranch_scc1 {l}
        v_cmp_ne_u32 vcc, 1, v{self.vDb}
        s_cbranch_vccz {l}
        v_mov_b32 v{t0+2}, 0''')
        self.poll(t0 + 2, 0, self.vDb, srdb=sDBG)
        e(f'{l}:')
        self.count_and_flag(0, 3, f'''
        s_lshl_b32 s{S_T0}, s{S_HP}, 7
        s_lshl_b32 s{S_T1}, s{S_MB}, 2
        s_add_u32 s{S_T0}, s{S_T0}, s{S_T1}
        s_add_u32 s{S_T0}, s{S_T0}, {hx(F1_OFF)}''', t0 + 2, t0 + 3)
        if self.cfg.get('wopf', 3) == 2:
            self.wo_prefetch(t0 + 2)
        e('s_waitcnt lgkmcnt(0)')
        if not NB:
            e('s_barrier')
        e('s_branch L_attn')

    def wo_prefetch(self, t):
        e = self.emit
        e(f'''
        s_and_b32 s{S_T0}, s2, 7
        s_lshr_b32 s{S_T1}, s2, 3
        s_lshr_b32 s{S_T2}, s{S_T0}, 2
        s_lshl_b32 s{S_T2}, s{S_T2}, 3
        s_lshr_b32 s{S_T3}, s{S_T1}, 2
        s_add_u32 s{S_T2}, s{S_T2}, s{S_T3}
        s_lshl_b32 s{S_T2}, s{S_T2}, 7
        s_and_b32 s{S_T1}, s{S_T1}, 3
        s_lshl_b32 s{S_T1}, s{S_T1}, 2
        s_and_b32 s{S_T0}, s{S_W}, 3
        s_add_u32 s{S_T1}, s{S_T1}, s{S_T0}
        s_lshl_b32 s{S_T1}, s{S_T1}, 17
        s_add_u32 s{S_T2}, s{S_T2}, s{S_T1}
        v_lshlrev_b32 v{t}, 11, v{self.vL}
        s_mov_b32 s{sT}, s34
        s_mov_b32 s{sT+1}, s35
        s_mov_b32 s{sT+2}, {hx(2 << 20)}
        s_mov_b32 s{sT+3}, 0x20000
        buffer_load_dword v{self.vDummy}, v{t}, {srd(sT)}, s{S_T2} offen ;@skip
        s_mov_b32 s{sT}, s38
        s_mov_b32 s{sT+1}, s39
        buffer_load_dword v{self.vDummy}, v{t}, {srd(sT)}, s{S_T2} offen ;@skip''')

    def mall_prefetch(self, t):
        e = self.emit
        e(f'''
        s_lshl_b32 s{S_T0}, s2, 2
        s_and_b32 s{S_T1}, s{S_W}, 3
        s_add_u32 s{S_T0}, s{S_T0}, s{S_T1}
        s_cmp_ge_u32 s{S_T0}, 512
        s_cselect_b32 s{sT}, s38, s34
        s_cselect_b32 s{sT+1}, s39, s35
        s_mov_b32 s{sT+2}, {hx(2 << 20)}
        s_mov_b32 s{sT+3}, 0x20000
        s_and_b32 s{S_T0}, s{S_T0}, 511
        s_lshl_b32 s{S_T0}, s{S_T0}, 12
        v_lshlrev_b32 v{t}, 7, v{self.vL}
        s_mov_b32 exec_hi, 0
        buffer_load_dword v{self.vDummy}, v{t}, {srd(sT)}, s{S_T0} offen ;@skip
        s_mov_b64 exec, -1''')

    def spf_base(self, lo, hi):
        return [f's_and_b32 s{S_T0}, s2, 7',
                f's_lshr_b32 s{S_T1}, s2, 3',
                f's_lshr_b32 s{S_T2}, s{S_T0}, 2',
                f's_lshl_b32 s{S_T2}, s{S_T2}, 3',
                f's_lshr_b32 s{S_T3}, s{S_T1}, 2',
                f's_add_u32 s{S_T2}, s{S_T2}, s{S_T3}',
                f's_lshl_b32 s{S_T2}, s{S_T2}, 7',
                f's_and_b32 s{S_T1}, s{S_T1}, 3',
                f's_lshl_b32 s{S_T1}, s{S_T1}, 3',
                f's_add_u32 s{S_T1}, s{S_T1}, s{S_W}',
                f's_lshl_b32 s{S_T1}, s{S_T1}, 16',
                f's_add_u32 s{S_T2}, s{S_T2}, s{S_T1}',
                f's_add_u32 s{S_PB}, s{lo}, s{S_T2}',
                f's_addc_u32 s{S_PB+1}, s{hi}, 0']

    def spf_loads(self, r0, n):
        L = []
        for r in range(r0, min(r0 + n, 32)):
            x = [f's_load_dword s{S_PD}, s[{S_PB}:{S_PB+1}], {hx(r * 2048)}']
            if self.cfg.get('spf2', 0):
                x.append(f's_load_dword s{S_PD+1}, s[{S_PB}:{S_PB+1}], {hx(r * 2048 + 64)}')
            L.append(x)
        return L

    def make_ident(self, I0, t):
        e = self.emit
        e(f'''
        v_and_b32 v{t}, 31, v{self.vL}
        v_lshlrev_b32 v{t+1}, 2, v{self.vHf}
        v_sub_u32 v{t}, v{t}, v{t+1}
        v_and_b32 v{t+1}, 1, v{t}
        v_lshlrev_b32 v{t+1}, 4, v{t+1}
        v_mov_b32 v{t+2}, 0x3f80
        v_lshlrev_b32 v{t+1}, v{t+1}, v{t+2}
        v_ashrrev_i32 v{t}, 1, v{t}''')
        for s in range(2):
            for i in range(4):
                key = 8 * s + (i & 1) + 4 * (i >> 1)
                e(f'v_cmp_eq_u32 vcc, {key}, v{t}')
                e(f'v_cndmask_b32 v{I0 + 4 * s + i}, 0, v{t+1}, vcc')

    def make_ones16(self, d, t):
        e = self.emit
        e(f'''
        v_lshrrev_b32 v{t}, 2, v{self.vL}
        v_lshrrev_b32 v{t+1}, 4, v{self.vL}
        v_xor_b32 v{t}, v{t}, v{t+1}
        v_and_b32 v{t}, 1, v{t}
        v_mov_b32 v{t+1}, 0x3f803f80
        v_cmp_eq_u32 vcc, 0, v{t}''')
        for i in range(4):
            e(f'v_cndmask_b32 v{d+i}, 0, v{t+1}, vcc')

    def make_sparse_ones(self, d, t):
        e = self.emit
        e(f'''
        v_and_b32 v{t}, 4, v{self.vL}
        v_mov_b32 v{t+1}, 0x3f803f80
        v_cmp_eq_u32 vcc, 0, v{t}''')
        for i in range(2):
            e(f'v_cndmask_b32 v{d+i}, 0, v{t+1}, vcc')
            e(f'v_sub_u32 v{d+2+i}, v{t+1}, v{d+i}')

    def sparse_index(self):
        return [f'v_and_b32 v{self.vSI}, 1, v{self.vL}',
                f'v_mul_u32_u24 v{self.vSI}, 0xaaaa, v{self.vSI}',
                f'v_add_u32 v{self.vSI}, 0x4444, v{self.vSI}']

    def pv(self, O, l, V, P, z=None):
        if self.cfg.get('smf', 1):
            return [mf32(O, V, P, z), mf32(O, V + 4, P + 4), smf(l, self.ONES, P, self.vSI)]
        return [mf32(O, V, P, z), mf16(l, self.ONES, P, z), mf32(O, V + 4, P + 4), mf16(l, self.ONES, P + 4)]

    def sum_l(self):
        if self.cfg.get('smf', 1):
            self.emit([f'v_add_f32 v{l}, v{l}, v{l+1}' for l in (self.la, self.lb)])

    def dual_softmax(self, X, E, P1, P2, t):
        e = self.emit
        mx, nm, u, w = t, t + 1, t + 2, t + 3
        e(f'v_max3_f32 v{mx}, v{X}, v{X+1}, v{X+2}')
        e(f'v_max3_f32 v{nm}, -v{X}, -v{X+1}, -v{X+2}')
        for i in range(3, 15, 2):
            e(f'v_max3_f32 v{mx}, v{mx}, v{X+i}, v{X+i+1}')
            e(f'v_max3_f32 v{nm}, v{nm}, -v{X+i}, -v{X+i+1}')
        e(f'v_max_f32 v{mx}, v{mx}, v{X+15}')
        e(f'v_max_f32 v{nm}, v{nm}, -v{X+15}'.replace('v_max_f32', 'v_max_f32_e64'))
        e(f'''
        v_permlane32_swap_b32 v{mx}, v{nm}
        v_max_f32 v{mx}, v{mx}, v{nm}
        v_mov_b32 v{nm}, v{mx}
        v_permlane32_swap_b32 v{mx}, v{nm}
        v_mul_f32 v{mx}, s{S_L2E}, v{mx}
        v_mul_f32 v{nm}, s{S_L2E}, v{nm}''')
        for r in range(16):
            e(f'v_fma_f32 v{E+r}, v{X+r}, s{S_L2E}, -v{mx}')
            e(f'v_fma_f32 v{X+r}, v{X+r}, -s{S_L2E}, -v{nm}')
        for r in range(16):
            e(f'v_exp_f32 v{E+r}, v{E+r}')
            e(f'v_exp_f32 v{X+r}, v{X+r}')
        e(f'v_add_f32 v{u}, v{E}, v{E+1}')
        e(f'v_add_f32 v{w}, v{X}, v{X+1}')
        for r in range(2, 16):
            e(f'v_add_f32 v{u}, v{u}, v{E+r}')
            e(f'v_add_f32 v{w}, v{w}, v{X+r}')
        e(f'''
        v_permlane32_swap_b32 v{u}, v{w}
        v_add_f32 v{u}, v{u}, v{w}
        v_mov_b32 v{w}, v{u}
        v_permlane32_swap_b32 v{u}, v{w}
        v_rcp_f32 v{u}, v{u}
        v_rcp_f32 v{w}, v{w}''')
        for r in range(16):
            e(f'v_mul_f32 v{E+r}, v{E+r}, v{u}')
            e(f'v_mul_f32 v{X+r}, v{X+r}, v{w}')
        for i in range(8):
            e(cvt(P1 + i, E + 2 * i, E + 2 * i + 1))
            e(cvt(P2 + i, X + 2 * i, X + 2 * i + 1))

    def epi_A(self):
        e = self.emit
        t0 = self.vT
        qf, kf, vf, wf, I0, ones = 96, 112, 128, 144, 166, 174
        zf, zs = 178, 182
        E, P1, P2, T1, T2, tt = 186, 202, 210, 218, 234, 159
        kv1, kv2 = self.V0, self.V1
        e('L_epiA:')
        NB = self.cfg.get('nobar', 0)
        if self.cfg.get('aprio', 0):
            e(f's_setprio {self.cfg.get("aprio", 0)}')
        if self.cfg.get('wopf', 3) == 1:
            self.wo_prefetch(t0)
        if self.cfg.get('mallpf', 1) == 1:
            self.mall_prefetch(t0)
        e(f'''
        v_bfe_u32 v{t0}, v{self.vL}, 2, 2
        v_lshlrev_b32 v{t0}, 6, v{t0}
        v_bfe_u32 v{t0+1}, v{self.vL}, 4, 1
        v_lshl_add_u32 v{t0}, v{t0+1}, 5, v{t0}
        v_and_b32 v{t0+1}, 3, v{self.vL}
        v_lshl_add_u32 v{t0}, v{t0+1}, 3, v{t0}
        v_lshl_add_u32 v{t0}, v{self.vHf}, 8, v{t0}
        s_lshl_b32 s{S_T0}, s{S_HD}, 11
        s_add_u32 s{S_T0}, s{S_T0}, {hx(WPHI)}
        v_add_u32 v{t0}, s{S_T0}, v{t0}''')
        for s in range(2):
            e(f'ds_read_b64_tr_b16 {vr(wf + 4 * s, 2)}, v{t0} offset:{s * 1024}')
            e(f'ds_read_b64_tr_b16 {vr(wf + 4 * s + 2, 2)}, v{t0} offset:{s * 1024 + 512}')
        for base, accs in ((kf, (self.K0, self.K1)), (vf, (self.V0, self.V1)), (qf, (self.Q0, self.Q1))):
            for tau in range(2):
                for i in range(8):
                    e(cvt(base + tau * 8 + i, accs[tau] + 2 * i, accs[tau] + 2 * i + 1))
        self.make_ident(I0, tt)
        self.make_ones16(ones, tt)
        e(f'''
        s_mul_i32 s{S_T0}, s{S_TT}, 0x80008000
        s_waitcnt lgkmcnt(0)''')
        for i in range(8):
            e(f'v_xor_b32 v{wf+i}, s{S_T0}, v{wf+i}')
        for acc, fr in ((self.K0, kf), (self.K1, kf + 8), (self.Q0, qf), (self.Q1, qf + 8)):
            e(mf32(acc, wf, fr, 'z'))
            e(mf32(acc, wf + 4, fr + 4))
        for tau, acc in ((0, self.K0), (1, self.K1)):
            self.dual_softmax(acc, E, P1, P2, tt)
            e(mf32(T1, P1, I0, 'z')); e(mf32(T2, P2, I0, 'z'))
            e(mf32(T1, P1 + 4, I0 + 4)); e(mf32(T2, P2 + 4, I0 + 4))
            for i in range(8):
                e(cvt(P1 + i, T1 + 2 * i, T1 + 2 * i + 1))
            for i in range(8):
                e(cvt(P2 + i, T2 + 2 * i, T2 + 2 * i + 1))
            z = 'z' if tau == 0 else None
            e(mf32(kv1, vf + tau * 8, P1, z)); e(mf32(kv2, vf + tau * 8, P2, z))
            e(mf32(kv1, vf + tau * 8 + 4, P1 + 4)); e(mf32(kv2, vf + tau * 8 + 4, P2 + 4))
            e(mf16(zf, ones, P1, z)); e(mf16(zs, ones, P2, z))
            e(mf16(zf, ones, P1 + 4)); e(mf16(zs, ones, P2 + 4))
        e(f'''
        s_lshl_b32 s{S_T0}, s{S_HD}, 1
        s_xor_b32 s{S_T1}, s{S_TT}, 1
        s_add_u32 s{S_T0}, s{S_T0}, s{S_T1}
        s_lshl_b32 s{S_T1}, s{S_T0}, 12
        s_add_u32 s{S_T1}, s{S_T1}, {hx(KVX)}
        v_add_u32 v{t0}, s{S_T1}, v{self.vL16}
        s_lshl_b32 s{S_T0}, s{S_T0}, 8
        s_add_u32 s{S_T0}, s{S_T0}, {hx(KVZ)}
        v_lshlrev_b32 v{t0+1}, 2, v{self.vL}
        v_add_u32 v{t0+1}, s{S_T0}, v{t0+1}''')
        for q in range(4):
            e(f'ds_write_b128 v{t0}, {vr(kv2 + 4 * q)} offset:{q * 1024}')
        e(f'ds_write_b32 v{t0+1}, v{zs}')
        e(f'''
        s_lshl_b32 s{S_T0}, s{S_HD}, 1
        s_add_u32 s{S_T0}, s{S_T0}, s{S_TT}
        s_lshl_b32 s{S_T0}, s{S_T0}, 13
        s_add_u32 s{S_T0}, s{S_T0}, {hx(PHI)}
        s_lshl_b32 s{S_T1}, s{S_TT}, 11
        s_add_u32 s{S_T1}, s{S_T1}, s{S_T0}
        v_add_u32 v{t0+2}, s{S_T1}, v{self.vL16}
        v_xor_b32 v{t0+3}, 2048, v{t0+2}''')
        for tau, acc in ((0, self.Q0), (1, self.Q1)):
            self.dual_softmax(acc, E, P1, P2, tt)
            for s in range(2):
                e(f'ds_write_b128 v{t0+2}, {vr(P1 + 4 * s)} offset:{tau * 4096 + s * 1024}')
                e(f'ds_write_b128 v{t0+3}, {vr(P2 + 4 * s)} offset:{tau * 4096 + s * 1024}')
        if NB:
            l0, l1 = self.lab('lspin'), self.lab('lok')
            e(f'''
            s_xor_b32 s{S_T0}, s{S_W}, 1
            s_lshl_b32 s{S_T0}, s{S_T0}, 3
            s_add_u32 s{S_T0}, s{S_T0}, {FL}
            v_mov_b32 v{t0}, s{S_T0}
            v_mov_b32 v{t0+1}, 1
            s_lshl_b32 s{S_T0}, s{S_W}, 3
            s_add_u32 s{S_T0}, s{S_T0}, {FL}
            v_mov_b32 v{T1+2}, s{S_T0}
            s_mov_b32 s{S_SPIN}, 0
            s_waitcnt lgkmcnt(0)
            ds_write_b32 v{t0}, v{t0+1}
            {l0}:
            ds_read_b64 {vr(T1, 2)}, v{T1+2}
            s_waitcnt lgkmcnt(0)
            v_and_b32 v{T1}, v{T1}, v{T1+1}
            v_cmp_ne_u32 vcc, 1, v{T1}
            s_cbranch_vccz {l1}
            s_add_u32 s{S_SPIN}, s{S_SPIN}, 1
            s_cmp_ge_u32 s{S_SPIN}, {hx(SPIN)}
            s_cbranch_scc1 {l1}
            s_sleep 1
            s_branch {l0}
            {l1}:''')
        else:
            e('''
            s_waitcnt lgkmcnt(0)
            s_barrier''')
        e(f'''
        s_lshl_b32 s{S_T0}, s{S_HD}, 1
        s_add_u32 s{S_T0}, s{S_T0}, s{S_TT}
        s_lshl_b32 s{S_T1}, s{S_T0}, 12
        s_add_u32 s{S_T1}, s{S_T1}, {hx(KVX)}
        v_add_u32 v{t0}, s{S_T1}, v{self.vL16}
        s_lshl_b32 s{S_T1}, s{S_T0}, 8
        s_add_u32 s{S_T1}, s{S_T1}, {hx(KVZ)}
        v_lshlrev_b32 v{t0+1}, 2, v{self.vL}
        v_add_u32 v{t0+1}, s{S_T1}, v{t0+1}
        s_lshl_b32 s{S_T1}, s{S_T0}, 12
        s_add_u32 s{S_T1}, s{S_T1}, {QX}
        v_add_u32 v{t0+2}, s{S_T1}, v{self.vL16}''')
        for q in range(4):
            e(f'ds_read_b128 {vr(T1 + 4 * q)}, v{t0} offset:{q * 1024}')
        e(f'ds_read_b32 v{zs}, v{t0+1}')
        for q in range(4):
            e(f'ds_read_b128 {vr(self.QF + 4 * q)}, v{t0+2} offset:{q * 1024}')
        e('s_waitcnt lgkmcnt(4)')
        for r in range(16):
            e(f'v_add_f32 v{kv1+r}, v{kv1+r}, v{T1+r}')
        e(f'v_add_f32 v{zf}, v{zf}, v{zs}')
        for i in range(8):
            e(cvt(P1 + i, kv1 + 2 * i, kv1 + 2 * i + 1))
        e(f'''
        s_lshl_b32 s{S_T1}, s{S_HP}, 4
        s_add_u32 s{S_T1}, s{S_T1}, s{S_MB}
        s_lshl_b32 s{S_T1}, s{S_T1}, 2
        s_add_u32 s{S_T1}, s{S_T1}, s{S_T0}
        s_lshl_b32 s{S_T1}, s{S_T1}, 11
        s_add_u32 s{S_T1}, s{S_T1}, {hx(KVP_OFF)}
        buffer_store_dwordx4 {vr(P1)}, v{self.vL16}, {srd(sWS)}, s{S_T1} offen sc1
        buffer_store_dwordx4 {vr(P1 + 4)}, v{self.vL16}, {srd(sWS)}, s{S_T1} offen offset:1024 sc1
        s_lshl_b32 s{S_T1}, s{S_HP}, 2
        s_add_u32 s{S_T1}, s{S_T1}, s{S_T0}
        s_lshl_b32 s{S_T1}, s{S_T1}, 4
        s_add_u32 s{S_T1}, s{S_T1}, s{S_MB}
        s_lshl_b32 s{S_T1}, s{S_T1}, 7
        s_add_u32 s{S_T1}, s{S_T1}, {hx(ZP_OFF)}
        v_lshlrev_b32 v{t0}, 2, v{self.vL}
        s_mov_b32 exec_hi, 0
        buffer_store_dword v{zf}, v{t0}, {srd(sWS)}, s{S_T1} offen sc1
        s_mov_b64 exec, -1
        s_waitcnt lgkmcnt(0)''')

    def kv_loads(self, slot, so):
        b = self.KVB[slot]
        return [f'buffer_load_dwordx4 {vr(b + 4 * q)}, v{self.vKV}, {srd(sWS)}, {so} offen offset:{q * 1024} sc1'
                .replace(' offset:0 ', ' ') for q in range(4)]

    def tile_off(self, dst, j_expr_sreg):
        return [f's_add_u32 s{dst}, s{j_expr_sreg}, s{S_ROT}',
                f's_and_b32 s{dst}, s{dst}, 31',
                f's_lshl_b32 s{dst}, s{dst}, 12',
                f's_cmp_ge_u32 s{j_expr_sreg}, 32',
                f's_cselect_b32 s{dst}, {hx(BIGOFF)}, s{dst}']

    def first_loads(self):
        e = self.emit
        for j in range(3):
            e(f's_mov_b32 s{S_J}, {j}')
            e(self.tile_off(S_T0, S_J))
            e(self.kv_loads(j, f's{S_T0}'))
        e(f's_mov_b32 s{S_J}, 3')

    def exp_block(self, S, P):
        L = []
        for q in range(4):
            for j in range(4):
                L.append(f'v_exp_f32 v{S + 4 * q + j}, v{S + 4 * q + j}')
            L.append(cvt(P + 2 * q, S + 4 * q, S + 4 * q + 1))
            L.append(cvt(P + 2 * q + 1, S + 4 * q + 2, S + 4 * q + 3))
        return L

    def wave_rowmax(self, S, dst, t):
        e = self.emit
        e(f'v_max3_f32 v{dst}, v{S}, v{S+1}, v{S+2}')
        for i in range(3, 15, 2):
            e(f'v_max3_f32 v{dst}, v{dst}, v{S+i}, v{S+i+1}')
        e(f'v_max_f32 v{dst}, v{dst}, v{S+15}')

    def cross_half_max(self, d, t):
        self.emit(f'''
        v_mov_b32 v{t}, v{d}
        v_permlane32_swap_b32 v{d}, v{t}
        v_max_f32 v{d}, v{d}, v{t}''')

    def attention(self):
        e = self.emit
        Sa, Sb, Ca, Cb, Oa, Ob = self.Sa, self.Sb, self.Ca, self.Cb, self.Oa, self.Ob
        Qa, Qb = self.QF, self.QF + 8
        Pa, Pb, la, lb, ONES = self.Pa, self.Pb, self.la, self.lb, self.ONES
        KVB = self.KVB
        tA = self.vA
        e('L_attn:')
        self.stamp(4)
        self.make_ones16(ONES, tA)
        e(f'''
        s_lshl_b32 s{S_T0}, s{S_HEAD}, 18
        s_lshl_b32 s{S_T1}, s{S_BR}, 17
        s_add_u32 s{S_T0}, s{S_T0}, s{S_T1}
        v_add_u32 v{self.vKV}, s{S_T0}, v{self.vL16}
        s_lshl_b32 s{S_ROT}, s{S_MB}, 1
        s_mov_b32 s{S_RETRY}, 0
        v_and_b32 v{tA}, 15, v{self.vL}
        v_lshlrev_b32 v{tA}, 2, v{tA}
        s_lshl_b32 s{S_T0}, s{S_HP}, 7
        v_add_u32 v{tA}, s{S_T0}, v{tA}''')
        self.poll(tA, F1_OFF, tA + 1)
        self.stamp(5)
        ln = self.lab('noF1b')
        e(f'''
        s_cmp_eq_u32 s{S_BR}, 0
        s_cbranch_scc0 {ln}''')
        self.count_and_flag(1, 3, f'''
        s_lshl_b32 s{S_T0}, s{S_HP}, 7
        s_lshl_b32 s{S_T1}, s{S_MB}, 2
        s_add_u32 s{S_T0}, s{S_T0}, s{S_T1}
        s_add_u32 s{S_T0}, s{S_T0}, {hx(F1B_OFF)}''', tA, tA + 1)
        e(f'{ln}:')
        self.first_loads()
        K0 = KVB[0]
        e('s_waitcnt vmcnt(10)')
        e(mf32(Sa, K0, Qa, 'z')); e(mf32(Sb, K0, Qb, 'z'))
        e(mf32(Sa, K0 + 4, Qa + 4)); e(mf32(Sb, K0 + 4, Qb + 4))
        self.wave_rowmax(Sa, self.vMa, tA)
        self.wave_rowmax(Sb, self.vMb, tA)
        self.cross_half_max(self.vMa, tA)
        self.cross_half_max(self.vMb, tA)
        e(f'v_add_f32 v{self.vMa}, {hx(f2u(MOFF))}, v{self.vMa}')
        e(f'v_add_f32 v{self.vMb}, {hx(f2u(MOFF))}, v{self.vMb}')
        e('L_attn_go:')
        V3 = KVB[3] + 8
        for r in range(8):
            e(f'v_mov_b32 v{V3 + r}, 0')
            e(f'v_mov_b32 v{Pb + r}, 0')
        for r in range(4):
            e(f'v_mov_b32 v{la + r}, 0')
            e(f'v_mov_b32 v{lb + r}, 0')
        for r in range(16):
            e(f'v_sub_f32 v{Ca + r}, 0, v{self.vMa}')
        e(mf32(Oa, V3, V3, 'z')); e(mf32(Ob, V3, V3, 'z'))
        for r in range(16):
            e(f'v_sub_f32 v{Cb + r}, 0, v{self.vMb}')
        e(mf32(Sa, K0, Qa, Ca)); e(mf32(Sa, K0 + 4, Qa + 4))
        e(f's_mov_b32 s{S_IT}, 0')
        e('L_attn_loop:')
        for i4 in range(4):
            cur, prev, nxt = KVB[i4], KVB[(i4 - 1) % 4], KVB[(i4 + 1) % 4]
            mfA = [mf32(Sb, cur, Qb, Cb), mf32(Sb, cur + 4, Qb + 4),
                   mf32(Ob, prev + 8, Pb), mf16(lb, ONES, Pb),
                   mf32(Ob, prev + 12, Pb + 4), mf16(lb, ONES, Pb + 4)]
            e(interleave(mfA, self.exp_block(Sa, Pa)))
            e(self.tile_off(S_T0, S_J))
            e(f's_add_u32 s{S_J}, s{S_J}, 1')
            e('s_waitcnt vmcnt(6)')
            mfB = [mf32(Sa, nxt, Qa, Ca), mf32(Sa, nxt + 4, Qa + 4),
                   mf32(Oa, cur + 8, Pa), mf16(la, ONES, Pa),
                   mf32(Oa, cur + 12, Pa + 4), mf16(la, ONES, Pa + 4)]
            body = interleave(mfB, self.exp_block(Sb, Pb))
            loads = self.kv_loads((i4 + 3) % 4, f's{S_T0}')
            out = []
            li = 0
            for n, x in enumerate(body):
                out.append(x)
                if n in (4, 9, 14, 19):
                    out.append(loads[li]); li += 1
            e(out)
        e(f'''
        s_add_u32 s{S_IT}, s{S_IT}, 1
        s_cmp_lt_u32 s{S_IT}, 8
        s_cbranch_scc1 L_attn_loop''')
        prev = KVB[3]
        e(mf32(Ob, prev + 8, Pb)); e(mf16(lb, ONES, Pb))
        e(mf32(Ob, prev + 12, Pb + 4)); e(mf16(lb, ONES, Pb + 4))
        e('s_waitcnt vmcnt(0)')
        self.stamp(6)
        e(f'v_add_f32 v{tA}, v{la}, v{lb}')
        e(f'v_pk_add_f32 {vr(Sa, 2)}, {vr(Oa, 2)}, {vr(Oa + 2, 2)}')
        for r in range(4, 32, 2):
            e(f'v_pk_add_f32 {vr(Sa, 2)}, {vr(Sa, 2)}, {vr(Oa + r, 2)}')
        e(f'''
        v_add_f32 v{tA}, v{tA}, v{Sa}
        v_add_f32 v{tA}, v{tA}, v{Sa+1}
        v_mov_b32 v{tA+1}, 0x207
        v_cmp_class_f32 vcc, v{tA}, v{tA+1}
        s_cbranch_vccz L_attn_done
        s_cmp_lg_u32 s{S_RETRY}, 0
        s_cbranch_scc1 L_attn_done
        s_mov_b32 s{S_RETRY}, 1''')
        e(f'''
        v_mov_b32 v{self.vMa}, 0xff800000
        v_mov_b32 v{self.vMb}, 0xff800000
        s_mov_b32 s{S_J}, 0
        L_truemax:''')
        e(self.tile_off(S_T0, S_J))
        e(self.kv_loads(0, f's{S_T0}')[:2])
        e('s_waitcnt vmcnt(0)')
        e(mf32(Sa, K0, Qa, 'z')); e(mf32(Sb, K0, Qb, 'z'))
        e(mf32(Sa, K0 + 4, Qa + 4)); e(mf32(Sb, K0 + 4, Qb + 4))
        for S, M in ((Sa, self.vMa), (Sb, self.vMb)):
            for i in range(0, 16, 2):
                e(f'v_max3_f32 v{M}, v{M}, v{S+i}, v{S+i+1}')
        e(f'''
        s_add_u32 s{S_J}, s{S_J}, 1
        s_cmp_lt_u32 s{S_J}, 32
        s_cbranch_scc1 L_truemax''')
        self.cross_half_max(self.vMa, tA)
        self.cross_half_max(self.vMb, tA)
        self.first_loads()
        e('''
        s_waitcnt vmcnt(10)
        s_branch L_attn_go
        L_attn_done:''')

    def finalize_attn(self):
        e = self.emit
        Oa, Ob, la, lb = self.Oa, self.Ob, self.la, self.lb
        tA = self.vA
        I0 = 240
        ACC = 224
        ZL = 208
        vAd = 216
        bufs = list(range(0, 64, 4)) + list(range(140, 204, 4))
        e(f'''
        v_and_b32 v{vAd}, 15, v{self.vL}
        v_lshlrev_b32 v{vAd}, 2, v{vAd}
        s_lshl_b32 s{S_T0}, s{S_HP}, 7
        v_add_u32 v{vAd}, s{S_T0}, v{vAd}''')
        self.poll(vAd, F1B_OFF, vAd + 1)
        self.stamp(7)
        e(f'''
        s_lshl_b32 s{S_T0}, s{S_HP}, 6
        s_lshl_b32 s{S_T1}, s{S_HD}, 1
        s_add_u32 s{S_T1}, s{S_T1}, s{S_BR}
        s_add_u32 s{S_T0}, s{S_T0}, s{S_T1}
        s_lshl_b32 s{S_T0}, s{S_T0}, 11
        s_add_u32 s{S_T0}, s{S_T0}, {hx(KVP_OFF)}''')
        for m in range(16):
            for s in range(2):
                b = bufs[m * 2 + s]
                e(f'buffer_load_dwordx4 {vr(b)}, v{self.vL16}, {srd(sWS)}, s{S_T0} offen' +
                  (f' offset:{s * 1024}' if s else '') + ' sc1')
            e(f's_add_u32 s{S_T0}, s{S_T0}, 8192')
        e(f'''
        s_lshl_b32 s{S_T0}, s{S_HP}, 2
        s_add_u32 s{S_T0}, s{S_T0}, s{S_T1}
        s_lshl_b32 s{S_T0}, s{S_T0}, 11
        s_add_u32 s{S_T0}, s{S_T0}, {hx(ZP_OFF)}
        v_and_b32 v{vAd}, 31, v{self.vL}
        v_lshlrev_b32 v{vAd}, 2, v{vAd}
        v_lshl_add_u32 v{vAd}, v{self.vHf}, 7, v{vAd}''')
        for i in range(8):
            e(f'buffer_load_dword v{ZL + i}, v{vAd}, {srd(sWS)}, s{S_T0} offen' +
              (f' offset:{i * 256}' if i else '') + ' sc1')
        self.make_ident(I0, vAd + 1)
        PH = 112
        e(f'''
        s_lshl_b32 s{S_T0}, s{S_HD}, 1
        s_add_u32 s{S_T0}, s{S_T0}, s{S_TT}
        s_lshl_b32 s{S_T0}, s{S_T0}, 13
        s_add_u32 s{S_T0}, s{S_T0}, {hx(PHI)}
        s_mul_i32 s{S_T1}, s{S_BR}, 6144
        s_add_u32 s{S_T0}, s{S_T0}, s{S_T1}
        v_add_u32 v{vAd}, s{S_T0}, v{self.vL16}
        s_lshl_b32 s{S_T1}, s{S_BR}, 13
        s_sub_u32 s{S_T0}, s{S_T0}, s{S_T1}
        s_add_u32 s{S_T0}, s{S_T0}, 4096
        v_add_u32 v{vAd+1}, s{S_T0}, v{self.vL16}
        ds_read_b128 {vr(PH)}, v{vAd}
        ds_read_b128 {vr(PH+4)}, v{vAd} offset:1024
        ds_read_b128 {vr(PH+8)}, v{vAd+1}
        ds_read_b128 {vr(PH+12)}, v{vAd+1} offset:1024''')
        e(f'''
        s_lshl_b32 s{S_T0}, s{S_TT}, 6
        s_lshl_b32 s{S_T1}, s{S_BR}, 5
        s_add_u32 s{S_T0}, s{S_T0}, s{S_T1}
        s_lshl_b32 s{S_T0}, s{S_T0}, 2
        s_add_u32 s{S_T0}, s{S_T0}, {hx(LOG)}
        v_and_b32 v{vAd+2}, 31, v{self.vL}
        v_lshlrev_b32 v{vAd+2}, 2, v{vAd+2}
        v_add_u32 v{vAd+2}, s{S_T0}, v{vAd+2}
        ds_read_b32 v{vAd+3}, v{vAd+2}''')
        vG = vAd + 3
        for O, l, M in ((Oa, la, self.vMa), (Ob, lb, self.vMb)):
            e(f'v_rcp_f32 v{l+1}, v{l}')
            e(f'v_log_f32 v{l+2}, v{l}')
            e(f'v_add_f32 v{l+2}, v{l+2}, v{M}')
            for r in range(16):
                e(f'v_mul_f32 v{O+r}, v{O+r}, v{l+1}')
        La, Lb = la + 2, lb + 2
        for n in range(32):
            e(f's_waitcnt vmcnt({8 + 31 - n})')
            e(mf32(ACC, bufs[n], I0 + 4 * (n & 1), 'z' if n == 0 else None))
        e('s_waitcnt vmcnt(0)')
        e(f'v_add_f32 v{ZL}, v{ZL}, v{ZL+1}')
        for i in range(2, 8):
            e(f'v_add_f32 v{ZL}, v{ZL}, v{ZL+i}')
        e(f'''
        v_mov_b32 v{ZL+1}, v{ZL}
        v_permlane32_swap_b32 v{ZL}, v{ZL+1}
        v_add_f32 v{ZL}, v{ZL}, v{ZL+1}
        v_cvt_pk_bf16_f32 v{ZL}, v{ZL}, v{ZL}
        s_lshl_b32 s{S_T0}, s{S_W}, 7
        s_add_u32 s{S_T0}, s{S_T0}, {hx(ZT)}
        v_and_b32 v{ZL+1}, 31, v{self.vL}
        v_lshlrev_b32 v{ZL+1}, 1, v{ZL+1}
        v_add_u32 v{ZL+1}, s{S_T0}, v{ZL+1}
        ds_write_b16 v{ZL+1}, v{ZL}
        v_lshlrev_b32 v{ZL+2}, 3, v{self.vHf}
        v_add_u32 v{ZL+2}, s{S_T0}, v{ZL+2}
        s_waitcnt lgkmcnt(0)''')
        ZF = 0
        for s in range(2):
            e(f'ds_read_b64 {vr(ZF + 4 * s, 2)}, v{ZL+2} offset:{s * 32}')
            e(f'ds_read_b64 {vr(ZF + 4 * s + 2, 2)}, v{ZL+2} offset:{s * 32 + 16}')
        KT = 8
        for i in range(8):
            e(cvt(KT + i, ACC + 2 * i, ACC + 2 * i + 1))
        e(f'''
        v_cmp_ne_u32 vcc, 0, v{self.ONES}
        s_waitcnt lgkmcnt(0)''')
        for i in range(8):
            e(f'v_cndmask_b32 v{ZF+i}, 0, v{ZF+i}, vcc')
        Na, Nb, Da, Db = 16, 32, 48, 52
        for N, D, P in ((Nb, Db, PH + 8), (Na, Da, PH)):
            e(mf32(N, KT, P, 'z')); e(mf32(N, KT + 4, P + 4))
            e(mf16(D, ZF, P, 'z')); e(mf16(D, ZF + 4, P + 4))
        e(f'''
        s_mul_i32 s{S_T0}, s{S_W}, {MRG_STRIDE}
        s_add_u32 s{S_T0}, s{S_T0}, {hx(MRG)}
        v_add_u32 v{vAd}, s{S_T0}, v{self.vL16}
        v_lshlrev_b32 v{vAd+1}, 3, v{self.vL}
        v_add_u32 v{vAd+1}, s{S_T0}, v{vAd+1}
        s_xor_b32 s{S_T1}, s{S_W}, 4
        s_mul_i32 s{S_T0}, s{S_T1}, {MRG_STRIDE}
        s_add_u32 s{S_T0}, s{S_T0}, {hx(MRG)}
        v_add_u32 v{vAd+4}, s{S_T0}, v{self.vL16}
        v_lshlrev_b32 v{vAd+5}, 3, v{self.vL}
        v_add_u32 v{vAd+5}, s{S_T0}, v{vAd+5}''')
        for q in range(4):
            e(f'ds_write_b128 v{vAd}, {vr(Ob + 4 * q)} offset:{q * 1024}')
        for q in range(4):
            e(f'ds_write_b128 v{vAd}, {vr(Nb + 4 * q)} offset:{4096 + q * 1024}')
        e(f'''
        v_mov_b32 v56, v{Lb}
        v_mov_b32 v57, v{Db}
        ds_write_b64 v{vAd+1}, v[56:57] offset:8192''')
        e(f'''
        v_mul_f32 v{vG}, s{S_L2E}, v{vG}
        v_exp_f32 v58, -v{vG}
        v_add_f32 v58, 1.0, v58
        v_rcp_f32 v58, v58
        v_sub_f32 v59, 1.0, v58
        s_waitcnt lgkmcnt(0)
        s_barrier''')
        self.stamp(8)
        RO, RN = 140, 156
        for q in range(4):
            e(f'ds_read_b128 {vr(RO + 4 * q)}, v{vAd+4} offset:{q * 1024}')
        e(f'ds_read_b64 v[56:57], v{vAd+5} offset:8192')
        for q in range(4):
            e(f'ds_read_b128 {vr(RN + 4 * q)}, v{vAd+4} offset:{4096 + q * 1024}')
        e(f'''
        s_waitcnt lgkmcnt(4)
        v_max_f32 v60, v{La}, v56
        v_sub_f32 v61, v{La}, v60
        v_sub_f32 v62, v56, v60
        v_exp_f32 v61, v61
        v_exp_f32 v62, v62
        v_add_f32 v63, v61, v62
        v_rcp_f32 v63, v63
        v_mul_f32 v63, v63, v59
        v_mul_f32 v61, v61, v63
        v_mul_f32 v62, v62, v63
        v_add_f32 v57, v57, v{Da}
        v_add_f32 v57, {hx(f2u(1e-6))}, v57
        v_rcp_f32 v57, v57
        v_mul_f32 v57, v57, v58''')
        for r in range(16):
            e(f'v_mul_f32 v{Oa+r}, v{Oa+r}, v61')
            e(f'v_fma_f32 v{Oa+r}, v{RO+r}, v62, v{Oa+r}')
        OBF, OAF = 96, 104
        for i in range(8):
            e(cvt(OBF + i, Oa + 2 * i, Oa + 2 * i + 1))
        e(f'''
        s_lshl_b32 s{S_T0}, s{S_MB}, 2
        s_lshl_b32 s{S_T1}, s{S_TT}, 1
        s_add_u32 s{S_T0}, s{S_T0}, s{S_T1}
        s_add_u32 s{S_T0}, s{S_T0}, s{S_BR}
        s_lshl_b32 s{S_T0}, s{S_T0}, 17
        s_lshl_b32 s{S_T1}, s{S_HEAD}, 11
        s_add_u32 s{S_T0}, s{S_T0}, s{S_T1}
        s_add_u32 s{S_T0}, s{S_T0}, {hx(O_OFF)}
        s_add_u32 s{S_T1}, s{S_T0}, 65536
        buffer_store_dwordx4 {vr(OBF)}, v{self.vL16}, {srd(sWS)}, s{S_T1} offen sc1
        buffer_store_dwordx4 {vr(OBF+4)}, v{self.vL16}, {srd(sWS)}, s{S_T1} offen offset:1024 sc1
        s_waitcnt lgkmcnt(0)''')
        for r in range(16):
            e(f'v_add_f32 v{Na+r}, v{Na+r}, v{RN+r}')
            e(f'v_mul_f32 v{Na+r}, v{Na+r}, v57')
        for i in range(8):
            e(cvt(OAF + i, Na + 2 * i, Na + 2 * i + 1))
        e(f'''
        buffer_store_dwordx4 {vr(OAF)}, v{self.vL16}, {srd(sWS)}, s{S_T0} offen sc1
        buffer_store_dwordx4 {vr(OAF+4)}, v{self.vL16}, {srd(sWS)}, s{S_T0} offen offset:1024 sc1''')

    def outproj(self):
        e = self.emit
        ACC0, ACC1 = 0, 16
        WB = [32, 40, 48, 56]
        OB = [64, 128]
        vD3, vR3, vR3b, vO3, vE = 200, 201, 202, 203, 204
        S_MB3, S_CT = S_MB, S_HP
        self.stamp(9)
        e('s_barrier')
        e(f'''
        s_lshl_b32 s{S_T2}, s{S_MB}, 7
        s_lshl_b32 s{S_T3}, s{S_HP}, 2
        s_add_u32 s{S_J}, s{S_T2}, s{S_T3}
        s_add_u32 s{S_J}, s{S_J}, {hx(F2_OFF)}
        s_and_b32 s{S_T0}, s2, 7
        s_lshr_b32 s{S_T1}, s2, 3
        s_and_b32 s{S_T2}, s{S_T0}, 3
        s_lshl_b32 s{S_T2}, s{S_T2}, 2
        s_and_b32 s{S_T3}, s{S_T1}, 3
        s_add_u32 s{S_MB3}, s{S_T2}, s{S_T3}
        s_lshr_b32 s{S_T2}, s{S_T0}, 2
        s_lshl_b32 s{S_T2}, s{S_T2}, 3
        s_lshr_b32 s{S_T3}, s{S_T1}, 2
        s_add_u32 s{S_CT}, s{S_T2}, s{S_T3}
        s_cmp_eq_u32 s{S_BR}, 1
        s_cselect_b32 s{sW}, s38, s34
        s_cselect_b32 s{sW+1}, s39, s35
        s_mov_b32 s{sW+2}, {hx(2 << 20)}
        s_mov_b32 s{sW+3}, 0x20000
        s_and_b32 s{S_T0}, s{S_W}, 3
        s_lshl_b32 s{S_T1}, s{S_T0}, 4
        v_bfe_u32 v{vD3}, v{self.vL}, 2, 3
        v_add_u32 v{vD3}, s{S_T1}, v{vD3}
        v_lshlrev_b32 v{vD3}, 11, v{vD3}
        v_lshl_add_u32 v{vD3}, v{self.vHf}, 6, v{vD3}
        v_and_b32 v{vE}, 3, v{self.vL}
        v_lshl_add_u32 v{vD3}, v{vE}, 4, v{vD3}
        s_lshl_b32 s{S_T1}, s{S_CT}, 7
        v_add_u32 v{vD3}, s{S_T1}, v{vD3}
        s_lshl_b32 s{S_DWL}, s{S_BR}, 13
        s_lshl_b32 s{S_T0}, s{S_T0}, 11
        s_add_u32 s{S_DWL}, s{S_DWL}, s{S_T0}''')

        def dma(stage):
            L = []
            for i in range(2):
                L += [f's_add_u32 m0, s{S_DWL}, {hx((stage % 8) * 16384 + i * 1024)}',
                      f's_mov_b32 s{S_T0}, {hx(stage * 131072 + i * 16384)}',
                      f'buffer_load_dwordx4 v{vD3}, {srd(sW)}, s{S_T0} offen lds']
            return L
        for st in range(8):
            e(dma(st))
        e('s_waitcnt vmcnt(16)')
        self.count_and_flag(2, 7, f's_mov_b32 s{S_T0}, s{S_J}', vE, vE + 1)
        e(f'''
        v_bfe_u32 v{vR3}, v{self.vL}, 2, 2
        v_lshlrev_b32 v{vR3}, 6, v{vR3}
        v_bfe_u32 v{vE}, v{self.vL}, 4, 1
        v_lshl_add_u32 v{vR3}, v{vE}, 5, v{vR3}
        v_and_b32 v{vE}, 3, v{self.vL}
        v_lshl_add_u32 v{vR3}, v{vE}, 3, v{vR3}
        v_lshl_add_u32 v{vR3}, v{self.vHf}, 8, v{vR3}
        s_lshl_b32 s{S_T0}, s{S_BR}, 13
        v_add_u32 v{vR3}, s{S_T0}, v{vR3}
        v_add_u32 v{vR3b}, 0x10000, v{vR3}
        s_lshl_b32 s{S_T0}, s{S_MB3}, 2
        s_and_b32 s{S_T1}, s{S_W}, 3
        s_add_u32 s{S_T0}, s{S_T0}, s{S_T1}
        s_lshl_b32 s{S_T0}, s{S_T0}, 17
        s_lshl_b32 s{S_T1}, s{S_BR}, 16
        s_add_u32 s{S_T0}, s{S_T0}, s{S_T1}
        s_add_u32 s{S_T0}, s{S_T0}, {hx(O_OFF)}
        v_add_u32 v{vO3}, s{S_T0}, v{self.vL16}
        v_and_b32 v{vE}, 15, v{self.vL}
        v_lshlrev_b32 v{vE}, 2, v{vE}
        s_lshl_b32 s{S_T0}, s{S_MB3}, 7
        v_add_u32 v{vE}, s{S_T0}, v{vE}''')
        self.poll(vE, F2_OFF, vE + 1)
        self.stamp(10)

        def oloads(m):
            L = []
            for g in range(4):
                L.append(f's_mov_b32 s{S_T0}, {hx((m * 16 + g * 4) * 1024)}')
                for q in range(4):
                    L.append(f'buffer_load_dwordx4 {vr(OB[m & 1] + 16 * g + 4 * q)}, v{vO3}, {srd(sWS)}, s{S_T0} offen' +
                             (f' offset:{q * 1024}' if q else '') + ' sc1')
            return L

        def wreads(m, n):
            q, h2, s = n >> 2, (n >> 1) & 1, n & 1
            slot = (4 * m + q) % 8
            base = vR3 if slot < 4 else vR3b
            o = (slot & 3) * 16384 + (h2 * 4 + 2 * s) * 1024
            b = WB[n & 3]
            return [f'ds_read_b64_tr_b16 {vr(b, 2)}, v{base} offset:{o}',
                    f'ds_read_b64_tr_b16 {vr(b + 2, 2)}, v{base} offset:{o + 1024}',
                    f'ds_read_b64_tr_b16 {vr(b + 4, 2)}, v{base} offset:{o + 512}',
                    f'ds_read_b64_tr_b16 {vr(b + 6, 2)}, v{base} offset:{o + 1536}']

        def macro(m):
            e(wreads(m, 0)); e(wreads(m, 1))
            for n in range(16):
                if n + 2 < 16:
                    e(wreads(m, n + 2))
                    e('s_waitcnt lgkmcnt(8)')
                elif n == 14:
                    e('s_waitcnt lgkmcnt(4)')
                else:
                    e('s_waitcnt lgkmcnt(0)')
                b = WB[n & 3]
                of = OB[m & 1] + 4 * n
                first = 'z' if (m == 0 and n == 0) else None
                e(mf32(ACC0, b, of, first))
                e(mf32(ACC1, b + 4, of, first))
        e(oloads(0)); e(oloads(1))
        e('s_waitcnt vmcnt(16)')
        e('s_barrier')
        macro(0)
        e('s_barrier')
        for st in range(8, 12):
            e(dma(st))
        e(oloads(2))
        e('s_waitcnt vmcnt(24)')
        macro(1)
        e('s_waitcnt vmcnt(16)')
        e('s_barrier')
        for st in range(12, 16):
            e(dma(st))
        e(oloads(3))
        e('s_waitcnt vmcnt(24)')
        macro(2)
        e('s_waitcnt vmcnt(16)')
        e('s_barrier')
        e('s_waitcnt vmcnt(0)')
        macro(3)
        self.stamp(11)
        lA = self.lab('keep1')
        lB = self.lab('kept')
        e(f'''
        s_lshl_b32 s{S_T0}, s{S_W}, 12
        s_add_u32 s{S_T0}, s{S_T0}, {hx(XCH)}
        v_add_u32 v{vE}, s{S_T0}, v{self.vL16}
        s_xor_b32 s{S_T1}, s{S_W}, 4
        s_lshl_b32 s{S_T0}, s{S_T1}, 12
        s_add_u32 s{S_T0}, s{S_T0}, {hx(XCH)}
        v_add_u32 v{vE+1}, s{S_T0}, v{self.vL16}
        s_cmp_eq_u32 s{S_BR}, 1
        s_cbranch_scc1 {lA}''')
        for q in range(4):
            e(f'ds_write_b128 v{vE}, {vr(ACC1 + 4 * q)} offset:{q * 1024}')
        e(f's_branch {lB}')
        e(f'{lA}:')
        for q in range(4):
            e(f'ds_write_b128 v{vE}, {vr(ACC0 + 4 * q)} offset:{q * 1024}')
        for r in range(16):
            e(f'v_mov_b32 v{ACC0+r}, v{ACC1+r}')
        e(f'{lB}:')
        e('''
        s_waitcnt lgkmcnt(0)
        s_barrier''')
        R = 32
        for q in range(4):
            e(f'ds_read_b128 {vr(R + 4 * q)}, v{vE+1} offset:{q * 1024}')
        e(f'''
        s_lshl_b32 s{S_T0}, s{S_MB3}, 7
        s_and_b32 s{S_T1}, s{S_W}, 3
        s_lshl_b32 s{S_T1}, s{S_T1}, 5
        s_add_u32 s{S_T0}, s{S_T0}, s{S_T1}
        v_and_b32 v{vE}, 31, v{self.vL}
        v_add_u32 v{vE}, s{S_T0}, v{vE}
        v_lshlrev_b32 v{vE}, 11, v{vE}
        v_lshl_add_u32 v{vE}, v{self.vHf}, 4, v{vE}
        s_lshl_b32 s{S_T0}, s{S_CT}, 7
        s_lshl_b32 s{S_T1}, s{S_BR}, 6
        s_add_u32 s{S_T0}, s{S_T0}, s{S_T1}
        v_add_u32 v{vE}, s{S_T0}, v{vE}
        s_waitcnt lgkmcnt(0)''')
        for r in range(16):
            e(f'v_add_f32 v{ACC0+r}, v{ACC0+r}, v{R+r}')
        P = 48
        for i in range(8):
            e(cvt(P + i, ACC0 + 2 * i, ACC0 + 2 * i + 1))
        for u in range(2):
            e(f'v_permlane32_swap_b32 v{P+4*u}, v{P+4*u+2}')
            e(f'v_permlane32_swap_b32 v{P+4*u+1}, v{P+4*u+3}')
        for u in range(2):
            e(f'buffer_store_dwordx4 {vr(P + 4 * u)}, v{vE}, {srd(sOUT)}, 0 offen' + (f' offset:{u * 32}' if u else ''))
        e('s_waitcnt vmcnt(0)')

    XACC, XB, XI, XZ = 224, 240, 248, 208
    vD3p, vO3, vR3, vR3b, vPF, vFa, vG1, vFv = 224, 225, 226, 227, 228, 229, 230, 231
    vS = 232

    def check_flags(self, vaddr, vval, off, tag):
        l = self.lab('flagok')
        self.emit(f"""
        @wait {tag}
        v_cmp_ne_u32 vcc, 1, v{vval}
        s_cbranch_vccz {l}""")
        self.poll(vaddr, off, vval)
        self.emit(f'{l}:')

    def kv2(self, j):
        b = self.KVB[j % 4]
        L = []
        for q in range(4):
            t = f'K{j}' if q < 2 else f'V{j}'
            x = f'buffer_load_dwordx4 {vr(b + 4 * q)}, v{self.vKV}, {srd(sWS)}, s{S_OFF} offen' + \
                (f' offset:{q * 1024}' if q else '') + f' sc1 ;@{t}'
            L.append([x])
        L[3] += [f's_add_u32 s{S_OFF}, s{S_OFF}, 4096', f's_and_b32 s{S_OFF}, s{S_OFF}, 0x1ffff']
        return L

    def wo_dma(self, stage, i, tag):
        return [f's_add_u32 s{S_T1}, s{S_R}, {stage % 8}',
                f's_and_b32 s{S_T1}, s{S_T1}, 7',
                f's_lshl_b32 s{S_T1}, s{S_T1}, 17',
                f's_add_u32 m0, s{S_DWL}, {hx((stage % 8) * 16384 + i * 1024)}',
                f's_add_u32 s{S_T1}, s{S_T1}, {hx(i * 16384)}',
                f'buffer_load_dwordx4 v{self.vD3p}, {srd(sW)}, s{S_T1} offen lds ;@{tag}']

    def make_ident_half(self, I0, t):
        e = self.emit
        e(f"""
        v_and_b32 v{t}, 31, v{self.vL}
        v_lshlrev_b32 v{t+1}, 2, v{self.vHf}
        v_sub_u32 v{t}, v{t}, v{t+1}
        s_lshl_b32 s{S_T0}, s{S_TT}, 4
        v_subrev_u32 v{t}, s{S_T0}, v{t}
        v_and_b32 v{t+1}, 1, v{t}
        v_lshlrev_b32 v{t+1}, 4, v{t+1}
        v_mov_b32 v{t+2}, 0x3f80
        v_lshlrev_b32 v{t+1}, v{t+1}, v{t+2}
        v_ashrrev_i32 v{t}, 1, v{t}""")
        for i in range(4):
            key = (i & 1) + 4 * (i >> 1)
            e(f'v_cmp_eq_u32 vcc, {key}, v{t}')
            e(f'v_cndmask_b32 v{I0 + i}, 0, v{t+1}, vcc')

    def attention2(self):
        e = self.emit
        Sa, Sb, Ca, Cb, Oa, Ob = self.Sa, self.Sb, self.Ca, self.Cb, self.Oa, self.Ob
        Qa, Qb = self.QF, self.QF + 8
        Pa, Pb, la, lb, ONES = self.Pa, self.Pb, self.la, self.lb, self.ONES
        KVB = self.KVB
        tA = self.vA
        TF = self.cfg.get('tf', 3)
        TX0 = TF + 2
        XR = self.cfg.get('xr', 2)
        NX = 16 // XR
        TM = TX0 + NX + 1
        XBUF = [240, 244, 216, 220]
        XACC, XB, XI, XZ = self.XACC, self.XB, self.XI, self.XZ
        e('L_attn:')
        self.stamp(4)
        SMF = self.cfg.get('smf', 1)
        if SMF:
            self.make_sparse_ones(ONES, tA)
        else:
            self.make_ones16(ONES, tA)
        self.make_ident_half(XI, tA)
        e(f"""
        s_lshl_b32 s{S_T0}, s{S_HEAD}, 18
        s_lshl_b32 s{S_T1}, s{S_BR}, 17
        s_add_u32 s{S_T0}, s{S_T0}, s{S_T1}
        v_add_u32 v{self.vKV}, s{S_T0}, v{self.vL16}
        s_lshl_b32 s{S_ROT}, s{S_MB}, 1
        s_lshl_b32 s{S_OFF}, s{S_MB}, 13
        s_lshl_b32 s{S_T0}, s{S_HP}, 6
        s_lshl_b32 s{S_T1}, s{S_HD}, 1
        s_add_u32 s{S_T1}, s{S_T1}, s{S_BR}
        s_add_u32 s{S_T0}, s{S_T0}, s{S_T1}
        s_lshl_b32 s{S_T0}, s{S_T0}, 11
        s_lshl_b32 s{S_T2}, s{S_TT}, 10
        s_add_u32 s{S_T0}, s{S_T0}, s{S_T2}
        s_add_u32 s{S_X}, s{S_T0}, {hx(KVP_OFF)}
        s_lshl_b32 s{S_T0}, s{S_HP}, 2
        s_add_u32 s{S_T0}, s{S_T0}, s{S_T1}
        s_lshl_b32 s{S_T0}, s{S_T0}, 11
        s_add_u32 s{S_J}, s{S_T0}, {hx(ZP_OFF)}
        s_lshl_b32 s{S_T2}, s{S_MB}, 7
        s_lshl_b32 s{S_T3}, s{S_HP}, 2
        s_add_u32 s{S_FA}, s{S_T2}, s{S_T3}
        s_add_u32 s{S_FB}, s{S_FA}, {hx(F2B_OFF)}
        s_add_u32 s{S_FA}, s{S_FA}, {hx(F2A_OFF)}
        s_and_b32 s{S_T0}, s2, 7
        s_lshr_b32 s{S_T1}, s2, 3
        s_and_b32 s{S_T2}, s{S_T0}, 3
        s_lshl_b32 s{S_T2}, s{S_T2}, 2
        s_and_b32 s{S_T3}, s{S_T1}, 3
        s_add_u32 s{S_MB3}, s{S_T2}, s{S_T3}
        s_lshr_b32 s{S_T2}, s{S_T0}, 2
        s_lshl_b32 s{S_T2}, s{S_T2}, 3
        s_lshr_b32 s{S_T3}, s{S_T1}, 2
        s_add_u32 s{S_CT}, s{S_T2}, s{S_T3}
        s_and_b32 s{S_R}, s{S_CT}, {self.cfg.get('rotmask', 7)}
        s_mov_b32 s{sW}, s34
        s_mov_b32 s{sW+1}, s35
        s_mov_b32 s{sW+2}, {hx(2 << 20)}
        s_mov_b32 s{sW+3}, 0x20000
        s_mov_b32 s{sT}, s38
        s_mov_b32 s{sT+1}, s39
        s_mov_b32 s{sT+2}, {hx(2 << 20)}
        s_mov_b32 s{sT+3}, 0x20000
        s_and_b32 s{S_T0}, s{S_W}, 3
        s_lshl_b32 s{S_DWL}, s{S_BR}, 13
        s_lshl_b32 s{S_T0}, s{S_T0}, 11
        s_add_u32 s{S_DWL}, s{S_DWL}, s{S_T0}
        v_and_b32 v{tA}, 15, v{self.vL}
        v_lshlrev_b32 v{tA}, 2, v{tA}
        s_lshl_b32 s{S_T0}, s{S_HP}, 7
        v_add_u32 v{tA}, s{S_T0}, v{tA}""")
        ST = self.cfg.get('st', 3)
        Ma, Mb = (tA + 2, tA + 3) if ST else (self.vMa, self.vMb)
        if SMF and ST:
            e(self.sparse_index())
            for r in range(4):
                e(f'v_mov_b32 v{la + r}, 0')
                e(f'v_mov_b32 v{lb + r}, 0')
        if self.cfg.get('xsleep'):
            l = self.lab('xs')
            e(f's_cmp_eq_u32 s{S_BR}, 1')
            e(f's_cbranch_scc0 {l}')
            e(f's_sleep {self.cfg.get("xsleep")}')
            e(f'{l}:')
        self.poll(tA, F1_OFF, tA + 1)
        if self.cfg.get('bhold', 0):
            l = self.lab('bh')
            e(f's_cmp_eq_u32 s{S_BR}, 1')
            e(f's_cbranch_scc0 {l}')
            e(f's_setprio {self.cfg.get("bhold") - 1}')
            e(f'{l}:')
        self.stamp(5)
        if self.cfg.get('spinlog'):
            e(f'v_writelane_b32 v252, s{S_SPIN}, 63')
        self.tstamp3()
        e('@vmclear')
        kv = [x for j in range(3) for x in self.kv2(j)]
        n0 = 2 if ST else 0
        for x in kv[:n0]:
            e(x)
        ln = self.lab('noF1b')
        e(f"""
        s_cmp_eq_u32 s{S_BR}, 0
        s_cbranch_scc0 {ln}""")
        self.count_and_flag(1, 3, f"""
        s_lshl_b32 s{S_T0}, s{S_HP}, 7
        s_lshl_b32 s{S_T1}, s{S_MB}, 2
        s_add_u32 s{S_T0}, s{S_T0}, s{S_T1}
        s_add_u32 s{S_T0}, s{S_T0}, {hx(F1B_OFF)}""", tA, tA + 1)
        e(f'{ln}:')
        n1 = {0: 12, 1: 6, 2: 2, 3: 4}[ST]
        for x in kv[n0:n1]:
            e(x)
        K0 = KVB[0]
        self.tstamp3()
        e('@wait K0')
        self.tstamp3()
        e(shadow([mf32(Sa, K0, Qa, 'z'), mf32(Sb, K0, Qb, 'z'),
                  mf32(Sa, K0 + 4, Qa + 4), mf32(Sb, K0 + 4, Qb + 4)], kv[n1:n1 + 4]))
        self.wave_rowmax(Sa, Ma, tA)
        self.wave_rowmax(Sb, Mb, tA)
        self.cross_half_max(Ma, tA)
        self.cross_half_max(Mb, tA)
        e(f'v_add_f32 v{Ma}, {hx(f2u(MOFF))}, v{Ma}')
        e(f'v_add_f32 v{Mb}, {hx(f2u(MOFF))}, v{Mb}')
        for r in range(16):
            e(f'v_sub_f32 v{Ca + r}, 0, v{Ma}')
        e(shadow([mf32(Sa, K0, Qa, Ca), mf32(Sa, K0 + 4, Qa + 4)], kv[n1 + 4:n1 + 6]))
        body = [f'v_sub_f32 v{Cb + r}, 0, v{Mb}' for r in range(16)]
        e(spread(body, kv[n1 + 6:], first=2))
        if SMF and not ST:
            e(self.sparse_index())
            for r in range(4):
                e(f'v_mov_b32 v{la + r}, 0')
                e(f'v_mov_b32 v{lb + r}, 0')
        v205, v206, v207 = 205, 206, 207
        low = set(self.cfg.get('low', [1, 4, 8, 11, 15, 18, 21, 24, 27, 30]))
        curp = -1
        if low:
            e('s_setprio 1')
        for T in range(32):
            cur, prev, nxt = KVB[T % 4], KVB[(T - 1) % 4], KVB[(T + 1) % 4]
            self.tstamp(T)
            if T in (0, 1, 2, 4, 8, 14, 15, 16, 24, 29, 31):
                self.tstamp3()
            if low:
                want = 0 if T in low else 2
                if want != curp:
                    l = self.lab('pr')
                    e(f's_cmp_eq_u32 s{S_BR}, 0')
                    e(f's_cbranch_scc0 {l}')
                    e(f's_setprio {want}')
                    e(f'{l}:')
                    curp = want
            if T == TX0:
                self.check_flags(v206, v207, F1B_OFF, 'f1b')
            if T == 29 and self.cfg.get('tail', 3) == 3:
                self.check_flags(self.vFa, self.vFv, F2A_OFF, 'f2a')
            mfA = [mf32(Sb, cur, Qb, Cb), mf32(Sb, cur + 4, Qb + 4)]
            if T > 0:
                z = 'z' if T == 1 else None
                mfA += self.pv(Ob, lb, prev + 8, Pb, z)
            SH = self.cfg.get('shadow', 1)
            exA = self.kv2(T + 3)[:2] if (SH and self.cfg.get('kA', 1) and T + 3 <= 31) else []
            e(shadow(interleave(mfA, self.exp_block(Sa, Pa)), exA, skip=self.cfg.get('skipA', 1)))
            e(f'@wait K{T+1}' if T < 31 else '@wait V31')
            mfB = []
            i = T - 2 - TX0
            if 0 <= i < NX:
                e(f'@wait X{XR * i + XR - 1}')
                for m in range(XR * i, XR * i + XR):
                    mfB.append(mf32(XACC, XBUF[m % (2 * XR)], XI, 'z' if m == 0 else None))
            if T < 31:
                mfB += [mf32(Sa, nxt, Qa, Ca), mf32(Sa, nxt + 4, Qa + 4)]
            z = 'z' if T == 0 else None
            mfB += self.pv(Oa, la, cur + 8, Pa, z)
            body = interleave(mfB, self.exp_block(Sb, Pb))
            ex = []
            i = T - TX0
            if 0 <= i < NX:
                for m in range(XR * i, XR * i + XR):
                    ex.append([f'buffer_load_dwordx4 {vr(XBUF[m % (2 * XR)])}, v{self.vL16}, {srd(sWS)}, s{S_X} offen sc1 ;@X{m}',
                               f's_add_u32 s{S_X}, s{S_X}, 8192'])
            if T == TX0:
                ex.append([f'v_and_b32 v{v207}, 31, v{self.vL}',
                           f'v_lshlrev_b32 v{v207}, 2, v{v207}',
                           f'v_lshl_add_u32 v{v207}, v{self.vHf}, 7, v{v207}'])
            if T in (TX0, TX0 + 1):
                for i in range(4 * (T - TX0), 4 * (T - TX0) + 4):
                    ex.append([f'buffer_load_dword v{XZ + i}, v{v207}, {srd(sWS)}, s{S_J} offen' +
                               (f' offset:{i * 256}' if i else '') + ' sc1 ;@z'])
            if T == TF:
                ex.append([f'v_and_b32 v{v206}, 15, v{self.vL}',
                           f'v_lshlrev_b32 v{v206}, 2, v{v206}',
                           f's_lshl_b32 s{S_T0}, s{S_HP}, 7',
                           f'v_add_u32 v{v206}, s{S_T0}, v{v206}',
                           f's_mov_b32 s{S_T1}, {hx(F1B_OFF)}',
                           f'buffer_load_dword v{v207}, v{v206}, {srd(sWS)}, s{S_T1} offen sc1 ;@f1b'])
            k = T - TM - 1
            t3 = self.cfg.get('tail', 3) == 3
            late = []
            if 0 <= k < (8 if t3 else 7):
                (late if self.cfg.get('dmalate', 1) else ex).append(self.wo_dma(k, 0, 'woA'))
                (late if self.cfg.get('dmalate', 1) else ex).append(self.wo_dma(k, 1, 'woA'))
            spf = self.cfg.get('spf', '')
            if k == 2 and (not self.cfg.get('wopf', 3) or 'v' in spf):
                (late if self.cfg.get('dmalate', 1) else ex).append(
                    [f'buffer_load_dword v{self.vS}, v{self.vPF}, {srd(sT)}, 0 offen'])
                (late if self.cfg.get('dmalate', 1) else ex).append(
                    [f's_mov_b32 s{S_T1}, {hx(64 * 2048)}',
                     f'buffer_load_dword v{self.vS}, v{self.vPF}, {srd(sT)}, s{S_T1} offen'])
            if self.cfg.get('wopf', 3) == 3:
                pn = self.cfg.get('spfn', 3)
                ta, tb = self.cfg.get('spfa', 0), TM + 3
                if T == ta:
                    ex.append(self.spf_base(34, 35))
                if T == tb:
                    ex.append(self.spf_base(38, 39))
                for t0_, nm in ((ta, 'A'), (tb, 'B')):
                    if nm in spf and T >= t0_ and (t0_ == tb or T < TM - 1):
                        ex += self.spf_loads((T - t0_) * pn, pn)
            if T == (self.cfg.get('tf2a', 27) if t3 else 30):
                ex.append([f's_mov_b32 s{S_T1}, {hx(F2A_OFF)}',
                           f'buffer_load_dword v{self.vFv}, v{self.vFa}, {srd(sWS)}, s{S_T1} offen sc1 ;@f2a'])
            if t3 and T >= 29:
                ex += self.oload_group(0, T - 29)
            if T + 3 <= 31:
                ex += self.kv2(T + 3)[len(exA):]
            ex += late
            xcons = 0 <= T - 2 - TX0 < NX
            if SH:
                e(shadow(body, ex, skip=(XR - 1 if xcons else 0)))
            else:
                e(spread(body, ex, first=(4 * XR - 2 if xcons else 2)))
            if k == 1:
                e('@wait oa')
                self.count_and_flag(2, 7, f's_mov_b32 s{S_T0}, s{S_FA}', self.vS + 1, self.vS + 2)
            if T == TM:
                self.tstamp3()
                self.midblock()
                if SMF:
                    e(self.sparse_index())
        prev = KVB[3]
        if low:
            e('s_setprio 0')
        e(self.pv(Ob, lb, prev + 8, Pb))
        self.tstamp3()
        self.sum_l()
        e(f'v_add_f32 v{tA}, v{la}, v{lb}')
        e(f'v_pk_add_f32 {vr(Sa, 2)}, {vr(Oa, 2)}, {vr(Oa + 2, 2)}')
        for r in range(4, 32, 2):
            e(f'v_pk_add_f32 {vr(Sa, 2)}, {vr(Sa, 2)}, {vr(Oa + r, 2)}')
        e(f"""
        v_add_f32 v{tA}, v{tA}, v{Sa}
        v_add_f32 v{tA}, v{tA}, v{Sa+1}
        v_mov_b32 v{tA+1}, 0x207
        v_cmp_class_f32 vcc, v{tA}, v{tA+1}
        s_cbranch_vccnz L_retry
        L_attn_done:""")
        self.tstamp3()

    def retry_path(self):
        e = self.emit
        Sa, Sb, Ca, Cb, Oa, Ob = self.Sa, self.Sb, self.Ca, self.Cb, self.Oa, self.Ob
        Qa, Qb = self.QF, self.QF + 8
        Pa, Pb, la, lb, ONES = self.Pa, self.Pb, self.la, self.lb, self.ONES
        KVB = self.KVB
        tA = self.vA
        K0 = KVB[0]
        e(f"""
        L_retry:
        s_waitcnt vmcnt(0)
        v_mov_b32 v{self.vMa}, 0xff800000
        v_mov_b32 v{self.vMb}, 0xff800000
        s_mov_b32 s{S_J}, 0
        L_truemax:""")
        e(self.tile_off(S_T0, S_J))
        e(self.kv_loads(0, f's{S_T0}')[:2])
        e('s_waitcnt vmcnt(0)')
        e(mf32(Sa, K0, Qa, 'z')); e(mf32(Sb, K0, Qb, 'z'))
        e(mf32(Sa, K0 + 4, Qa + 4)); e(mf32(Sb, K0 + 4, Qb + 4))
        for S, M in ((Sa, self.vMa), (Sb, self.vMb)):
            for i in range(0, 16, 2):
                e(f'v_max3_f32 v{M}, v{M}, v{S+i}, v{S+i+1}')
        e(f"""
        s_add_u32 s{S_J}, s{S_J}, 1
        s_cmp_lt_u32 s{S_J}, 32
        s_cbranch_scc1 L_truemax""")
        self.cross_half_max(self.vMa, tA)
        self.cross_half_max(self.vMb, tA)
        self.first_loads()
        e('s_waitcnt vmcnt(10)')
        V3 = KVB[3] + 8
        for r in range(8):
            e(f'v_mov_b32 v{V3 + r}, 0')
            e(f'v_mov_b32 v{Pb + r}, 0')
        for r in range(4):
            e(f'v_mov_b32 v{la + r}, 0')
            e(f'v_mov_b32 v{lb + r}, 0')
        for r in range(16):
            e(f'v_sub_f32 v{Ca + r}, 0, v{self.vMa}')
        e(mf32(Oa, V3, V3, 'z')); e(mf32(Ob, V3, V3, 'z'))
        for r in range(16):
            e(f'v_sub_f32 v{Cb + r}, 0, v{self.vMb}')
        e(mf32(Sa, K0, Qa, Ca)); e(mf32(Sa, K0 + 4, Qa + 4))
        if self.cfg.get('smf', 1):
            e(self.sparse_index())
        e(f's_mov_b32 s{S_IT}, 0')
        e('L_retry_loop:')
        for i4 in range(4):
            cur, prev, nxt = KVB[i4], KVB[(i4 - 1) % 4], KVB[(i4 + 1) % 4]
            mfA = [mf32(Sb, cur, Qb, Cb), mf32(Sb, cur + 4, Qb + 4)] + self.pv(Ob, lb, prev + 8, Pb)
            e(interleave(mfA, self.exp_block(Sa, Pa)))
            e(self.tile_off(S_T0, S_J))
            e(f's_add_u32 s{S_J}, s{S_J}, 1')
            e('s_waitcnt vmcnt(6)')
            mfB = [mf32(Sa, nxt, Qa, Ca), mf32(Sa, nxt + 4, Qa + 4)] + self.pv(Oa, la, cur + 8, Pa)
            body = interleave(mfB, self.exp_block(Sb, Pb))
            e(spread(body, [[x] for x in self.kv_loads((i4 + 3) % 4, f's{S_T0}')], first=4))
        e(f"""
        s_add_u32 s{S_IT}, s{S_IT}, 1
        s_cmp_lt_u32 s{S_IT}, 8
        s_cbranch_scc1 L_retry_loop""")
        prev = KVB[3]
        e(self.pv(Ob, lb, prev + 8, Pb))
        self.sum_l()
        e('s_waitcnt vmcnt(0)')
        if self.cfg.get('tail', 3) == 3:
            for g in range(3):
                for x in self.oload_group(0, g, skip=True):
                    e(x)
        e("""
        s_waitcnt vmcnt(0)
        s_branch L_attn_done""")

    def midblock(self):
        e = self.emit
        ACC, Z = self.XACC, self.XZ
        KT, PH = 208, 224
        ZF = [240, 244, 248, 116]
        N, D = self.Sb, self.Pa
        vLg, vA1, vA2, vA3 = 205, 206, 207, 113
        KP = 216
        self.stamp(7)
        self.tstamp4()
        e('@wait z')
        self.tstamp4()
        e(f'v_add_f32 v{Z}, v{Z}, v{Z+1}')
        for i in range(2, 8):
            e(f'v_add_f32 v{Z}, v{Z}, v{Z+i}')
        for i in range(8):
            e(cvt(KP + i, ACC + 2 * i, ACC + 2 * i + 1))
        e(f"""
        v_mov_b32 v{Z+1}, v{Z}
        s_lshl_b32 s{S_T0}, s{S_HD}, 1
        s_add_u32 s{S_T0}, s{S_T0}, s{S_BR}
        v_permlane32_swap_b32 v{Z}, v{Z+1}
        s_lshl_b32 s{S_T1}, s{S_T0}, 11
        s_add_u32 s{S_T1}, s{S_T1}, {hx(KTX)}
        v_add_u32 v{vA1}, s{S_T1}, v{self.vL16}
        v_add_f32 v{Z}, v{Z}, v{Z+1}
        s_lshl_b32 s{S_T1}, s{S_T0}, 6
        s_add_u32 s{S_T1}, s{S_T1}, {hx(ZT2)}
        v_and_b32 v{vA2}, 31, v{self.vL}
        v_lshlrev_b32 v{Z+1}, 1, v{vA2}
        v_add_u32 v{Z+1}, s{S_T1}, v{Z+1}
        v_cvt_pk_bf16_f32 v{Z}, v{Z}, v{Z}
        s_lshl_b32 s{S_T1}, s{S_TT}, 4
        s_lshl_b32 s{S_T1}, 0xffff, s{S_T1}
        ds_write_b16 v{Z+1}, v{Z}
        s_mov_b32 exec_lo, s{S_T1}
        s_mov_b32 exec_hi, s{S_T1}
        ds_write_b128 v{vA1}, {vr(KP)}
        ds_write_b128 v{vA1}, {vr(KP + 4)} offset:1024
        s_mov_b64 exec, -1
        s_lshl_b32 s{S_T0}, s{S_TT}, 6
        s_lshl_b32 s{S_T1}, s{S_BR}, 5
        s_add_u32 s{S_T0}, s{S_T0}, s{S_T1}
        s_lshl_b32 s{S_T0}, s{S_T0}, 2
        s_add_u32 s{S_T0}, s{S_T0}, {hx(LOGP)}
        v_lshlrev_b32 v{vA2}, 2, v{vA2}
        v_add_u32 v{vA2}, s{S_T0}, v{vA2}
        ds_read_b32 v{vLg}, v{vA2}
        ds_read_b32 v{vA3}, v{vA2} offset:512
        ds_read_b32 v{vA3+1}, v{vA2} offset:1024
        ds_read_b32 v{vA3+2}, v{vA2} offset:1536
        s_lshl_b32 s{S_T0}, s{S_HD}, 1
        s_add_u32 s{S_T0}, s{S_T0}, s{S_TT}
        s_lshl_b32 s{S_T0}, s{S_T0}, 13
        s_lshl_b32 s{S_T1}, s{S_BR}, 12
        s_add_u32 s{S_T0}, s{S_T0}, s{S_T1}
        s_add_u32 s{S_T0}, s{S_T0}, {hx(PHI)}
        v_add_u32 v{vA2}, s{S_T0}, v{self.vL16}""")
        for q in range(4):
            e(f'ds_read_b128 {vr(PH + 4 * q)}, v{vA2} offset:{(q >> 1) * 2048 + (q & 1) * 1024}')
        e(f"""
        s_waitcnt lgkmcnt(4)
        v_add_f32 v{vLg}, v{vLg}, v{vA3}
        v_add_f32 v{vA3+1}, v{vA3+1}, v{vA3+2}
        s_lshl_b32 s{S_T0}, s{S_HD}, 12
        s_add_u32 s{S_T0}, s{S_T0}, {hx(KTX)}
        v_add_f32 v{vLg}, v{vLg}, v{vA3+1}
        v_add_u32 v{vA1}, s{S_T0}, v{self.vL16}
        s_lshl_b32 s{S_T0}, s{S_HD}, 7
        s_add_u32 s{S_T0}, s{S_T0}, {hx(ZT2)}
        v_lshl_add_u32 v{vA3}, v{self.vHf}, 3, s{S_T0}
        v_mov_b32 v{vA3+1}, {hx(ZT0)}
        v_lshrrev_b32 v{vA3+2}, 2, v{self.vL}
        v_lshrrev_b32 v{vA2}, 4, v{self.vL}
        v_xor_b32 v{vA3+2}, v{vA3+2}, v{vA2}
        v_and_b32 v{vA3+2}, 1, v{vA3+2}
        v_cmp_eq_u32 vcc, 0, v{vA3+2}
        v_cndmask_b32 v{vA3}, v{vA3+1}, v{vA3}, vcc
        s_waitcnt lgkmcnt(0)""")
        self.tstamp4()
        e('s_barrier')
        self.tstamp4()
        for q in range(4):
            e(f'ds_read_b128 {vr(KT + 4 * q)}, v{vA1} offset:{(q >> 1) * 2048 + (q & 1) * 1024}')
        for q in range(4):
            o = (q >> 1) * 64 + (q & 1) * 32
            e(f'ds_read_b64 {vr(ZF[q], 2)}, v{vA3} offset:{o}')
            e(f'ds_read_b64 {vr(ZF[q] + 2, 2)}, v{vA3} offset:{o + 16}')
        e(f"""
        v_mul_f32 v{vLg}, s{S_L2E}, v{vLg}
        v_exp_f32 v{vLg}, -v{vLg}
        v_add_f32 v{vLg}, 1.0, v{vLg}
        v_rcp_f32 v{vLg}, v{vLg}
        s_waitcnt lgkmcnt(0)""")
        if self.cfg.get('b2', 0):
            e('s_barrier')
        self.tstamp4()
        for q in range(4):
            z = 'z' if q == 0 else None
            e(mf32(N, KT + 4 * q, PH + 4 * q, z))
            e(mf16(D, ZF[q], PH + 4 * q, z))
        t = self.vS
        assert t >= 232
        e(f"""
        s_and_b32 s{S_T0}, s{S_W}, 3
        s_lshl_b32 s{S_T1}, s{S_T0}, 4
        v_bfe_u32 v{self.vD3p}, v{self.vL}, 2, 3
        v_add_u32 v{self.vD3p}, s{S_T1}, v{self.vD3p}
        v_lshlrev_b32 v{self.vD3p}, 11, v{self.vD3p}
        v_lshl_add_u32 v{self.vD3p}, v{self.vHf}, 6, v{self.vD3p}
        v_and_b32 v{self.vO3}, 3, v{self.vL}
        v_lshl_add_u32 v{self.vD3p}, v{self.vO3}, 4, v{self.vD3p}
        s_lshl_b32 s{S_T1}, s{S_CT}, 7
        s_lshl_b32 s{S_T2}, s{S_BR}, 20
        s_add_u32 s{S_T2}, s{S_T2}, s{S_T1}
        v_add_u32 v{self.vD3p}, s{S_T2}, v{self.vD3p}
        v_bfe_u32 v{self.vR3}, v{self.vL}, 2, 2
        v_lshlrev_b32 v{self.vR3}, 6, v{self.vR3}
        v_bfe_u32 v{self.vR3b}, v{self.vL}, 4, 1
        v_lshl_add_u32 v{self.vR3}, v{self.vR3b}, 5, v{self.vR3}
        v_lshl_add_u32 v{self.vR3}, v{self.vO3}, 3, v{self.vR3}
        v_lshl_add_u32 v{self.vR3}, v{self.vHf}, 8, v{self.vR3}
        s_lshl_b32 s{S_T2}, s{S_BR}, 13
        v_add_u32 v{self.vR3}, s{S_T2}, v{self.vR3}
        v_add_u32 v{self.vR3b}, 0x10000, v{self.vR3}
        s_lshl_b32 s{S_T2}, s{S_MB3}, 2
        s_add_u32 s{S_T2}, s{S_T2}, s{S_T0}
        s_lshl_b32 s{S_T2}, s{S_T2}, 17
        s_lshl_b32 s{S_T3}, s{S_BR}, 15
        s_add_u32 s{S_T2}, s{S_T2}, s{S_T3}
        s_add_u32 s{S_T2}, s{S_T2}, {hx(O_OFF)}
        v_add_u32 v{self.vO3}, s{S_T2}, v{self.vL16}
        s_lshl_b32 s{S_T2}, s{S_W}, 7
        v_add_u32 v{self.vPF}, s{S_T2}, v{self.vL}
        v_lshlrev_b32 v{self.vPF}, 11, v{self.vPF}
        v_add_u32 v{self.vPF}, s{S_T1}, v{self.vPF}
        v_and_b32 v{self.vFa}, 15, v{self.vL}
        v_lshlrev_b32 v{self.vFa}, 2, v{self.vFa}
        s_lshl_b32 s{S_T2}, s{S_MB3}, 7
        v_add_u32 v{self.vFa}, s{S_T2}, v{self.vFa}
        v_sub_f32 v{self.vG1}, 1.0, v{vLg}
        v_add_f32 v{vA1}, {hx(f2u(1e-6))}, v{D}
        v_rcp_f32 v{vA1}, v{vA1}
        s_lshl_b32 s{S_T0}, s{S_MB}, 2
        s_lshl_b32 s{S_T1}, s{S_TT}, 1
        s_add_u32 s{S_T0}, s{S_T0}, s{S_T1}
        s_add_u32 s{S_T0}, s{S_T0}, s{S_BR}
        s_lshl_b32 s{S_T0}, s{S_T0}, 17
        s_lshl_b32 s{S_T1}, s{S_HEAD}, 11
        s_add_u32 s{S_T0}, s{S_T0}, s{S_T1}
        s_add_u32 s{S_X}, s{S_T0}, {hx(O_OFF)}
        v_mul_f32 v{vA1}, v{vA1}, v{vLg}""")
        self.tstamp4()
        for r in range(16):
            e(f'v_mul_f32 v{N+r}, v{N+r}, v{vA1}')
        for i in range(8):
            e(cvt(KT + i, N + 2 * i, N + 2 * i + 1))
        e(f"""
        buffer_store_dwordx4 {vr(KT)}, v{self.vL16}, {srd(sWS)}, s{S_X} offen sc1 ;@oa
        buffer_store_dwordx4 {vr(KT + 4)}, v{self.vL16}, {srd(sWS)}, s{S_X} offen offset:1024 sc1 ;@oa
        s_add_u32 s{S_X}, s{S_X}, 65536""")
        self.tstamp4()
        self.stamp(8)

    def tail2(self):
        e = self.emit
        Oa, Ob, la, lb = self.Oa, self.Ob, self.la, self.lb
        ACC0, ACC1 = 0, 16
        WB = [32, 40, 48, 56]
        OB = [140, 64]
        vR3, vR3b, vO3, vE = self.vR3, self.vR3b, self.vO3, self.vS
        t = self.vS

        def oloads(m):
            L = []
            for g in range(4):
                L += [f's_add_u32 s{S_T0}, s{S_R}, {(m & 1) * 4 + g}',
                      f's_and_b32 s{S_T0}, s{S_T0}, 7',
                      f's_lshl_b32 s{S_T0}, s{S_T0}, 12']
                if m >> 1:
                    L.append(f's_add_u32 s{S_T0}, s{S_T0}, 65536')
                for q in range(4):
                    L.append(f'buffer_load_dwordx4 {vr(OB[m & 1] + 16 * g + 4 * q)}, v{vO3}, {srd(sWS)}, s{S_T0} offen' +
                             (f' offset:{q * 1024}' if q else '') + f' sc1 ;@o{m}_{4 * g + q}')
            return L

        def wreads(m, n):
            q, h2, s = n >> 2, (n >> 1) & 1, n & 1
            slot = (4 * m + q) % 8
            base = vR3 if slot < 4 else vR3b
            o = (slot & 3) * 16384 + (h2 * 4 + 2 * s) * 1024
            b = WB[n & 3]
            return [f'ds_read_b64_tr_b16 {vr(b, 2)}, v{base} offset:{o}',
                    f'ds_read_b64_tr_b16 {vr(b + 2, 2)}, v{base} offset:{o + 1024}',
                    f'ds_read_b64_tr_b16 {vr(b + 4, 2)}, v{base} offset:{o + 512}',
                    f'ds_read_b64_tr_b16 {vr(b + 6, 2)}, v{base} offset:{o + 1536}']

        def macro(m):
            e(wreads(m, 0)); e(wreads(m, 1))
            for n in range(16):
                if n + 2 < 16:
                    e(wreads(m, n + 2))
                    e('s_waitcnt lgkmcnt(8)')
                elif n == 14:
                    e('s_waitcnt lgkmcnt(4)')
                else:
                    e('s_waitcnt lgkmcnt(0)')
                e(f'@wait o{m}_{n}')
                b = WB[n & 3]
                of = OB[m & 1] + 4 * n
                first = 'z' if (m == 0 and n == 0) else None
                e(mf32(ACC0, b, of, first))
                e(mf32(ACC1, b + 4, of, first))

        self.stamp(6)
        self.tstamp2()
        e(f"""
        v_sub_f32 v{self.vMa}, 0, v{self.Ca}
        v_sub_f32 v{self.vMb}, 0, v{self.Cb}""")
        self.check_flags(self.vFa, self.vFv, F2A_OFF, 'f2a')
        self.tstamp2()
        e(oloads(0))
        self.tstamp2()
        e(f"""
        v_rcp_f32 v{lb+1}, v{lb}
        v_log_f32 v{lb+2}, v{lb}
        s_mul_i32 s{S_T0}, s{S_W}, {MRG2_STRIDE}
        s_add_u32 s{S_T0}, s{S_T0}, {hx(MRG2)}
        v_add_u32 v{t}, s{S_T0}, v{self.vL16}
        v_lshlrev_b32 v{t+1}, 2, v{self.vL}
        v_add_u32 v{t+2}, s{S_T0}, v{t+1}
        v_add_f32 v{lb+2}, v{lb+2}, v{self.vMb}""")
        for q in range(4):
            for r in range(4):
                e(f'v_mul_f32 v{Ob+4*q+r}, v{Ob+4*q+r}, v{lb+1}')
            e(f'ds_write_b128 v{t}, {vr(Ob + 4 * q)} offset:{q * 1024}')
        e(f"""
        ds_write_b32 v{t+2}, v{lb+2} offset:4096
        v_rcp_f32 v{la+1}, v{la}
        v_log_f32 v{la+2}, v{la}
        s_xor_b32 s{S_T1}, s{S_W}, 4
        s_mul_i32 s{S_T0}, s{S_T1}, {MRG2_STRIDE}
        s_add_u32 s{S_T0}, s{S_T0}, {hx(MRG2)}
        v_add_u32 v{t}, s{S_T0}, v{self.vL16}
        v_add_u32 v{t+2}, s{S_T0}, v{t+1}
        v_add_f32 v{la+2}, v{la+2}, v{self.vMa}""")
        for r in range(16):
            e(f'v_mul_f32 v{Oa+r}, v{Oa+r}, v{la+1}')
        self.tstamp2()
        e("""
        s_waitcnt lgkmcnt(0)
        @wait woA
        s_barrier""")
        self.tstamp2()
        RO, RL = 0, 16
        e(f'ds_read_b32 v{RL}, v{t+2} offset:4096')
        for q in range(4):
            e(f'ds_read_b128 {vr(RO + 4 * q)}, v{t} offset:{q * 1024}')
        La = la + 2
        e(f"""
        s_waitcnt lgkmcnt(4)
        v_max_f32 v20, v{La}, v{RL}
        v_sub_f32 v21, v{La}, v20
        v_sub_f32 v22, v{RL}, v20
        v_exp_f32 v21, v21
        v_exp_f32 v22, v22
        v_add_f32 v23, v21, v22
        v_rcp_f32 v23, v23
        v_mul_f32 v23, v23, v{self.vG1}
        v_mul_f32 v21, v21, v23
        v_mul_f32 v22, v22, v23
        s_waitcnt lgkmcnt(0)
        s_barrier""")
        self.tstamp2()
        e(self.wo_dma(7, 0, 'wo7')); e(self.wo_dma(7, 1, 'wo7'))
        for r in range(16):
            e(f'v_mul_f32 v{Oa+r}, v{Oa+r}, v21')
            e(f'v_fma_f32 v{Oa+r}, v{RO+r}, v22, v{Oa+r}')
        OBF = 128
        for i in range(8):
            e(cvt(OBF + i, Oa + 2 * i, Oa + 2 * i + 1))
        e(f"""
        buffer_store_dwordx4 {vr(OBF)}, v{self.vL16}, {srd(sWS)}, s{S_X} offen sc1 ;@ob
        buffer_store_dwordx4 {vr(OBF+4)}, v{self.vL16}, {srd(sWS)}, s{S_X} offen offset:1024 sc1 ;@ob""")
        e(oloads(1))
        self.stamp(9)
        self.tstamp2()
        macro(0)
        self.tstamp2()
        e('@wait ob')
        self.tstamp2()
        self.count_and_flag(3, 7, f's_mov_b32 s{S_T0}, s{S_FB}', t, t + 1)
        e(f"""
        s_mov_b32 s{sW}, s38
        s_mov_b32 s{sW+1}, s39
        s_barrier""")
        self.tstamp2()
        for st in range(8, 12):
            e(self.wo_dma(st, 0, 'wo8')); e(self.wo_dma(st, 1, 'wo8'))
        self.tstamp2()
        macro(1)
        self.tstamp2()
        self.poll(self.vFa, F2B_OFF, self.vFv)
        e('@vmclear')
        self.stamp(10)
        self.tstamp2()
        e(oloads(2)); e(oloads(3))
        self.tstamp2()
        e('s_barrier')
        self.tstamp2()
        for st in range(12, 16):
            e(self.wo_dma(st, 0, 'wo12')); e(self.wo_dma(st, 1, 'wo12'))
        macro(2)
        self.tstamp2()
        e('@wait wo12')
        e('s_barrier')
        self.tstamp2()
        macro(3)
        self.tstamp2()
        self.stamp(11)
        self.final_store()

    OBK = [140, 64]

    def oload_group(self, m, g, skip=False):
        L = []
        for q in range(4):
            x = []
            if q == 0:
                x += [f's_add_u32 s{S_OO}, s{S_R}, {(m & 1) * 4 + g}',
                      f's_and_b32 s{S_OO}, s{S_OO}, 7',
                      f's_lshl_b32 s{S_OO}, s{S_OO}, 12']
                if m >> 1:
                    x.append(f's_add_u32 s{S_OO}, s{S_OO}, 65536')
            tag = 'skip' if skip else f'o{m}_{4 * g + q}'
            x.append(f'buffer_load_dwordx4 {vr(self.OBK[m & 1] + 16 * g + 4 * q)}, v{self.vO3}, {srd(sWS)}, s{S_OO} offen' +
                     (f' offset:{q * 1024}' if q else '') + f' sc1 ;@{tag}')
            L.append(x)
        return L

    def tail3(self):
        e = self.emit
        cfg = self.cfg
        Oa, Ob, la, lb = self.Oa, self.Ob, self.la, self.lb
        ACC0, ACC1 = 0, 16
        WB = [32, 40, 48, 56]
        OB = self.OBK
        vR3, vR3b = self.vR3, self.vR3b
        t = self.vS

        def wreads(s):
            st, h2, k = s >> 2, (s >> 1) & 1, s & 1
            slot = st % 8
            base = vR3 if slot < 4 else vR3b
            o = (slot & 3) * 16384 + (h2 * 4 + 2 * k) * 1024
            b = WB[s & 3]
            return [f'ds_read_b64_tr_b16 {vr(b, 2)}, v{base} offset:{o}',
                    f'ds_read_b64_tr_b16 {vr(b + 2, 2)}, v{base} offset:{o + 1024}',
                    f'ds_read_b64_tr_b16 {vr(b + 4, 2)}, v{base} offset:{o + 512}',
                    f'ds_read_b64_tr_b16 {vr(b + 6, 2)}, v{base} offset:{o + 1536}']

        ol = lambda m: [x for g in range(4) for x in self.oload_group(m, g)]
        o1, o2, o3 = ol(1), ol(2), ol(3)
        pre1 = cfg.get('pre1', 2)

        self.stamp(6)
        self.tstamp2()
        for x in self.oload_group(0, 3):
            e(x)
        early = o1[16 - 4 * pre1:]
        body = f"""
        v_sub_f32 v{self.vMa}, 0, v{self.Ca}
        v_sub_f32 v{self.vMb}, 0, v{self.Cb}
        v_rcp_f32 v{lb+1}, v{lb}
        v_log_f32 v{lb+2}, v{lb}
        s_mul_i32 s{S_T0}, s{S_W}, {MRG3_STRIDE}
        s_add_u32 s{S_T0}, s{S_T0}, {hx(MRG3)}
        v_add_u32 v{t}, s{S_T0}, v{self.vL16}
        v_lshlrev_b32 v{t+1}, 2, v{self.vL}
        v_add_u32 v{t+2}, s{S_T0}, v{t+1}
        v_add_f32 v{lb+2}, v{lb+2}, v{self.vMb}
        s_mov_b32 s{sW}, s38
        s_mov_b32 s{sW+1}, s39""".split('\n')
        for h in range(2):
            for r in range(8):
                body.append(f'v_mul_f32 v{Ob+8*h+r}, v{Ob+8*h+r}, v{lb+1}')
            for i in range(4):
                body.append(cvt(4 * h + i, Ob + 8 * h + 2 * i, Ob + 8 * h + 2 * i + 1))
            body.append(f'ds_write_b128 v{t}, {vr(4 * h)} offset:{h * 1024}')
        body += f"""
        ds_write_b32 v{t+2}, v{lb+2} offset:2048
        v_rcp_f32 v{la+1}, v{la}
        v_log_f32 v{la+2}, v{la}
        s_xor_b32 s{S_T1}, s{S_W}, 4
        s_mul_i32 s{S_T0}, s{S_T1}, {MRG3_STRIDE}
        s_add_u32 s{S_T0}, s{S_T0}, {hx(MRG3)}
        v_add_u32 v{t}, s{S_T0}, v{self.vL16}
        v_add_u32 v{t+2}, s{S_T0}, v{t+1}
        v_add_f32 v{la+2}, v{la+2}, v{self.vMa}""".split('\n')
        n0 = len(body)
        for r in range(16):
            body.append(f'v_mul_f32 v{Oa+r}, v{Oa+r}, v{la+1}')
        e(spread(body, early, first=n0 - 9 if cfg.get('late1', 1) else 4))
        self.tstamp2()
        e("""
        s_waitcnt lgkmcnt(0)
        @wait woA
        s_barrier""")
        self.tstamp2()
        RO, RL = 8, 16
        e(f'ds_read_b32 v{RL}, v{t+2} offset:2048')
        for q in range(2):
            e(f'ds_read_b128 {vr(RO + 4 * q)}, v{t} offset:{q * 1024}')
        e(wreads(0)); e(wreads(1))
        La = la + 2
        e(f"""
        s_waitcnt lgkmcnt(10)
        v_max_f32 v20, v{La}, v{RL}
        v_sub_f32 v21, v{La}, v20
        v_sub_f32 v22, v{RL}, v20
        v_exp_f32 v21, v21
        v_exp_f32 v22, v22
        v_mov_b32 v24, 0xffff0000
        v_add_f32 v23, v21, v22
        v_rcp_f32 v23, v23
        v_mul_f32 v23, v23, v{self.vG1}
        v_mul_f32 v21, v21, v23
        v_mul_f32 v22, v22, v23
        s_waitcnt lgkmcnt(8)""")
        OBF = 128
        for i in range(8):
            e(f'v_lshlrev_b32 v25, 16, v{RO+i}')
            e(f'v_and_b32 v26, v24, v{RO+i}')
            e(f'v_mul_f32 v{Oa+2*i}, v{Oa+2*i}, v21')
            e(f'v_mul_f32 v{Oa+2*i+1}, v{Oa+2*i+1}, v21')
            e(f'v_fma_f32 v{Oa+2*i}, v25, v22, v{Oa+2*i}')
            e(f'v_fma_f32 v{Oa+2*i+1}, v26, v22, v{Oa+2*i+1}')
            e(cvt(OBF + i, Oa + 2 * i, Oa + 2 * i + 1))
            if i in (3, 7):
                h = i >> 2
                e(f'buffer_store_dwordx4 {vr(OBF + 4 * h)}, v{self.vL16}, {srd(sWS)}, s{S_X} offen' +
                  (' offset:1024' if h else '') + ' sc1 ;@ob')
        self.stamp(9)
        self.tstamp2()
        post = {s: [] for s in range(64)}
        pre = {s: [] for s in range(64)}
        rest1 = o1[:16 - 4 * pre1]
        for n, x in enumerate(rest1):
            post[n].append(x)
        nf = cfg.get('nf', 4)
        lnf = self.lab('noflagB')
        post[nf].insert(0, ['@wait ob', 's_mov_b64 exec, 1', f'v_mov_b32 v{t}, {hx(CNT + 12)}', f'v_mov_b32 v{t+1}, 1',
                            f'ds_add_rtn_u32 v{t+1}, v{t}, v{t+1}', 's_mov_b64 exec, -1'])
        post[nf + 2].insert(0, ['s_mov_b64 exec, 1', f'v_cmp_ne_u32 vcc, 7, v{t+1}', f's_cbranch_vccnz {lnf}',
                                f'v_mov_b32 v{t+1}, 1', f'v_mov_b32 v{t}, 0',
                                f'buffer_store_dword v{t+1}, v{t}, {srd(sWS)}, s{S_FB} offen sc1 ;@skip',
                                f'{lnf}:', 's_mov_b64 exec, -1'])
        bar = {}
        for j in range(6):
            s0 = 8 * j + 7
            bar[s0] = None if j < 2 else f'wo{8 + 2 * (j - 2)}'
            if j < 4:
                w = [self.wo_dma(st, i, f'wo{8 + 2 * j}') for st in (8 + 2 * j, 9 + 2 * j) for i in range(2)]
                for n, x in enumerate(w):
                    post[s0 + n * cfg.get('wstep', 1)].append(x)
        nc = cfg.get('nc', 28)
        nb = nc - cfg.get('nbd', 4)
        post[nb].append([f's_mov_b32 s{S_T1}, {hx(F2B_OFF)}',
                         f'buffer_load_dword v{self.vFv}, v{self.vFa}, {srd(sWS)}, s{S_T1} offen sc1 ;@f2b'])
        for n, x in enumerate(o2):
            post[min(nc + (n * cfg.get('o2n', 8)) // 16, 63)].append(x)
        s3 = cfg.get('s3', 36)
        for n, x in enumerate(o3):
            post[max(s3 + (n * cfg.get('o3n', 16)) // 16, 16 + n)].append(x)
        marks = set(cfg.get('marks', [15, 19, 31, 47]))
        for s in range(64):
            m, n = s >> 4, s & 15
            if s == nc:
                self.tstamp2()
                self.check_flags(self.vFa, self.vFv, F2B_OFF, 'f2b')
                self.stamp(10)
                self.tstamp2()
            if s + 2 < 64:
                e(wreads(s + 2))
                e('s_waitcnt lgkmcnt(8)')
            elif s == 62:
                e('s_waitcnt lgkmcnt(4)')
            else:
                e('s_waitcnt lgkmcnt(0)')
            e(f'@wait o{m}_{n}')
            b = WB[s & 3]
            of = OB[m & 1] + 4 * n
            first = 'z' if s == 0 else None
            e(mf32(ACC0, b, of, first))
            e(mf32(ACC1, b + 4, of, first))
            if s in bar:
                if bar[s]:
                    e(f'@wait {bar[s]}')
                e('s_barrier')
            for x in post[s]:
                e(x)
            if s in marks:
                self.tstamp2()
        self.tstamp2()
        self.stamp(11)
        self.final_store()

    def final_store(self):
        e = self.emit
        ACC0, ACC1 = 0, 16
        vE = self.vS
        lA = self.lab('keep1')
        lB = self.lab('kept')
        e(f"""
        s_lshl_b32 s{S_T0}, s{S_W}, 12
        s_add_u32 s{S_T0}, s{S_T0}, {hx(XCH2)}
        v_add_u32 v{vE}, s{S_T0}, v{self.vL16}
        s_xor_b32 s{S_T1}, s{S_W}, 4
        s_lshl_b32 s{S_T0}, s{S_T1}, 12
        s_add_u32 s{S_T0}, s{S_T0}, {hx(XCH2)}
        v_add_u32 v{vE+1}, s{S_T0}, v{self.vL16}
        s_cmp_eq_u32 s{S_BR}, 1
        s_cbranch_scc1 {lA}""")
        for q in range(4):
            e(f'ds_write_b128 v{vE}, {vr(ACC1 + 4 * q)} offset:{q * 1024}')
        e(f's_branch {lB}')
        e(f'{lA}:')
        for q in range(4):
            e(f'ds_write_b128 v{vE}, {vr(ACC0 + 4 * q)} offset:{q * 1024}')
        for r in range(16):
            e(f'v_mov_b32 v{ACC0+r}, v{ACC1+r}')
        e(f'{lB}:')
        e("""
        s_waitcnt lgkmcnt(0)
        s_barrier""")
        R = 32
        for q in range(4):
            e(f'ds_read_b128 {vr(R + 4 * q)}, v{vE+1} offset:{q * 1024}')
        e(f"""
        s_lshl_b32 s{S_T0}, s{S_MB3}, 7
        s_and_b32 s{S_T1}, s{S_W}, 3
        s_lshl_b32 s{S_T1}, s{S_T1}, 5
        s_add_u32 s{S_T0}, s{S_T0}, s{S_T1}
        v_and_b32 v{vE}, 31, v{self.vL}
        v_add_u32 v{vE}, s{S_T0}, v{vE}
        v_lshlrev_b32 v{vE}, 11, v{vE}
        v_lshl_add_u32 v{vE}, v{self.vHf}, 4, v{vE}
        s_lshl_b32 s{S_T0}, s{S_CT}, 7
        s_lshl_b32 s{S_T1}, s{S_BR}, 6
        s_add_u32 s{S_T0}, s{S_T0}, s{S_T1}
        v_add_u32 v{vE}, s{S_T0}, v{vE}
        s_waitcnt lgkmcnt(0)""")
        for r in range(16):
            e(f'v_add_f32 v{ACC0+r}, v{ACC0+r}, v{R+r}')
        P = 48
        for i in range(8):
            e(cvt(P + i, ACC0 + 2 * i, ACC0 + 2 * i + 1))
        for u in range(2):
            e(f'v_permlane32_swap_b32 v{P+4*u}, v{P+4*u+2}')
            e(f'v_permlane32_swap_b32 v{P+4*u+1}, v{P+4*u+3}')
        for u in range(2):
            e(f'buffer_store_dwordx4 {vr(P + 4 * u)}, v{vE}, {srd(sOUT)}, 0 offen' + (f' offset:{u * 32}' if u else ''))

    def build(self):
        e = self.emit
        stop = self.cfg.get('stop', 'full')
        self.prologue()
        self.gemm_loop()
        e(f'''
        s_cmp_eq_u32 s{S_BR}, 1
        s_cbranch_scc1 L_epiB''')
        self.epi_A()
        e('s_branch L_attn')
        self.epi_B()
        if self.cfg.get('v', 2) == 1:
            self.attention()
            if stop != 'attn':
                self.finalize_attn()
                if stop != 'fin':
                    self.outproj()
        else:
            self.attention2()
            self.tail3() if self.cfg.get('tail', 3) == 3 else self.tail2()
        e('s_waitcnt vmcnt(0) lgkmcnt(0)')
        self.stamp(12)
        self.dump_stamps()
        e('''
        s_waitcnt vmcnt(0) lgkmcnt(0)
        L_end:
        s_endpgm''')
        if self.cfg.get('v', 2) != 1:
            self.retry_path()
            e('s_endpgm')
        e('L_codeend:')
        body = self.a.finalize(report=self.cfg.get('report', False))
        return body


HEADER = open(os.path.join(os.path.dirname(os.path.abspath(__file__)), 'header.txt')).read()


def make(cfg):
    g = Gen(cfg)
    body = g.build()
    k = NAME + '_kernel'
    src = HEADER + f'''; @launch grid=(256,1,1) block=(512,1,1) lds={LDS_SIZE}
.amdgcn_target "amdgcn-amd-amdhsa--gfx950"
.text
.globl {k}
.p2align 8
.type {k},@function
{k}:
{body}.section .rodata,"a"
.p2align 6
.amdhsa_kernel {k}
  .amdhsa_next_free_vgpr 256
  .amdhsa_next_free_sgpr 96
  .amdhsa_accum_offset 256
  .amdhsa_group_segment_fixed_size 0
  .amdhsa_kernarg_size 88
  .amdhsa_user_sgpr_count 2
  .amdhsa_user_sgpr_kernarg_segment_ptr 1
  .amdhsa_system_sgpr_workgroup_id_x 1
  .amdhsa_float_denorm_mode_32 3
.end_amdhsa_kernel
'''
    return src, g


if __name__ == '__main__':
    import argparse, json
    ap = argparse.ArgumentParser()
    ap.add_argument('-o', default='cdna_kernels/' + NAME + '.s')
    ap.add_argument('--cfg', default='{}')
    args = ap.parse_args()
    cfg = json.loads(args.cfg)
    src, g = make(cfg)
    open(args.o, 'w').write(src)
    print('wrote', args.o, 'instructions', g.a.count, 'nops inserted', len(g.a.inserted))
```

```python
import sys, struct, os
sys.path.insert(0, os.path.dirname(os.path.abspath(__file__)))
from asmlib import Asm

NAME = 'gated_mix__linear_kernel_hedgehog__mha_block__prompt'
L2E = 1.4426950408889634
QS = L2E / (32 ** 0.5)


def f2u(x):
    return struct.unpack('<I', struct.pack('<f', x))[0]


def hx(x):
    return '0x%x' % x


KV_OFF = 0
O_OFF = 8 << 20
KVP_OFF = 16 << 20
ZP_OFF = 18 << 20
FLG_OFF = 19 << 20
F1_OFF = FLG_OFF
F1B_OFF = FLG_OFF + 32768
F2_OFF = FLG_OFF + 65536
F2A_OFF = FLG_OFF + 65536
F2B_OFF = FLG_OFF + 98304
WS_SIZE = 20 << 20
XS = 0
WSL = 49152
WPHI = 147456
GW = 151552
LOGP = GW
LOG = 161792
CNT = 162304
FL = 161792
FLQ = 161920
ZT2 = 162368
ZT0 = 162624
KTX = 153600
MRG2 = 126976
MRG2_STRIDE = 4352
XCH2 = 0
MRG3 = 131072
MRG3_STRIDE = 2304
QX = 75776
PHI = 16384
KVX = 49152
KVZ = 65536
MRG = 66560
MRG_STRIDE = 9216
ZT = 140288
XCH = 131072
LDS_SIZE = 163840
SPIN = 1 << 16
BIGOFF = 0x7000000
MOFF = 100.0

sX, sW, sWS, sOUT, sDBG, sT = 4, 8, 12, 16, 20, 24
S_W, S_BR, S_HD, S_TT, S_HP, S_MB, S_C, S_HEAD = 48, 49, 50, 51, 52, 53, 54, 55
S_DWL, S_DXL, S_WC, S_XC, S_XN, S_XNN, S_WK, S_U = 56, 57, 58, 59, 60, 61, 62, 63
S_T0, S_T1, S_T2, S_T3, S_T4 = 64, 65, 66, 67, 68
S_L2E, S_QS, S_SPIN, S_RETRY, S_J, S_ROT, S_IT = 69, 70, 71, 72, 73, 74, 75
S_4096 = 76
S_EX = 78
S_OFF, S_X, S_MB3, S_CT, S_FA, S_FB, S_R = 77, 80, 81, 82, 83, 84, 85
S_OO = 86
S_R2, S_FM, S_VAL, S_OL = 58, 59, 60, 61
S_PB, S_PD = 88, 90
S_JU, S_JO = 88, 89


def srd(b):
    return 's[%d:%d]' % (b, b + 3)


def vr(b, n=4):
    return 'v[%d:%d]' % (b, b + n - 1)


def mf32(d, A, B, C=None):
    c = vr(d, 16) if C is None else ('0' if C == 'z' else vr(C, 16))
    return 'v_mfma_f32_32x32x16_bf16 %s, %s, %s, %s' % (vr(d, 16), vr(A), vr(B), c)


def mf16(d, A, B, C=None):
    c = vr(d, 4) if C is None else ('0' if C == 'z' else vr(C, 4))
    return 'v_mfma_f32_16x16x32_bf16 %s, %s, %s, %s' % (vr(d, 4), vr(A), vr(B), c)


def smf(d, A, B, idx):
    return 'v_smfmac_f32_16x16x64_bf16 %s, %s, %s, v%d' % (vr(d, 4), vr(A), vr(B, 8), idx)


def cvt(d, a, b):
    return 'v_cvt_pk_bf16_f32 v%d, v%d, v%d' % (d, a, b)


def interleave(mf, other, per=None):
    out = []
    n = len(mf)
    k = len(other)
    pos = 0
    for i, m in enumerate(mf):
        out.append(m)
        end = (k * (i + 1)) // n if per is None else min(k, pos + per[i])
        out += other[pos:end]
        pos = end
    out += other[pos:]
    return out


class VM:
    def __init__(self, emit):
        self.ops = []
        self.seen = set()
        self.emit = emit

    def issue(self, text, tag):
        self.ops.append(tag)
        return text

    def wait_text(self, tag):
        assert tag in self.seen, 'wait on a tag that was never issued: ' + tag
        base = lambda t: t.split('~')[0]
        blk = lambda t: t.split('~')[1] if '~' in t else None
        idx = max((i for i, t in enumerate(self.ops) if base(t) == tag), default=-1)
        if idx < 0:
            return []
        b = blk(self.ops[idx])
        n = sum(1 for t in self.ops[idx + 1:] if blk(t) is None or blk(t) == b)
        assert n <= 63, n
        self.ops = [t for t in self.ops[:idx + 1] if b is not None and blk(t) is None] + self.ops[idx + 1:]
        return ['s_waitcnt vmcnt(%d)' % n]

    def wait(self, tag):
        self.emit(self.wait_text(tag))

    def clear(self):
        self.ops = []


def spread(body, extra, first=1, last=None):
    if not extra:
        return list(body)
    last = len(body) if last is None else last
    pos = [first + ((last - first) * i) // len(extra) for i in range(len(extra))]
    out = []
    k = 0
    for n, x in enumerate(body):
        while k < len(extra) and pos[k] <= n:
            out += extra[k]; k += 1
        out.append(x)
    while k < len(extra):
        out += extra[k]; k += 1
    return out


def is_mfma(x):
    return x.startswith(('v_mfma', 'v_smfmac'))


def is_vmem(x):
    return x.startswith(('buffer_', 'global_'))


def shadow(body, extra, skip=0):
    if not extra:
        return list(body)
    mpos = [n for n, x in enumerate(body) if is_mfma(x)]
    mpos = mpos[min(skip, len(mpos) - 1):]
    k, m = len(extra), len(mpos)
    slots = [[] for _ in mpos]
    for i, it in enumerate(extra):
        slots[(i * m) // k if k > m else min(m - 1, i + (m - k) * (i + 1) // (k + 1))].append(it)
    out = []
    for n, x in enumerate(body):
        its = slots[mpos.index(n)] if n in mpos else []
        if its:
            first = its[0]
            v = next((j for j, y in enumerate(first) if is_vmem(y)), 0)
            hoist = all(y.startswith('s_') for y in first[:v])
            if hoist:
                out += first[:v]
            out.append(x)
            out += first[v:] if hoist else first
            for it in its[1:]:
                out += it
        else:
            out.append(x)
    return out


class Gen:
    def __init__(self, cfg):
        self.cfg = cfg
        self.FS = cfg.get('fs', 2)
        self.FG = max(self.FS + 4, 7)
        self.a = Asm()
        self.uid = 0
        self.par16 = 0
        self.vm = VM(self.emit)

    def lab(self, s):
        self.uid += 1
        return 'L_%s_%d' % (s, self.uid)

    def emit(self, lines):
        if isinstance(lines, str):
            lines = [lines]
        for chunk in lines:
            for ln in chunk.split('\n'):
                ln = ln.strip()
                if not ln:
                    continue
                if ln.startswith('@wait '):
                    for x in self.vm.wait_text(ln[6:].strip()):
                        self.a(x)
                    continue
                if ln == '@vmclear':
                    self.vm.clear()
                    continue
                tag = 'anon'
                if ';@' in ln:
                    ln, tag = ln.split(';@')
                    ln = ln.rstrip()
                if ln.startswith('buffer_') and tag != 'skip':
                    self.vm.ops.append(tag)
                    self.vm.seen.add(tag.split('~')[0])
                self.a(ln)

    def stamp(self, i):
        if self.cfg.get('stamps'):
            self.emit(f'''
            s_memrealtime s[94:95]
            s_memtime s[92:93]
            s_waitcnt lgkmcnt(0)
            v_writelane_b32 v252, s94, {i}
            v_writelane_b32 v252, s92, {16 + i}''')

    def tstamp(self, i):
        if self.cfg.get('tstamps'):
            self.emit(f'''
            s_memtime s[92:93]
            s_waitcnt lgkmcnt(0)
            v_writelane_b32 v252, s92, {32 + i}''')

    def tstamp2(self):
        if self.cfg.get('tst2'):
            i = self.t2 = getattr(self, 't2', -1) + 1
            self.emit(f'''
            s_memrealtime s[92:93]
            s_waitcnt lgkmcnt(0)
            v_writelane_b32 v252, s92, {32 + i}''')

    def tstamp3(self):
        if self.cfg.get('tst3'):
            i = self.t3 = getattr(self, 't3', -1) + 1
            self.emit(f'''
            s_memrealtime s[92:93]
            s_waitcnt lgkmcnt(0)
            v_writelane_b32 v252, s92, {32 + i}''')

    def tstamp4(self):
        if self.cfg.get('tst4'):
            i = self.t4 = getattr(self, 't4', -1) + 1
            self.emit(f'''
            s_memrealtime s[92:93]
            s_waitcnt lgkmcnt(0)
            v_writelane_b32 v252, s92, {32 + i}''')

    def tstamp5(self):
        if self.cfg.get('tst5'):
            i = self.t5 = getattr(self, 't5', -1) + 1
            self.emit(f'''
            s_memrealtime s[92:93]
            s_waitcnt lgkmcnt(0)
            v_writelane_b32 v252, s92, {32 + i}''')

    def dump_stamps(self):
        if not self.cfg.get('stamps'):
            return
        e = self.emit
        e(f'''
        s_mov_b32 s{sT}, s46
        s_mov_b32 s{sT+1}, s47
        s_mov_b32 s{sT+2}, {hx(64 << 20)}
        s_mov_b32 s{sT+3}, 0x20000
        s_lshl_b32 s{S_T0}, s2, 3
        s_add_u32 s{S_T0}, s{S_T0}, s{S_W}
        s_lshl_b32 s{S_T0}, s{S_T0}, 8
        s_add_u32 s{S_T0}, s{S_T0}, {hx(32 << 20)}
        v_lshlrev_b32 v1, 2, v{self.vL}
        buffer_store_dword v252, v1, {srd(sT)}, s{S_T0} offen''')

    def make_srd(self, b, lo, hi, size):
        self.emit(f'''
        s_mov_b32 s{b}, s{lo}
        s_mov_b32 s{b+1}, s{hi}
        s_mov_b32 s{b+2}, {hx(size)}
        s_mov_b32 s{b+3}, 0x20000''')

    def poll(self, voff, soff_imm, vtmp, srdb=sWS, want=1, sl=1):
        l0 = self.lab('poll')
        l1 = self.lab('polled')
        self.emit(f'''
        s_mov_b32 s{S_SPIN}, 0
        s_mov_b32 s{S_T4}, {hx(soff_imm)}
        {l0}:
        buffer_load_dword v{vtmp}, v{voff}, {srd(srdb)}, s{S_T4} offen sc1 ;@skip
        s_waitcnt vmcnt(0)
        v_cmp_ne_u32 vcc, {want}, v{vtmp}
        s_cbranch_vccz {l1}
        s_add_u32 s{S_SPIN}, s{S_SPIN}, 1
        s_cmp_ge_u32 s{S_SPIN}, {hx(SPIN)}
        s_cbranch_scc1 {l1}
        s_sleep {sl}
        s_branch {l0}
        {l1}:''')

    def count_and_flag(self, cnt_idx, last, flag_soff_expr, vt0, vt1):
        l1 = self.lab('noflag')
        self.emit(f'''
        s_mov_b64 exec, 1
        v_mov_b32 v{vt0}, {hx(CNT + 4 * cnt_idx)}
        v_mov_b32 v{vt1}, 1
        ds_add_rtn_u32 v{vt1}, v{vt0}, v{vt1}
        s_waitcnt lgkmcnt(0)
        v_cmp_ne_u32 vcc, {last}, v{vt1}
        s_cbranch_vccnz {l1}''')
        self.emit(flag_soff_expr)
        self.emit(f'''
        v_mov_b32 v{vt1}, 1
        v_mov_b32 v{vt0}, 0
        buffer_store_dword v{vt1}, v{vt0}, {srd(sWS)}, s{S_T0} offen sc1 ;@skip
        {l1}:
        s_mov_b64 exec, -1''')

    Q0, Q1, K0, K1, V0, V1 = 0, 16, 32, 48, 64, 80
    F = [dict(x0=96, x1=100, wq=104, wk=108, wv=112), dict(x0=116, x1=120, wq=124, wk=128, wv=132)]
    GWF, GACC = 136, 140
    vWr, vWa, vXr, vXa, vDW, vDX, vGa = 142, 143, 144, 148, 149, 150, 151
    vL, vL16, vHf = 253, 254, 255
    vT = 155
    vDummy = 164
    vDb = 165

    def prologue(self):
        e = self.emit
        vL, vL16, vHf, vT = self.vL, self.vL16, self.vHf, self.vT
        t0, t1, t2 = vT, vT + 1, vT + 2
        e(f"""
        s_cmp_ge_u32 s2, 256
        s_cbranch_scc1 L_end""")
        self.tstamp5()
        e(f"""
        s_load_dwordx4 s[28:31], s[0:1], 0
        s_load_dwordx4 s[32:35], s[0:1], 16
        s_load_dwordx4 s[36:39], s[0:1], 40
        s_load_dwordx4 s[40:43], s[0:1], 56
        s_load_dwordx4 s[44:47], s[0:1], 72
        v_and_b32 v{vL}, 63, v0
        v_lshrrev_b32 v{vT}, 6, v0
        v_lshlrev_b32 v{vL16}, 4, v{vL}
        v_readfirstlane_b32 s{S_W}, v{vT}
        v_lshrrev_b32 v{vHf}, 5, v{vL}
        s_and_b32 s{S_T0}, s2, 7
        s_lshr_b32 s{S_T1}, s2, 3
        s_and_b32 s{S_T2}, s{S_T1}, 1
        s_lshl_b32 s{S_HP}, s{S_T0}, 1
        s_add_u32 s{S_HP}, s{S_HP}, s{S_T2}
        s_xor_b32 s{S_HP}, s{S_HP}, {self.cfg.get('hpx', 0)}
        s_lshr_b32 s{S_MB}, s{S_T1}, 1
        s_lshr_b32 s{S_BR}, s{S_W}, 2
        s_lshr_b32 s{S_C}, s{S_W}, 1
        s_and_b32 s{S_HD}, s{S_C}, 1
        s_and_b32 s{S_TT}, s{S_W}, 1
        s_lshl_b32 s{S_HEAD}, s{S_HP}, 1
        s_add_u32 s{S_HEAD}, s{S_HEAD}, s{S_HD}""")
        e(f"""
        s_lshl_b32 s{S_T0}, s{S_MB}, 7
        s_lshl_b32 s{S_T1}, s{S_W}, 3
        s_add_u32 s{S_T0}, s{S_T0}, s{S_T1}
        v_lshrrev_b32 v{t0}, 3, v{vL}
        v_add_u32 v{t0}, s{S_T0}, v{t0}
        v_lshlrev_b32 v{t0}, 11, v{t0}
        s_lshl_b32 s{S_T1}, s{S_TT}, 2
        v_lshrrev_b32 v{t1}, 4, v{vL}
        v_add_u32 v{t1}, s{S_T1}, v{t1}
        v_xor_b32 v{t1}, v{t1}, v{vL}
        v_and_b32 v{t1}, 7, v{t1}
        v_lshl_add_u32 v{self.vDX}, v{t1}, 4, v{t0}
        s_lshl_b32 s{S_DXL}, s{S_W}, 10
        s_add_u32 s{S_DXL}, s{S_DXL}, {hx(XS)}""")
        e(f"""
        s_and_b32 s{S_T0}, s{S_W}, 3
        s_lshl_b32 s{S_T1}, s{S_T0}, 3
        v_bfe_u32 v{t0}, v{vL}, 2, 3
        v_add_u32 v{t0}, s{S_T1}, v{t0}
        v_mul_u32_u24 v{t0}, 6144, v{t0}
        v_lshl_add_u32 v{t0}, v{vHf}, 6, v{t0}
        v_and_b32 v{t1}, 3, v{vL}
        v_lshl_add_u32 v{t0}, v{t1}, 4, v{t0}
        s_lshl_b32 s{S_T1}, s{S_HP}, 7
        v_add_u32 v{self.vDW}, s{S_T1}, v{t0}
        s_lshl_b32 s{S_T0}, s{S_T0}, 10
        s_mul_i32 s{S_T1}, s{S_BR}, 12288
        s_add_u32 s{S_DWL}, s{S_T0}, s{S_T1}
        s_add_u32 s{S_DWL}, s{S_DWL}, {hx(WSL)}
        v_mov_b32 v156, 0
        v_mov_b32 v157, 0
        v_mov_b32 v158, 0
        v_mov_b32 v159, 0
        s_waitcnt lgkmcnt(0)""")
        self.stamp(0)
        self.make_srd(sX, 28, 29, 4 << 20)
        e(f"""
        s_cmp_eq_u32 s{S_BR}, 1
        s_cselect_b32 s{sW}, s36, s30
        s_cselect_b32 s{sW+1}, s37, s31
        s_mov_b32 s{sW+2}, {hx(6 << 20)}
        s_mov_b32 s{sW+3}, 0x20000""")
        self.make_srd(sWS, 46, 47, (64 << 20) if self.cfg.get('dbgphi') else WS_SIZE)
        lc = self.lab('noclear')
        FS = self.FS
        if FS == 2:
            e(f"""
            s_or_b32 s{S_T0}, s2, s{S_W}
            s_cmp_lg_u32 s{S_T0}, 0
            s_cbranch_scc1 {lc}""")
            for i in range(8):
                e(f"""
                s_mov_b32 s{S_T1}, {hx(FLG_OFF + (i >> 1) * 32768 + (i & 1) * 1024)}
                buffer_store_dwordx4 v[156:159], v{vL16}, {srd(sWS)}, s{S_T1} offen sc1 ;@skip""")
        else:
            n = (64 << FS)
            per = max(1, (16 * 16 << FS) // n)
            e(f"""
            s_cmp_lg_u32 s2, 0
            s_cbranch_scc1 {lc}
            v_lshlrev_b32 v{t0}, {FS}, v{vL}
            s_lshr_b32 s{S_T0}, s{S_W}, 1
            s_lshl_b32 s{S_T0}, s{S_T0}, 15
            s_and_b32 s{S_T1}, s{S_W}, 1
            s_mul_i32 s{S_T1}, s{S_T1}, {2 * n}
            s_add_u32 s{S_T0}, s{S_T0}, s{S_T1}
            s_add_u32 s{S_T1}, s{S_T0}, {hx(FLG_OFF)}
            buffer_store_dword v156, v{t0}, {srd(sWS)}, s{S_T1} offen sc1 ;@skip
            s_add_u32 s{S_T1}, s{S_T1}, {n}
            buffer_store_dword v156, v{t0}, {srd(sWS)}, s{S_T1} offen sc1 ;@skip""")
            assert per == 4
        e(f'{lc}:')
        e('@vmclear')
        self.tstamp5()
        self.dma_x_const(0, 0)
        self.dma_w_const(0)
        self.dma_x_const(0, 1)
        self.tstamp5()
        e(f"""
        s_cmp_eq_u32 s{S_BR}, 1
        s_cselect_b32 s{sT}, s40, s32
        s_cselect_b32 s{sT+1}, s41, s33
        s_movk_i32 s{sT+2}, 2048
        s_cselect_b32 s{sT+2}, s{sT+2}, 0x10000
        s_mov_b32 s{sT+3}, 0x20000
        s_and_b32 s{S_T0}, s{S_W}, 3
        s_lshl_b32 s{S_T0}, s{S_T0}, 10
        s_lshl_b32 s{S_T1}, s{S_HP}, 12
        s_add_u32 s{S_T1}, s{S_T1}, s{S_T0}
        s_add_u32 s{S_T0}, s{S_T0}, {hx(WPHI)}
        s_lshl_b32 s{S_T2}, s{S_TT}, 10
        s_add_u32 s{S_T3}, s{S_T2}, {hx(GW)}
        s_cmp_eq_u32 s{S_BR}, 1
        s_cselect_b32 s{S_T1}, s{S_T2}, s{S_T1}
        s_cselect_b32 m0, s{S_T3}, s{S_T0}
        s_nop 0
        buffer_load_dwordx4 v{vL16}, {srd(sT)}, s{S_T1} offen lds ;@first""")
        PRO = self.cfg.get('pro', 0)
        if PRO:
            self.dma_w_const(1, 'w1')
            if PRO == 2:
                self.dma_w_const(2, 'w2')
                self.emit(self.dma_x_list(1, 0, 'w2')); self.emit(self.dma_x_list(1, 1, 'w2'))
        else:
            for sp in range(-3, 0):
                self.dma_w_const(sp + 4)
                u = (sp + 5) >> 1
                h = (sp + 1) & 1
                self.dma_x_const(u, h)
        self.tstamp5()
        if not PRO or self.cfg.get('pfpos', 0) == 0:
            self.prefetches()
        self.tstamp5()
        if self.cfg.get('mallpf', 1) == 2:
            lq = self.lab('nomp')
            e(f's_cmp_eq_u32 s{S_BR}, 0')
            e(f's_cbranch_scc0 {lq}')
            self.mall_prefetch(vT + 1)
            e(f'{lq}:')
        e(f"""
        v_lshlrev_b32 v{vT+1}, 2, v0
        v_add_u32 v{vT+1}, {hx(LOG)}, v{vT+1}
        ds_write_b32 v{vT+1}, v158
        s_mov_b32 s{S_L2E}, {hx(f2u(L2E))}
        s_mov_b32 s{S_QS}, {hx(f2u(QS))}
        s_mov_b32 s{S_4096}, 4096""")
        if self.cfg.get('pk', 0):
            e(f's_mov_b32 s{S_PB}, {hx(f2u(L2E))}')
            e(f's_mov_b32 s{S_PB+1}, {hx(f2u(L2E))}')
        e(f"""
        v_bfe_u32 v{t0}, v{vL}, 2, 2
        v_lshlrev_b32 v{t0}, 6, v{t0}
        v_bfe_u32 v{t1}, v{vL}, 4, 1
        v_lshl_add_u32 v{t0}, v{t1}, 5, v{t0}
        v_and_b32 v{t1}, 3, v{vL}
        v_lshl_add_u32 v{t0}, v{t1}, 3, v{t0}
        v_lshl_add_u32 v{self.vWr}, v{vHf}, 10, v{t0}
        s_mul_i32 s{S_T0}, s{S_BR}, 12288
        s_lshl_b32 s{S_T1}, s{S_HD}, 9
        s_add_u32 s{S_T0}, s{S_T0}, s{S_T1}
        s_add_u32 s{S_T0}, s{S_T0}, {hx(WSL)}
        v_add_u32 v{self.vWr}, s{S_T0}, v{self.vWr}""")
        e(f"""
        v_and_b32 v{t0}, 31, v{vL}
        s_lshl_b32 s{S_T0}, s{S_TT}, 6
        v_add_u32 v{t0}, s{S_T0}, v{t0}
        v_lshlrev_b32 v{t0}, 7, v{t0}
        v_bfe_u32 v{t1}, v{vL}, 1, 3
        v_xor_b32 v{t1}, v{t1}, v{vHf}""")
        for sg in range(4):
            e(f"""
            v_xor_b32 v{t2}, {2*sg}, v{t1}
            v_lshl_add_u32 v{self.vXr+sg}, v{t2}, 4, v{t0}""")
        e(f"""
        s_lshl_b32 s{S_T0}, s{S_C}, 5
        s_add_u32 s{S_T0}, s{S_T0}, {hx(GW)}
        v_lshlrev_b32 v{t0}, 4, v{vHf}
        v_add_u32 v{self.vGa}, s{S_T0}, v{t0}
        v_mov_b32 v{self.GACC}, 0
        v_mov_b32 v{self.GACC+1}, 0""")
        if not (self.cfg.get('zi', 0) and self.cfg.get('pro', 0)):
            for r in range(0, 96):
                e(f'v_mov_b32 v{r}, 0')
        self.make_srd(sOUT, 42, 43, 4 << 20)
        self.make_srd(sDBG, 44, 45, 256)
        e(f"""
        s_mov_b32 s{S_WC}, 0
        s_mov_b32 s{S_XC}, 0
        s_mov_b32 s{S_XN}, 16384
        s_mov_b32 s{S_XNN}, 32768
        s_mov_b32 s{S_WK}, {hx((5 if self.cfg.get('pro', 0) else 4) * 196608)}
        s_mov_b32 s{S_U}, 0
        v_mov_b32 v{self.vWa}, v{self.vWr}
        v_mov_b32 v{self.vXa}, v{self.vXr}""")
        self.tstamp5()
        e("""
        @wait first
        s_waitcnt lgkmcnt(0)""")
        self.tstamp5()
        e('s_barrier')
        self.stamp(1)
        lc = self.lab('nopub')
        e(f"""
        s_or_b32 s{S_T0}, s2, s{S_W}
        s_cmp_lg_u32 s{S_T0}, 0
        s_cbranch_scc1 {lc}
        v_mov_b32 v{t0}, 1
        buffer_store_dword v{t0}, off, {srd(sDBG)}, 0 sc1 ;@skip
        {lc}:""")
        F0 = self.F[0]
        e(self.frag_reads(F0, 0))
        e(f'ds_read_b128 {vr(self.GWF)}, v{self.vGa}')
        e('s_waitcnt lgkmcnt(0)')

    def prefetches(self):
        e = self.emit
        vT = self.vT
        if self.cfg.get('code_prefetch', True) and not self.cfg.get('cpos', 0):
            self.code_prefetch(sT)
        else:
            e(f's_mov_b32 s{sT+3}, 0x20000')
        if self.cfg.get('pf', 0):
            self.input_prefetch()

    def code_prefetch(self, b):
        e = self.emit
        n = self.cfg.get('cpf', 0)
        l = self.lab('nocpf')
        if n:
            e(f's_cmp_lt_u32 s2, {8 * n}')
            e(f's_cbranch_scc0 {l}')
        v = self.vT + 1 if b == sT else self.vPJ + 1
        e(f"""
        s_getpc_b64 s[{b}:{b+1}]
        L_pcbase:
        s_mov_b32 s{b+2}, L_codeend-L_pcbase
        s_mov_b32 s{b+3}, 0x20000
        {f'v_lshlrev_b32 v{v}, 7, v0' if b == sT else f'v_lshlrev_b32 v{v}, 7, v{self.vL}'}
        {'' if b == sT else f's_lshl_b32 s{S_T0}, s{S_W}, 13'}
        buffer_load_dword v{self.vDummy}, v{v}, {srd(b)}, {0 if b == sT else f's{S_T0}'} offen{' ;@skip' if n else ''}""")
        if n:
            e(f'{l}:')
            if b == sT:
                e(f's_mov_b32 s{sT+3}, 0x20000')

    def input_prefetch(self):
        e = self.emit
        t0 = self.vT
        mode = self.cfg.get('pf')
        if mode == 3:
            return self.timed_prefetch_setup()
        e(f'''
        s_lshl_b32 s{S_T0}, s2, 3
        s_add_u32 s{S_T0}, s{S_T0}, s{S_W}''')
        if mode == 2:
            e(f'''
            s_lshl_b32 s{S_T0}, s{S_W}, 8
            s_add_u32 s{S_T0}, s{S_T0}, s2''')
        e(f'''
        s_mov_b32 s{sT}, s28
        s_mov_b32 s{sT+1}, s29
        s_mov_b32 s{sT+2}, {hx(4 << 20)}
        s_cmp_ge_u32 s{S_T0}, 512
        s_cselect_b32 s{sT}, s30, s{sT}
        s_cselect_b32 s{sT+1}, s31, s{sT+1}
        s_cselect_b32 s{sT+2}, {hx(6 << 20)}, s{sT+2}
        s_cselect_b32 s{S_T1}, 512, 0
        s_cmp_ge_u32 s{S_T0}, 1280
        s_cselect_b32 s{sT}, s36, s{sT}
        s_cselect_b32 s{sT+1}, s37, s{sT+1}
        s_cselect_b32 s{S_T1}, 1280, s{S_T1}
        s_sub_u32 s{S_T0}, s{S_T0}, s{S_T1}
        s_lshl_b32 s{S_T0}, s{S_T0}, 13
        v_lshlrev_b32 v{t0}, 7, v{self.vL}
        buffer_load_dword v{self.vDummy}, v{t0}, {srd(sT)}, s{S_T0} offen''')

    vPJ = 166

    def timed_prefetch_setup(self):
        e = self.emit
        cfg = self.cfg
        lead, u0, xu = cfg.get('lead', 4), cfg.get('pfu0', 2), cfg.get('pfx', -1)
        l = self.lab('pfj')
        e(f'''
        s_lshl_b32 s{S_T0}, s{S_W}, 8
        s_add_u32 s{S_T0}, s{S_T0}, s2
        s_bitcmp1_b32 s{S_T0}, 0
        s_cselect_b32 s{sT}, s36, s30
        s_cselect_b32 s{sT+1}, s37, s31
        s_mov_b32 s{sT+2}, {hx(6 << 20)}
        s_lshr_b32 s{S_T1}, s{S_T0}, 1
        s_lshl_b32 s{S_JO}, s{S_T1}, 13
        s_mul_i32 s{S_T1}, s{S_T1}, 1366
        s_lshr_b32 s{S_T1}, s{S_T1}, 16
        s_sub_u32 s{S_T2}, s{S_T0}, 1536
        s_lshl_b32 s{S_T2}, s{S_T2}, 13
        s_cmp_ge_u32 s{S_T0}, 1536
        s_cselect_b32 s{sT}, s28, s{sT}
        s_cselect_b32 s{sT+1}, s29, s{sT+1}
        s_cselect_b32 s{sT+2}, {hx(4 << 20)}, s{sT+2}
        s_cselect_b32 s{S_JO}, s{S_T2}, s{S_JO}
        s_cselect_b32 s{S_T1}, {lead + xu if xu >= 0 or xu < -1 else 200}, s{S_T1}
        s_cmp_lt_u32 s{S_T1}, {u0}
        s_cselect_b32 s{S_T1}, 200, s{S_T1}
        s_sub_u32 s{S_JU}, s{S_T1}, {lead}
        v_lshlrev_b32 v{self.vPJ}, 7, v{self.vL}
        s_cmp_lt_i32 s{S_JU}, 0
        s_cbranch_scc0 {l}
        buffer_load_dword v{self.vDummy}, v{self.vPJ}, {srd(sT)}, s{S_JO} offen ;@skip
        {f's_mov_b32 s{S_JU}, 200' if cfg.get('aw', 0) else ''}
        {l}:''')

    def timed_prefetch(self):
        if self.cfg.get('pf') != 3:
            return []
        l = self.lab('pfj')
        return [f's_cmp_eq_u32 s{S_JU}, s{S_U}', f's_cbranch_scc0 {l}',
                f'buffer_load_dword v{self.vDummy}, v{self.vPJ}, {srd(sT)}, s{S_JO} offen ;@skip', f'{l}:']

    def touch_kv(self):
        u = self.cfg.get('tkv', 0)
        if not u:
            return []
        l = self.lab('tkv')
        return [f's_lshl_b32 s{S_T3}, s{S_BR}, 8', f's_add_u32 s{S_T3}, s{S_T3}, s{S_U}',
                f's_cmp_eq_u32 s{S_T3}, {256 + u}', f's_cbranch_scc0 {l}',
                f's_lshl_b32 s{S_T3}, s{S_HEAD}, 18', f's_lshl_b32 s{S_T4}, s{S_MB}, 14',
                f's_add_u32 s{S_T3}, s{S_T3}, s{S_T4}', f's_lshl_b32 s{S_T4}, s{S_TT}, 13',
                f's_add_u32 s{S_T3}, s{S_T3}, s{S_T4}'] + \
               (['s_mov_b64 exec, 1'] if self.cfg.get('tkv1') else []) + \
               [f'buffer_store_dword v{self.vPJ}, v{self.vPJ}, {srd(sWS)}, s{S_T3} offen sc1 ;@skip'] + \
               (['s_mov_b64 exec, -1'] if self.cfg.get('tkv1') else []) + [f'{l}:']

    def dma_x_list(self, u, h, tag='anon'):
        return [f's_add_u32 m0, s{S_DXL}, {hx((u % 3) * 16384 + h * 8192)}',
                f's_mov_b32 s{S_T0}, {hx(h * 131072 + u * 128)}',
                f'buffer_load_dwordx4 v{self.vDX}, {srd(sX)}, s{S_T0} offen lds ;@{tag}']

    def dma_w_list(self, st, tag='anon'):
        return [[f's_add_u32 m0, s{S_DWL}, {hx((st % 4) * 24576 + i * 4096)}',
                 f's_mov_b32 s{S_T0}, {hx(st * 196608 + i * 2048)}',
                 f'buffer_load_dwordx4 v{self.vDW}, {srd(sW)}, s{S_T0} offen lds ;@{tag}'] for i in range(3)]

    def dma_x_const(self, u, h):
        self.emit(self.dma_x_list(u, h))

    def dma_w_const(self, st, tag='anon'):
        for x in self.dma_w_list(st, tag):
            self.emit(x)

    def frag_reads(self, F, step):
        o = step * 2048
        L = [f'ds_read_b128 {vr(F["x0"])}, v{self.vXa}',
             f'ds_read_b64_tr_b16 {vr(F["wq"], 2)}, v{self.vWa} offset:{o}',
             f'ds_read_b64_tr_b16 {vr(F["wq"] + 2, 2)}, v{self.vWa} offset:{o + 256}',
             f'ds_read_b128 {vr(F["x1"])}, v{self.vXa} offset:4096',
             f'ds_read_b64_tr_b16 {vr(F["wk"], 2)}, v{self.vWa} offset:{o + 4096}',
             f'ds_read_b64_tr_b16 {vr(F["wk"] + 2, 2)}, v{self.vWa} offset:{o + 4096 + 256}',
             f'ds_read_b64_tr_b16 {vr(F["wv"], 2)}, v{self.vWa} offset:{o + 8192}',
             f'ds_read_b64_tr_b16 {vr(F["wv"] + 2, 2)}, v{self.vWa} offset:{o + 8192 + 256}']
        return L

    def gemm_mfmas(self, F, z=None):
        if 'mf16' in self.cfg.get('exp', ''):
            pairs = [(self.Q0, F['wq'], F['x0']), (self.Q1, F['wq'], F['x1']), (self.K0, F['wk'], F['x0']),
                     (self.K1, F['wk'], F['x1']), (self.V0, F['x0'], F['wv']), (self.V1, F['x1'], F['wv'])]
            L = []
            for i, (d, A, B) in enumerate(pairs):
                d2, A2, B2 = pairs[(i + 3) % 6]
                o = 4 * self.par16
                L.append(mf16(d + o, A, B) + '\n' + mf16(d2 + 8 + o, A2, B2))
            self.par16 ^= 1
            return L
        return [mf32(self.Q0, F['wq'], F['x0'], z), mf32(self.Q1, F['wq'], F['x1'], z),
                mf32(self.K0, F['wk'], F['x0'], z), mf32(self.K1, F['wk'], F['x1'], z),
                mf32(self.V0, F['x0'], F['wv'], z), mf32(self.V1, F['x1'], F['wv'], z)]

    def gate_dots(self, F, sigma):
        l = self.lab('nogate')
        L = [f's_cmp_eq_u32 s{S_C}, {sigma}', f's_cbranch_scc0 {l}']
        for i in range(4):
            L.append(f'v_dot2_f32_bf16 v{self.GACC}, v{F["x0"]+i}, v{self.GWF+i}, v{self.GACC}')
            L.append(f'v_dot2_f32_bf16 v{self.GACC+1}, v{F["x1"]+i}, v{self.GWF+i}, v{self.GACC+1}')
        L.append(f'{l}:')
        return L

    def gemm_step(self, sigma, wdma=True, xdma=True, wait=8, last=False, extra=(), dmas=None, z=None, aw=False):
        e = self.emit
        cur = self.F[sigma & 1]
        nxt = self.F[(sigma + 1) & 1]
        mf = self.gemm_mfmas(cur, z)
        second = sigma & 1
        pre = []
        if second and not last:
            pre += [f's_add_u32 s{S_T1}, s{S_WC}, 24576',
                    f's_cmp_eq_u32 s{S_T1}, 98304',
                    f's_cselect_b32 s{S_T1}, 0, s{S_T1}',
                    f'v_add_u32 v{self.vWa}, s{S_T1}, v{self.vWr}']
        xs = S_XN if sigma == 3 else S_XC
        if not last:
            pre += [f'v_add_u32 v{self.vXa}, s{xs}, v{self.vXr + ((sigma + 1) & 3)}']
        reads = self.frag_reads(nxt, 0 if second else 1) if not last else []
        dw, dx = [], []
        if second and wdma:
            dw += [f's_add_u32 s{S_T2}, s{S_DWL}, s{S_WC}']
            for i in range(3):
                dw += [f's_add_u32 m0, s{S_T2}, {i * 4096}',
                       f's_add_u32 s{S_T0}, s{S_WK}, {i * 2048}',
                       f'buffer_load_dwordx4 v{self.vDW}, {srd(sW)}, s{S_T0} offen lds']
        if second and xdma:
            if sigma == 1:
                dx += [f's_add_u32 s{S_T2}, s{S_DXL}, s{S_XNN}',
                       f's_add_u32 m0, s{S_T2}, 8192',
                       f's_lshl_b32 s{S_T0}, s{S_U}, 7',
                       f's_add_u32 s{S_T0}, s{S_T0}, {hx(131072 + 256)}']
            else:
                dx += [f's_add_u32 m0, s{S_DXL}, s{S_XC}',
                       f's_lshl_b32 s{S_T0}, s{S_U}, 7',
                       f's_add_u32 s{S_T0}, s{S_T0}, 384']
            dx += [f'buffer_load_dwordx4 v{self.vDX}, {srd(sX)}, s{S_T0} offen lds']
        post = []
        if second and not last:
            if wdma:
                post.append(f's_add_u32 s{S_WK}, s{S_WK}, {hx(196608)}')
            post.append(f's_mov_b32 s{S_WC}, s{S_T1}')
        if self.cfg.get('mf0', 0):
            e(mf[0]); e(pre); e(reads[0:3])
        else:
            e(pre)
            e(mf[0]); e(reads[0:3])
        e(mf[1]); e(reads[3:6])
        e(mf[2]); e(reads[6:8])
        self.emit(self.gate_dots(cur, sigma))
        if sigma == 3 and not last:
            e(f'v_add_u32 v{self.vGa}, 128, v{self.vGa}')
            e(f'ds_read_b128 {vr(self.GWF)}, v{self.vGa}')
        if dmas is not None:
            n = (len(dmas) + 1) // 2
            e(mf[3])
            for x in dmas[:n]:
                e(x)
            e(mf[4])
            for x in dmas[n:]:
                e(x)
            e(post + list(extra))
            e(mf[5])
            if not second:
                e(f'@wait {wait}')
            e('s_waitcnt lgkmcnt(0)')
            if not second:
                e('s_barrier')
        elif second:
            e(mf[3]); e(dw[:7])
            e(mf[4]); e(dw[7:] + dx + post + list(extra))
            e(mf[5])
            if not last:
                e('s_waitcnt lgkmcnt(0)')
        else:
            e(mf[3]); e(mf[4]); e(mf[5])
            if wait is None:
                e('s_waitcnt lgkmcnt(0)')
            elif aw:
                l = self.lab('aw')
                e([f's_sub_u32 s{S_T3}, s{S_U}, s{S_JU}',
                   f's_waitcnt vmcnt({wait + 1}) lgkmcnt(0)',
                   f's_cmp_eq_u32 s{S_T3}, 1' if sigma == 0 else f's_cmp_lt_u32 s{S_T3}, 2',
                   f's_cbranch_scc1 {l}',
                   f's_waitcnt vmcnt({wait})',
                   f'{l}:',
                   's_barrier'])
            else:
                e(f's_waitcnt vmcnt({wait}) lgkmcnt(0)')
                e('s_barrier')

    def gemm_rotate(self):
        if self.cfg.get('tst6'):
            self.emit(f'''
            s_memrealtime s[92:93]
            s_add_u32 m0, s{S_U}, 32
            s_waitcnt lgkmcnt(0)
            v_writelane_b32 v252, s92, m0''')
        self.emit(f'''
        s_mov_b32 s{S_T0}, s{S_XC}
        s_mov_b32 s{S_XC}, s{S_XN}
        s_mov_b32 s{S_XN}, s{S_XNN}
        s_mov_b32 s{S_XNN}, s{S_T0}
        s_add_u32 s{S_U}, s{S_U}, 1''')

    def gemm_loop(self):
        e = self.emit
        if self.cfg.get('pro', 0):
            pp = self.cfg.get('pfpos', 0)
            z = 'z' if self.cfg.get('zi', 0) else None
            cp = self.cfg.get('cpos', 0)
            if self.cfg['pro'] == 2:
                self.gemm_step(0, wait='w1', dmas=self.dma_w_list(3) + [self.dma_x_list(2, 0)], z=z)
                self.gemm_step(1, wdma=False, xdma=False, dmas=self.dma_w_list(4) + [self.dma_x_list(2, 1)], extra=self.timed_prefetch())
                if cp == 1:
                    self.code_prefetch(92)
                self.gemm_step(2, wait='w2', dmas=[])
            else:
                aw = self.cfg.get('aw', 0)
                assert not aw or (self.cfg.get('pfs', 1) == 1 and self.cfg.get('lead', 4) >= 3 and not cp and not pp)
                self.gemm_step(0, wait='w1', dmas=self.dma_w_list(2, 'w2') + [self.dma_x_list(1, 0, 'w2'), self.dma_x_list(1, 1, 'w2')], z=z)
                self.gemm_step(1, wdma=False, xdma=False, dmas=self.dma_w_list(3) + [self.dma_x_list(2, 0)], extra=[] if aw else self.timed_prefetch())
                if pp == 1:
                    self.prefetches()
                if cp == 1:
                    self.code_prefetch(92)
                self.gemm_step(2, wait='w2', dmas=self.dma_w_list(4) + [self.dma_x_list(2, 1)], extra=self.timed_prefetch() if aw else [])
            if pp == 2:
                self.prefetches()
            self.gemm_step(3)
            if pp == 3:
                self.prefetches()
            if cp == 3:
                self.code_prefetch(92)
            self.gemm_rotate()
            e('@vmclear')
        e('L_gemm:')
        for sg in range(4):
            self.gemm_step(sg, extra=(self.timed_prefetch() if sg == self.cfg.get('pfs', 1) else []) + (self.touch_kv() if sg == 3 else []),
                           aw=bool(self.cfg.get('aw', 0)))
        self.gemm_rotate()
        e(f'''
        s_cmp_lt_u32 s{S_U}, 13
        s_cbranch_scc1 L_gemm''')
        if self.cfg.get('inv') == 2:
            e('buffer_inv sc1 ;@skip')
        self.gemm_step(0); self.gemm_step(1, extra=self.timed_prefetch() if self.cfg.get('lead', 4) < 3 else ())
        self.gemm_step(2); self.gemm_step(3, xdma=False)
        self.gemm_rotate()
        self.gemm_step(0, wait=7)
        l0, l1 = self.lab('dbgw'), self.lab('dbgx')
        self.gemm_step(1, wdma=False, xdma=False,
                       extra=[f's_cmp_eq_u32 s{S_W}, 4', f's_cbranch_scc1 {l0}',
                              f'buffer_load_dword v{self.vDb}, off, {srd(sX)}, 0',
                              f's_branch {l1}', f'{l0}:',
                              f'buffer_load_dword v{self.vDb}, off, {srd(sDBG)}, 0 sc1', f'{l1}:'])
        self.gemm_step(2, wait=4)
        self.gemm_step(3, wdma=False, xdma=False)
        self.gemm_rotate()
        self.gemm_step(0, wait=1)
        self.gemm_step(1, wdma=False, xdma=False)
        self.gemm_step(2, wait=None)
        self.gemm_step(3, wdma=False, xdma=False, last=True)
        t0 = self.vT
        if self.cfg.get('inv') == 1:
            e('buffer_inv sc1 ;@skip')
        self.stamp(2)
        e(f'''
        v_permlane32_swap_b32 v{self.GACC}, v{self.GACC+1}
        s_lshl_b32 s{S_T0}, s{S_TT}, 8
        s_lshl_b32 s{S_T1}, s{S_C}, 9
        s_add_u32 s{S_T0}, s{S_T0}, s{S_T1}
        s_add_u32 s{S_T0}, s{S_T0}, {hx(LOGP)}
        v_lshl_add_u32 v{t0}, v{self.vL}, 2, s{S_T0}
        v_add_f32 v{self.GACC}, v{self.GACC}, v{self.GACC+1}
        ds_write_b32 v{t0}, v{self.GACC}''')
        self.stamp(3)

    Sa, Sb, Ca, Cb, Oa, Ob = 0, 16, 32, 48, 64, 80
    QF = 96
    Pa, Pb = 112, 120
    la, lb = 128, 132
    ONES = 136
    KVB = [140, 156, 172, 188]
    vKV = 204
    vMa, vMb = 205, 206
    vSI = 205
    vA = 207

    def epi_B(self):
        e = self.emit
        t0 = self.vT
        e('L_epiB:')
        if self.cfg.get('bprio', 0):
            e(f's_setprio {self.cfg.get("bprio", 0)}')
        e(f'''
        s_lshl_b32 s{S_T0}, s{S_HEAD}, 18
        s_lshl_b32 s{S_T1}, s{S_MB}, 14
        s_add_u32 s{S_T0}, s{S_T0}, s{S_T1}
        s_lshl_b32 s{S_T1}, s{S_TT}, 13
        s_add_u32 s{S_T0}, s{S_T0}, s{S_T1}
        v_add_u32 v{t0}, s{S_T0}, v{self.vL16}''')
        kf, vf = 112, 128
        for tau, acc in ((0, self.K0), (1, self.K1)):
            for i in range(8):
                e(cvt(kf + tau * 8 + i, acc + 2 * i, acc + 2 * i + 1))
            so = '0' if tau == 0 else f's{S_4096}'
            e(f'buffer_store_dwordx4 {vr(kf + tau * 8)}, v{t0}, {srd(sWS)}, {so} offen sc1')
            e(f'buffer_store_dwordx4 {vr(kf + tau * 8 + 4)}, v{t0}, {srd(sWS)}, {so} offen offset:1024 sc1')
        for tau, acc in ((0, self.V0), (1, self.V1)):
            for i in range(8):
                e(cvt(vf + tau * 8 + i, acc + 2 * i, acc + 2 * i + 1))
            so = '0' if tau == 0 else f's{S_4096}'
            e(f'buffer_store_dwordx4 {vr(vf + tau * 8)}, v{t0}, {srd(sWS)}, {so} offen offset:2048 sc1')
            e(f'buffer_store_dwordx4 {vr(vf + tau * 8 + 4)}, v{t0}, {srd(sWS)}, {so} offen offset:3072 sc1')
        e(f'''
        s_lshl_b32 s{S_T0}, s{S_HD}, 1
        s_add_u32 s{S_T0}, s{S_T0}, s{S_TT}
        s_lshl_b32 s{S_T0}, s{S_T0}, 12
        s_add_u32 s{S_T0}, s{S_T0}, {QX}
        v_add_u32 v{t0+1}, s{S_T0}, v{self.vL16}''')
        for tau, acc in ((1, self.Q1), (0, self.Q0)):
            dst = self.QF + (0 if tau == 1 else 8)
            for r in range(16):
                e(f'v_mul_f32 v{acc+r}, s{S_QS}, v{acc+r}')
            for i in range(8):
                e(cvt(dst + i, acc + 2 * i, acc + 2 * i + 1))
            e(f'ds_write_b128 v{t0+1}, {vr(dst)} offset:{tau * 2048}')
            e(f'ds_write_b128 v{t0+1}, {vr(dst + 4)} offset:{tau * 2048 + 1024}')
        NB = self.cfg.get('nobar', 0)
        if NB:
            e(f'''
            s_and_b32 s{S_T0}, s{S_W}, 3
            s_lshl_b32 s{S_T0}, s{S_T0}, 3
            s_add_u32 s{S_T0}, s{S_T0}, {FL + 4}
            v_mov_b32 v{t0+2}, s{S_T0}
            v_mov_b32 v{t0+3}, 1
            s_waitcnt lgkmcnt(0)
            ds_write_b32 v{t0+2}, v{t0+3}''')
        QM = self.cfg.get('qm', 0)
        wf, qa, E, P1, P2, tt = 144, 112, 186, 202, 210, 160
        if QM:
            self.wphi_reads(wf, t0)
            self.qa_addr(t0 + 2)
            self.lds_spin(t0 + 3, t0)
            for q in range(4):
                e(f'ds_read_b128 {vr(qa + 4 * q)}, v{t0+2} offset:{q * 1024}')
            e(f's_mul_i32 s{S_T2}, s{S_TT}, 0x80008000')
            for i in range(8):
                e(f'v_xor_b32 v{wf+i}, s{S_T2}, v{wf+i}')
            self.phi_addr(t0 + 2)
            e('s_waitcnt lgkmcnt(0)')
            for acc, fr in ((self.Q0, qa), (self.Q1, qa + 8)):
                e(mf32(acc, wf, fr, 'z'))
                e(mf32(acc, wf + 4, fr + 4))
            self.q_block(0, self.Q0, E, P1, P2, tt, t0 + 2)
            t0 += 9
        if self.cfg.get('bprio', 0) and not self.cfg.get('bhold', 0):
            e('s_setprio 0')
        e('s_waitcnt vmcnt(0)')
        l = self.lab('dbgok')
        e(f'''
        s_cmp_lg_u32 s{S_W}, 4
        s_cbranch_scc1 {l}
        v_cmp_ne_u32 vcc, 1, v{self.vDb}
        s_cbranch_vccz {l}
        v_mov_b32 v{t0+2}, 0''')
        self.poll(t0 + 2, 0, self.vDb, srdb=sDBG)
        e(f'{l}:')
        self.count_and_flag(0, 3, f'''
        s_lshl_b32 s{S_T0}, s{S_HP}, {self.FG}
        s_lshl_b32 s{S_T1}, s{S_MB}, {self.FS}
        s_add_u32 s{S_T0}, s{S_T0}, s{S_T1}
        s_add_u32 s{S_T0}, s{S_T0}, {hx(F1_OFF)}''', t0 + 2, t0 + 3)
        if self.cfg.get('wopf', 3) == 2:
            self.wo_prefetch(t0 + 2)
        if QM:
            self.q_block(1, self.Q1, E, P1, P2, tt, self.vT + 2)
        e('s_waitcnt lgkmcnt(0)')
        if not NB:
            e('s_barrier')
        e('s_branch L_attn')

    def wo_prefetch(self, t):
        e = self.emit
        e(f'''
        s_and_b32 s{S_T0}, s2, 7
        s_lshr_b32 s{S_T1}, s2, 3
        s_lshr_b32 s{S_T2}, s{S_T0}, 2
        s_lshl_b32 s{S_T2}, s{S_T2}, 3
        s_lshr_b32 s{S_T3}, s{S_T1}, 2
        s_add_u32 s{S_T2}, s{S_T2}, s{S_T3}
        s_lshl_b32 s{S_T2}, s{S_T2}, 7
        s_and_b32 s{S_T1}, s{S_T1}, 3
        s_lshl_b32 s{S_T1}, s{S_T1}, 2
        s_and_b32 s{S_T0}, s{S_W}, 3
        s_add_u32 s{S_T1}, s{S_T1}, s{S_T0}
        s_lshl_b32 s{S_T1}, s{S_T1}, 17
        s_add_u32 s{S_T2}, s{S_T2}, s{S_T1}
        v_lshlrev_b32 v{t}, 11, v{self.vL}
        s_mov_b32 s{sT}, s34
        s_mov_b32 s{sT+1}, s35
        s_mov_b32 s{sT+2}, {hx(2 << 20)}
        s_mov_b32 s{sT+3}, 0x20000
        buffer_load_dword v{self.vDummy}, v{t}, {srd(sT)}, s{S_T2} offen ;@skip
        s_mov_b32 s{sT}, s38
        s_mov_b32 s{sT+1}, s39
        buffer_load_dword v{self.vDummy}, v{t}, {srd(sT)}, s{S_T2} offen ;@skip''')

    def mall_prefetch(self, t):
        e = self.emit
        e(f'''
        s_lshl_b32 s{S_T0}, s2, 2
        s_and_b32 s{S_T1}, s{S_W}, 3
        s_add_u32 s{S_T0}, s{S_T0}, s{S_T1}
        s_cmp_ge_u32 s{S_T0}, 512
        s_cselect_b32 s{sT}, s38, s34
        s_cselect_b32 s{sT+1}, s39, s35
        s_mov_b32 s{sT+2}, {hx(2 << 20)}
        s_mov_b32 s{sT+3}, 0x20000
        s_and_b32 s{S_T0}, s{S_T0}, 511
        s_lshl_b32 s{S_T0}, s{S_T0}, 12
        v_lshlrev_b32 v{t}, 7, v{self.vL}
        s_mov_b32 exec_hi, 0
        buffer_load_dword v{self.vDummy}, v{t}, {srd(sT)}, s{S_T0} offen ;@skip
        s_mov_b64 exec, -1''')

    def spf_base(self, lo, hi):
        return [f's_and_b32 s{S_T0}, s2, 7',
                f's_lshr_b32 s{S_T1}, s2, 3',
                f's_lshr_b32 s{S_T2}, s{S_T0}, 2',
                f's_lshl_b32 s{S_T2}, s{S_T2}, 3',
                f's_lshr_b32 s{S_T3}, s{S_T1}, 2',
                f's_add_u32 s{S_T2}, s{S_T2}, s{S_T3}',
                f's_lshl_b32 s{S_T2}, s{S_T2}, 7',
                f's_and_b32 s{S_T1}, s{S_T1}, 3',
                f's_lshl_b32 s{S_T1}, s{S_T1}, 3',
                f's_add_u32 s{S_T1}, s{S_T1}, s{S_W}',
                f's_lshl_b32 s{S_T1}, s{S_T1}, 16',
                f's_add_u32 s{S_T2}, s{S_T2}, s{S_T1}',
                f's_add_u32 s{S_PB}, s{lo}, s{S_T2}',
                f's_addc_u32 s{S_PB+1}, s{hi}, 0']

    def spf_loads(self, r0, n):
        L = []
        for r in range(r0, min(r0 + n, 32)):
            x = [f's_load_dword s{S_PD}, s[{S_PB}:{S_PB+1}], {hx(r * 2048)}']
            if self.cfg.get('spf2', 0):
                x.append(f's_load_dword s{S_PD+1}, s[{S_PB}:{S_PB+1}], {hx(r * 2048 + 64)}')
            L.append(x)
        return L

    def make_ident(self, I0, t):
        e = self.emit
        e(f'''
        v_and_b32 v{t}, 31, v{self.vL}
        v_lshlrev_b32 v{t+1}, 2, v{self.vHf}
        v_sub_u32 v{t}, v{t}, v{t+1}
        v_and_b32 v{t+1}, 1, v{t}
        v_lshlrev_b32 v{t+1}, 4, v{t+1}
        v_mov_b32 v{t+2}, 0x3f80
        v_lshlrev_b32 v{t+1}, v{t+1}, v{t+2}
        v_ashrrev_i32 v{t}, 1, v{t}''')
        for s in range(2):
            for i in range(4):
                key = 8 * s + (i & 1) + 4 * (i >> 1)
                e(f'v_cmp_eq_u32 vcc, {key}, v{t}')
                e(f'v_cndmask_b32 v{I0 + 4 * s + i}, 0, v{t+1}, vcc')

    def make_ones16(self, d, t):
        e = self.emit
        e(f'''
        v_lshrrev_b32 v{t}, 2, v{self.vL}
        v_lshrrev_b32 v{t+1}, 4, v{self.vL}
        v_xor_b32 v{t}, v{t}, v{t+1}
        v_and_b32 v{t}, 1, v{t}
        v_mov_b32 v{t+1}, 0x3f803f80
        v_cmp_eq_u32 vcc, 0, v{t}''')
        for i in range(4):
            e(f'v_cndmask_b32 v{d+i}, 0, v{t+1}, vcc')

    def make_sparse_ones(self, d, t):
        e = self.emit
        e(f'''
        v_and_b32 v{t}, 4, v{self.vL}
        v_mov_b32 v{t+1}, 0x3f803f80
        v_cmp_eq_u32 vcc, 0, v{t}''')
        for i in range(2):
            e(f'v_cndmask_b32 v{d+i}, 0, v{t+1}, vcc')
            e(f'v_sub_u32 v{d+2+i}, v{t+1}, v{d+i}')

    def sparse_index(self):
        return [f'v_and_b32 v{self.vSI}, 1, v{self.vL}',
                f'v_mul_u32_u24 v{self.vSI}, 0xaaaa, v{self.vSI}',
                f'v_add_u32 v{self.vSI}, 0x4444, v{self.vSI}']

    def pv(self, O, l, V, P, z=None):
        if self.cfg.get('smf', 1):
            return [mf32(O, V, P, z), mf32(O, V + 4, P + 4), smf(l, self.ONES, P, self.vSI)]
        return [mf32(O, V, P, z), mf16(l, self.ONES, P, z), mf32(O, V + 4, P + 4), mf16(l, self.ONES, P + 4)]

    def sum_l(self):
        if self.cfg.get('smf', 1):
            self.emit([f'v_add_f32 v{l}, v{l}, v{l+1}' for l in (self.la, self.lb)])

    def dual_softmax(self, X, E, P1, P2, t, hooks={}):
        e = self.emit
        mx, nm, u, w = t, t + 1, t + 2, t + 3
        e(f'v_max3_f32 v{mx}, v{X}, v{X+1}, v{X+2}')
        e(f'v_max3_f32 v{nm}, -v{X}, -v{X+1}, -v{X+2}')
        for i in range(3, 15, 2):
            e(f'v_max3_f32 v{mx}, v{mx}, v{X+i}, v{X+i+1}')
            e(f'v_max3_f32 v{nm}, v{nm}, -v{X+i}, -v{X+i+1}')
        e(f'v_max_f32 v{mx}, v{mx}, v{X+15}')
        e(f'v_max_f32 v{nm}, v{nm}, -v{X+15}'.replace('v_max_f32', 'v_max_f32_e64'))
        PK = self.cfg.get('pk', 0)
        hook = lambda k: hooks[k]() if k in hooks else None
        e(f'''
        v_permlane32_swap_b32 v{mx}, v{nm}
        v_max_f32 v{mx}, v{mx}, v{nm}
        v_mov_b32 v{nm}, v{mx}
        v_permlane32_swap_b32 v{mx}, v{nm}''')
        hook(0)
        if PK:
            assert t % 2 == 0
            sp = f's[{S_PB}:{S_PB+1}]'
            px = self.cfg.get('pkx', '')
            if '1' in px:
                e('s_nop 1')
            e(f'v_pk_mul_f32 {vr(mx, 2)}, {vr(mx, 2)}, {sp}')
            if '4' in px:
                e('s_nop 1')
            for r in range(0, 16, 2):
                e(f'v_pk_fma_f32 {vr(E+r, 2)}, {vr(X+r, 2)}, {sp}, {vr(mx, 2)} op_sel_hi:[1,1,0] neg_lo:[0,0,1] neg_hi:[0,0,1]')
                e(f'v_pk_fma_f32 {vr(X+r, 2)}, {vr(X+r, 2)}, {sp}, {vr(mx, 2)} op_sel:[0,0,1] op_sel_hi:[1,1,1] neg_lo:[0,1,1] neg_hi:[0,1,1]')
        else:
            e(f'''
            v_mul_f32 v{mx}, s{S_L2E}, v{mx}
            v_mul_f32 v{nm}, s{S_L2E}, v{nm}''')
            for r in range(16):
                e(f'v_fma_f32 v{E+r}, v{X+r}, s{S_L2E}, -v{mx}')
                e(f'v_fma_f32 v{X+r}, v{X+r}, -s{S_L2E}, -v{nm}')
        hook(1)
        for r in range(16):
            e(f'v_exp_f32 v{E+r}, v{E+r}')
            e(f'v_exp_f32 v{X+r}, v{X+r}')
            if r == 7:
                hook(2)
        hook(3)
        if PK:
            e(f'v_pk_add_f32 {vr(P1, 2)}, {vr(E, 2)}, {vr(E+2, 2)}')
            e(f'v_pk_add_f32 {vr(P2, 2)}, {vr(X, 2)}, {vr(X+2, 2)}')
            for r in range(4, 16, 2):
                e(f'v_pk_add_f32 {vr(P1, 2)}, {vr(P1, 2)}, {vr(E+r, 2)}')
                e(f'v_pk_add_f32 {vr(P2, 2)}, {vr(P2, 2)}, {vr(X+r, 2)}')
            if '2' in px:
                e('s_nop 1')
            e(f'v_add_f32 v{u}, v{P1}, v{P1+1}')
            e(f'v_add_f32 v{w}, v{P2}, v{P2+1}')
        else:
            e(f'v_add_f32 v{u}, v{E}, v{E+1}')
            e(f'v_add_f32 v{w}, v{X}, v{X+1}')
            for r in range(2, 16):
                e(f'v_add_f32 v{u}, v{u}, v{E+r}')
                e(f'v_add_f32 v{w}, v{w}, v{X+r}')
        e(f'''
        v_permlane32_swap_b32 v{u}, v{w}
        v_add_f32 v{u}, v{u}, v{w}
        v_mov_b32 v{w}, v{u}
        v_permlane32_swap_b32 v{u}, v{w}
        v_rcp_f32 v{u}, v{u}
        v_rcp_f32 v{w}, v{w}''')
        hook(4)
        if PK:
            if '3' in px:
                e('s_nop 2')
            for r in range(0, 16, 2):
                e(f'v_pk_mul_f32 {vr(E+r, 2)}, {vr(E+r, 2)}, {vr(u, 2)} op_sel_hi:[1,0]')
                e(f'v_pk_mul_f32 {vr(X+r, 2)}, {vr(X+r, 2)}, {vr(u, 2)} op_sel:[0,1] op_sel_hi:[1,1]')
        else:
            for r in range(16):
                e(f'v_mul_f32 v{E+r}, v{E+r}, v{u}')
                e(f'v_mul_f32 v{X+r}, v{X+r}, v{w}')
        for i in range(8):
            e(cvt(P1 + i, E + 2 * i, E + 2 * i + 1))
            e(cvt(P2 + i, X + 2 * i, X + 2 * i + 1))

    def wphi_reads(self, wf, t0):
        e = self.emit
        e(f'''
        v_bfe_u32 v{t0}, v{self.vL}, 2, 2
        v_lshlrev_b32 v{t0}, 6, v{t0}
        v_bfe_u32 v{t0+1}, v{self.vL}, 4, 1
        v_lshl_add_u32 v{t0}, v{t0+1}, 5, v{t0}
        v_and_b32 v{t0+1}, 3, v{self.vL}
        v_lshl_add_u32 v{t0}, v{t0+1}, 3, v{t0}
        v_lshl_add_u32 v{t0}, v{self.vHf}, 8, v{t0}
        s_lshl_b32 s{S_T0}, s{S_HD}, 11
        s_add_u32 s{S_T0}, s{S_T0}, {hx(WPHI)}
        v_add_u32 v{t0}, s{S_T0}, v{t0}''')
        for s in range(2):
            e(f'ds_read_b64_tr_b16 {vr(wf + 4 * s, 2)}, v{t0} offset:{s * 1024}')
            e(f'ds_read_b64_tr_b16 {vr(wf + 4 * s + 2, 2)}, v{t0} offset:{s * 1024 + 512}')

    def phi_addr(self, t):
        self.emit(f'''
        s_lshl_b32 s{S_T0}, s{S_HD}, 1
        s_add_u32 s{S_T0}, s{S_T0}, s{S_TT}
        s_lshl_b32 s{S_T0}, s{S_T0}, 13
        s_add_u32 s{S_T0}, s{S_T0}, {hx(PHI)}
        s_lshl_b32 s{S_T1}, s{S_TT}, 11
        s_add_u32 s{S_T1}, s{S_T1}, s{S_T0}
        v_add_u32 v{t}, s{S_T1}, v{self.vL16}
        v_xor_b32 v{t+1}, 2048, v{t}''')

    def q_block(self, tau, acc, E, P1, P2, tt, ta, hooks={}):
        self.dual_softmax(acc, E, P1, P2, tt, hooks)
        for s in range(2):
            self.emit(f'ds_write_b128 v{ta}, {vr(P1 + 4 * s)} offset:{tau * 4096 + s * 1024}')
            self.emit(f'ds_write_b128 v{ta+1}, {vr(P2 + 4 * s)} offset:{tau * 4096 + s * 1024}')

    def qa_addr(self, t):
        self.emit(f'''
        s_lshl_b32 s{S_T0}, s{S_HD}, 1
        s_add_u32 s{S_T0}, s{S_T0}, s{S_TT}
        s_lshl_b32 s{S_T1}, s{S_T0}, 13
        s_add_u32 s{S_T1}, s{S_T1}, {hx(PHI)}
        v_add_u32 v{t}, s{S_T1}, v{self.vL16}
        s_lshl_b32 s{S_T0}, s{S_T0}, 2
        s_add_u32 s{S_T0}, s{S_T0}, {hx(FLQ)}
        v_mov_b32 v{t+1}, s{S_T0}''')

    def lds_spin(self, vaddr, vtmp):
        l0, l1 = self.lab('lspin'), self.lab('lok')
        self.emit(f'''
        s_mov_b32 s{S_SPIN}, 0
        {l0}:
        ds_read_b32 v{vtmp}, v{vaddr}
        s_waitcnt lgkmcnt(0)
        v_cmp_ne_u32 vcc, 1, v{vtmp}
        s_cbranch_vccz {l1}
        s_add_u32 s{S_SPIN}, s{S_SPIN}, 1
        s_cmp_ge_u32 s{S_SPIN}, {hx(SPIN)}
        s_cbranch_scc1 {l1}
        s_sleep 1
        s_branch {l0}
        {l1}:''')

    def epi_A(self):
        e = self.emit
        t0 = self.vT
        QM = self.cfg.get('qm', 0)
        qf, kf, vf, wf, I0, ones = 96, 112, 128, 144, 166, 174
        zf, zs = 178, 182
        E, P1, P2, T1, T2, tt = 186, 202, 210, 218, 234, 160
        kv1, kv2 = self.V0, self.V1
        e('L_epiA:')
        NB = self.cfg.get('nobar', 0)
        if self.cfg.get('aprio', 0):
            e(f's_setprio {self.cfg.get("aprio", 0)}')
        if self.cfg.get('wopf', 3) == 1:
            self.wo_prefetch(t0)
        if self.cfg.get('mallpf', 1) == 1:
            self.mall_prefetch(t0)
        if QM:
            for tau, acc in ((0, self.Q0), (1, self.Q1)):
                for i in range(8):
                    e(cvt(qf + tau * 8 + i, acc + 2 * i, acc + 2 * i + 1))
            self.qa_addr(t0 + 2)
            for q in range(4):
                e(f'ds_write_b128 v{t0+2}, {vr(qf + 4 * q)} offset:{q * 1024}')
        self.wphi_reads(wf, t0)
        for base, accs in ((kf, (self.K0, self.K1)), (vf, (self.V0, self.V1)), (qf, (self.Q0, self.Q1))):
            if QM and base == qf:
                continue
            for tau in range(2):
                for i in range(8):
                    e(cvt(base + tau * 8 + i, accs[tau] + 2 * i, accs[tau] + 2 * i + 1))
            if QM and base == kf:
                e(f'''
                v_mov_b32 v{t0}, 1
                s_waitcnt lgkmcnt(0)
                ds_write_b32 v{t0+3}, v{t0}''')
        self.make_ident(I0, tt)
        self.make_ones16(ones, tt)
        e(f'''
        s_mul_i32 s{S_T0}, s{S_TT}, 0x80008000
        s_waitcnt lgkmcnt(0)''')
        for i in range(8):
            e(f'v_xor_b32 v{wf+i}, s{S_T0}, v{wf+i}')
        for acc, fr in ((self.K0, kf), (self.K1, kf + 8), (self.Q0, qf), (self.Q1, qf + 8))[:2 if QM else 4]:
            e(mf32(acc, wf, fr, 'z'))
            e(mf32(acc, wf + 4, fr + 4))
        for tau, acc in ((0, self.K0), (1, self.K1)):
            self.dual_softmax(acc, E, P1, P2, tt)
            e(mf32(T1, P1, I0, 'z')); e(mf32(T2, P2, I0, 'z'))
            e(mf32(T1, P1 + 4, I0 + 4)); e(mf32(T2, P2 + 4, I0 + 4))
            for i in range(8):
                e(cvt(P1 + i, T1 + 2 * i, T1 + 2 * i + 1))
            for i in range(8):
                e(cvt(P2 + i, T2 + 2 * i, T2 + 2 * i + 1))
            z = 'z' if tau == 0 else None
            e(mf32(kv1, vf + tau * 8, P1, z)); e(mf32(kv2, vf + tau * 8, P2, z))
            e(mf32(kv1, vf + tau * 8 + 4, P1 + 4)); e(mf32(kv2, vf + tau * 8 + 4, P2 + 4))
            e(mf16(zf, ones, P1, z)); e(mf16(zs, ones, P2, z))
            e(mf16(zf, ones, P1 + 4)); e(mf16(zs, ones, P2 + 4))
        e(f'''
        s_lshl_b32 s{S_T0}, s{S_HD}, 1
        s_xor_b32 s{S_T1}, s{S_TT}, 1
        s_add_u32 s{S_T0}, s{S_T0}, s{S_T1}
        s_lshl_b32 s{S_T1}, s{S_T0}, 12
        s_add_u32 s{S_T1}, s{S_T1}, {hx(KVX)}
        v_add_u32 v{t0}, s{S_T1}, v{self.vL16}
        s_lshl_b32 s{S_T0}, s{S_T0}, 8
        s_add_u32 s{S_T0}, s{S_T0}, {hx(KVZ)}
        v_lshlrev_b32 v{t0+1}, 2, v{self.vL}
        v_add_u32 v{t0+1}, s{S_T0}, v{t0+1}''')
        for q in range(4):
            e(f'ds_write_b128 v{t0}, {vr(kv2 + 4 * q)} offset:{q * 1024}')
        e(f'ds_write_b32 v{t0+1}, v{zs}')
        EA = self.cfg.get('ea', 0)
        if not QM and not EA:
            self.phi_addr(t0 + 2)
            for tau, acc in ((0, self.Q0), (1, self.Q1)):
                self.q_block(tau, acc, E, P1, P2, tt, t0 + 2)
        if NB:
            l0, l1 = self.lab('lspin'), self.lab('lok')
            e(f'''
            s_xor_b32 s{S_T0}, s{S_W}, 1
            s_lshl_b32 s{S_T0}, s{S_T0}, 3
            s_add_u32 s{S_T0}, s{S_T0}, {FL}
            v_mov_b32 v{t0}, s{S_T0}
            v_mov_b32 v{t0+1}, 1
            s_lshl_b32 s{S_T0}, s{S_W}, 3
            s_add_u32 s{S_T0}, s{S_T0}, {FL}
            v_mov_b32 v{T1+2}, s{S_T0}
            s_mov_b32 s{S_SPIN}, 0
            s_waitcnt lgkmcnt(0)
            ds_write_b32 v{t0}, v{t0+1}
            {l0}:
            ds_read_b64 {vr(T1, 2)}, v{T1+2}
            s_waitcnt lgkmcnt(0)
            v_and_b32 v{T1}, v{T1}, v{T1+1}
            v_cmp_ne_u32 vcc, 1, v{T1}
            s_cbranch_vccz {l1}
            s_add_u32 s{S_SPIN}, s{S_SPIN}, 1
            s_cmp_ge_u32 s{S_SPIN}, {hx(SPIN)}
            s_cbranch_scc1 {l1}
            s_sleep 1
            s_branch {l0}
            {l1}:''')
        else:
            e('''
            s_waitcnt lgkmcnt(0)
            s_barrier''')
        e(f'''
        s_lshl_b32 s{S_T0}, s{S_HD}, 1
        s_add_u32 s{S_T0}, s{S_T0}, s{S_TT}
        s_lshl_b32 s{S_T1}, s{S_T0}, 12
        s_add_u32 s{S_T1}, s{S_T1}, {hx(KVX)}
        v_add_u32 v{t0}, s{S_T1}, v{self.vL16}
        s_lshl_b32 s{S_T1}, s{S_T0}, 8
        s_add_u32 s{S_T1}, s{S_T1}, {hx(KVZ)}
        v_lshlrev_b32 v{t0+1}, 2, v{self.vL}
        v_add_u32 v{t0+1}, s{S_T1}, v{t0+1}
        s_lshl_b32 s{S_T1}, s{S_T0}, 12
        s_add_u32 s{S_T1}, s{S_T1}, {QX}
        v_add_u32 v{t0+2}, s{S_T1}, v{self.vL16}''')
        for q in range(4):
            e(f'ds_read_b128 {vr(T1 + 4 * q)}, v{t0} offset:{q * 1024}')
        e(f'ds_read_b32 v{zs}, v{t0+1}')
        for q in range(4):
            e(f'ds_read_b128 {vr(self.QF + 4 * q)}, v{t0+2} offset:{q * 1024}')
        e('s_waitcnt lgkmcnt(4)')
        for r in range(16):
            e(f'v_add_f32 v{kv1+r}, v{kv1+r}, v{T1+r}')
        e(f'v_add_f32 v{zf}, v{zf}, v{zs}')
        for i in range(8):
            e(cvt(P1 + i, kv1 + 2 * i, kv1 + 2 * i + 1))
        e(f'''
        s_lshl_b32 s{S_T1}, s{S_HP}, 4
        s_add_u32 s{S_T1}, s{S_T1}, s{S_MB}
        s_lshl_b32 s{S_T1}, s{S_T1}, 2
        s_add_u32 s{S_T1}, s{S_T1}, s{S_T0}
        s_lshl_b32 s{S_T1}, s{S_T1}, 11
        s_add_u32 s{S_T1}, s{S_T1}, {hx(KVP_OFF)}
        buffer_store_dwordx4 {vr(P1)}, v{self.vL16}, {srd(sWS)}, s{S_T1} offen sc1
        buffer_store_dwordx4 {vr(P1 + 4)}, v{self.vL16}, {srd(sWS)}, s{S_T1} offen offset:1024 sc1
        s_lshl_b32 s{S_T1}, s{S_HP}, 2
        s_add_u32 s{S_T1}, s{S_T1}, s{S_T0}
        s_lshl_b32 s{S_T1}, s{S_T1}, 4
        s_add_u32 s{S_T1}, s{S_T1}, s{S_MB}
        s_lshl_b32 s{S_T1}, s{S_T1}, 7
        s_add_u32 s{S_T1}, s{S_T1}, {hx(ZP_OFF)}
        v_lshlrev_b32 v{t0}, 2, v{self.vL}
        s_mov_b32 exec_hi, 0
        buffer_store_dword v{zf}, v{t0}, {srd(sWS)}, s{S_T1} offen sc1
        s_mov_b64 exec, -1
        s_waitcnt lgkmcnt(0)''')
        if EA:
            assert NB and not QM
            fa, fv, ka = 112, 113, 114
            f1 = lambda: e(f'''
            v_and_b32 v{fa}, 15, v{self.vL}
            v_lshlrev_b32 v{fa}, {self.FS}, v{fa}
            s_lshl_b32 s{S_T0}, s{S_HP}, {self.FG}
            v_add_u32 v{fa}, s{S_T0}, v{fa}
            s_mov_b32 s{S_T1}, {hx(F1_OFF)}
            buffer_load_dword v{fv}, v{fa}, {srd(sWS)}, s{S_T1} offen sc1 ;@skip''')
            self.phi_addr(t0 + 2)
            self.q_block(1, self.Q1, E, P1, P2, tt, t0 + 2, hooks={self.cfg.get('eaf', 1): f1})
            l = self.lab('f1ok')
            e(f'''
            s_lshl_b32 s{S_T0}, s{S_HEAD}, 18
            v_add_u32 v{ka}, s{S_T0}, v{self.vL16}
            s_lshl_b32 s{S_OFF}, s{S_MB}, 13
            s_waitcnt vmcnt(0) lgkmcnt(0)
            v_cmp_ne_u32 vcc, 1, v{fv}
            s_cbranch_vccz {l}''')
            self.poll(fa, F1_OFF, fv, sl=self.cfg.get('ps1', 1))
            e(f'{l}:')
            k0 = lambda: [e([y.replace(f'v{self.vKV},', f'v{ka},').replace(';@K0', ';@skip').replace(';@V0', ';@skip') for y in x]) for x in self.kv2(0)]
            eax = self.cfg.get('eax', '')
            if 'a' not in eax:
                k0()
            self.count_and_flag(1, 3, f'''
            s_lshl_b32 s{S_T0}, s{S_HP}, {self.FG}
            s_lshl_b32 s{S_T1}, s{S_MB}, {self.FS}
            s_add_u32 s{S_T0}, s{S_T0}, s{S_T1}
            s_add_u32 s{S_T0}, s{S_T0}, {hx(F1B_OFF)}''', fa, fv)
            if 'b' in eax:
                e('s_nop 7')
            self.q_block(0, self.Q0, E, P1, P2, tt, t0 + 2)
            if 'a' in eax:
                k0()
            if self.cfg.get('dbgphi'):
                e(f'''
                s_lshl_b32 s{S_T0}, s2, 2
                s_add_u32 s{S_T0}, s{S_T0}, s{S_W}
                s_lshl_b32 s{S_T0}, s{S_T0}, 13
                s_add_u32 s{S_T0}, s{S_T0}, {hx(40 << 20)}''')
                for q in range(4):
                    e(f'buffer_store_dwordx4 {vr(P1 + 4 * q)}, v{self.vL16}, {srd(sWS)}, s{S_T0} offen offset:{q * 1024} ;@skip')
            e('s_waitcnt lgkmcnt(0)')

    def kv_loads(self, slot, so):
        b = self.KVB[slot]
        return [f'buffer_load_dwordx4 {vr(b + 4 * q)}, v{self.vKV}, {srd(sWS)}, {so} offen offset:{q * 1024} sc1'
                .replace(' offset:0 ', ' ') for q in range(4)]

    def tile_off(self, dst, j_expr_sreg):
        return [f's_add_u32 s{dst}, s{j_expr_sreg}, s{S_ROT}',
                f's_and_b32 s{dst}, s{dst}, 31',
                f's_lshl_b32 s{dst}, s{dst}, 12',
                f's_cmp_ge_u32 s{j_expr_sreg}, 32',
                f's_cselect_b32 s{dst}, {hx(BIGOFF)}, s{dst}']

    def first_loads(self):
        e = self.emit
        for j in range(3):
            e(f's_mov_b32 s{S_J}, {j}')
            e(self.tile_off(S_T0, S_J))
            e(self.kv_loads(j, f's{S_T0}'))
        e(f's_mov_b32 s{S_J}, 3')

    def exp_block(self, S, P):
        L = []
        for q in range(4):
            for j in range(4):
                L.append(f'v_exp_f32 v{S + 4 * q + j}, v{S + 4 * q + j}')
            L.append(cvt(P + 2 * q, S + 4 * q, S + 4 * q + 1))
            L.append(cvt(P + 2 * q + 1, S + 4 * q + 2, S + 4 * q + 3))
        return L

    def wave_rowmax(self, S, dst, t):
        e = self.emit
        e(f'v_max3_f32 v{dst}, v{S}, v{S+1}, v{S+2}')
        for i in range(3, 15, 2):
            e(f'v_max3_f32 v{dst}, v{dst}, v{S+i}, v{S+i+1}')
        e(f'v_max_f32 v{dst}, v{dst}, v{S+15}')

    def cross_half_max(self, d, t):
        self.emit(f'''
        v_mov_b32 v{t}, v{d}
        v_permlane32_swap_b32 v{d}, v{t}
        v_max_f32 v{d}, v{d}, v{t}''')

    def attention(self):
        e = self.emit
        Sa, Sb, Ca, Cb, Oa, Ob = self.Sa, self.Sb, self.Ca, self.Cb, self.Oa, self.Ob
        Qa, Qb = self.QF, self.QF + 8
        Pa, Pb, la, lb, ONES = self.Pa, self.Pb, self.la, self.lb, self.ONES
        KVB = self.KVB
        tA = self.vA
        e('L_attn:')
        self.stamp(4)
        self.make_ones16(ONES, tA)
        e(f'''
        s_lshl_b32 s{S_T0}, s{S_HEAD}, 18
        s_lshl_b32 s{S_T1}, s{S_BR}, 17
        s_add_u32 s{S_T0}, s{S_T0}, s{S_T1}
        v_add_u32 v{self.vKV}, s{S_T0}, v{self.vL16}
        s_lshl_b32 s{S_ROT}, s{S_MB}, 1
        s_mov_b32 s{S_RETRY}, 0
        v_and_b32 v{tA}, 15, v{self.vL}
        v_lshlrev_b32 v{tA}, 2, v{tA}
        s_lshl_b32 s{S_T0}, s{S_HP}, 7
        v_add_u32 v{tA}, s{S_T0}, v{tA}''')
        self.poll(tA, F1_OFF, tA + 1)
        self.stamp(5)
        ln = self.lab('noF1b')
        e(f'''
        s_cmp_eq_u32 s{S_BR}, 0
        s_cbranch_scc0 {ln}''')
        self.count_and_flag(1, 3, f'''
        s_lshl_b32 s{S_T0}, s{S_HP}, 7
        s_lshl_b32 s{S_T1}, s{S_MB}, 2
        s_add_u32 s{S_T0}, s{S_T0}, s{S_T1}
        s_add_u32 s{S_T0}, s{S_T0}, {hx(F1B_OFF)}''', tA, tA + 1)
        e(f'{ln}:')
        self.first_loads()
        K0 = KVB[0]
        e('s_waitcnt vmcnt(10)')
        e(mf32(Sa, K0, Qa, 'z')); e(mf32(Sb, K0, Qb, 'z'))
        e(mf32(Sa, K0 + 4, Qa + 4)); e(mf32(Sb, K0 + 4, Qb + 4))
        self.wave_rowmax(Sa, self.vMa, tA)
        self.wave_rowmax(Sb, self.vMb, tA)
        self.cross_half_max(self.vMa, tA)
        self.cross_half_max(self.vMb, tA)
        e(f'v_add_f32 v{self.vMa}, {hx(f2u(MOFF))}, v{self.vMa}')
        e(f'v_add_f32 v{self.vMb}, {hx(f2u(MOFF))}, v{self.vMb}')
        e('L_attn_go:')
        V3 = KVB[3] + 8
        for r in range(8):
            e(f'v_mov_b32 v{V3 + r}, 0')
            e(f'v_mov_b32 v{Pb + r}, 0')
        for r in range(4):
            e(f'v_mov_b32 v{la + r}, 0')
            e(f'v_mov_b32 v{lb + r}, 0')
        for r in range(16):
            e(f'v_sub_f32 v{Ca + r}, 0, v{self.vMa}')
        e(mf32(Oa, V3, V3, 'z')); e(mf32(Ob, V3, V3, 'z'))
        for r in range(16):
            e(f'v_sub_f32 v{Cb + r}, 0, v{self.vMb}')
        e(mf32(Sa, K0, Qa, Ca)); e(mf32(Sa, K0 + 4, Qa + 4))
        e(f's_mov_b32 s{S_IT}, 0')
        e('L_attn_loop:')
        for i4 in range(4):
            cur, prev, nxt = KVB[i4], KVB[(i4 - 1) % 4], KVB[(i4 + 1) % 4]
            mfA = [mf32(Sb, cur, Qb, Cb), mf32(Sb, cur + 4, Qb + 4),
                   mf32(Ob, prev + 8, Pb), mf16(lb, ONES, Pb),
                   mf32(Ob, prev + 12, Pb + 4), mf16(lb, ONES, Pb + 4)]
            e(interleave(mfA, self.exp_block(Sa, Pa)))
            e(self.tile_off(S_T0, S_J))
            e(f's_add_u32 s{S_J}, s{S_J}, 1')
            e('s_waitcnt vmcnt(6)')
            mfB = [mf32(Sa, nxt, Qa, Ca), mf32(Sa, nxt + 4, Qa + 4),
                   mf32(Oa, cur + 8, Pa), mf16(la, ONES, Pa),
                   mf32(Oa, cur + 12, Pa + 4), mf16(la, ONES, Pa + 4)]
            body = interleave(mfB, self.exp_block(Sb, Pb))
            loads = self.kv_loads((i4 + 3) % 4, f's{S_T0}')
            out = []
            li = 0
            for n, x in enumerate(body):
                out.append(x)
                if n in (4, 9, 14, 19):
                    out.append(loads[li]); li += 1
            e(out)
        e(f'''
        s_add_u32 s{S_IT}, s{S_IT}, 1
        s_cmp_lt_u32 s{S_IT}, 8
        s_cbranch_scc1 L_attn_loop''')
        prev = KVB[3]
        e(mf32(Ob, prev + 8, Pb)); e(mf16(lb, ONES, Pb))
        e(mf32(Ob, prev + 12, Pb + 4)); e(mf16(lb, ONES, Pb + 4))
        e('s_waitcnt vmcnt(0)')
        self.stamp(6)
        e(f'v_add_f32 v{tA}, v{la}, v{lb}')
        e(f'v_pk_add_f32 {vr(Sa, 2)}, {vr(Oa, 2)}, {vr(Oa + 2, 2)}')
        for r in range(4, 32, 2):
            e(f'v_pk_add_f32 {vr(Sa, 2)}, {vr(Sa, 2)}, {vr(Oa + r, 2)}')
        e(f'''
        v_add_f32 v{tA}, v{tA}, v{Sa}
        v_add_f32 v{tA}, v{tA}, v{Sa+1}
        v_mov_b32 v{tA+1}, 0x207
        v_cmp_class_f32 vcc, v{tA}, v{tA+1}
        s_cbranch_vccz L_attn_done
        s_cmp_lg_u32 s{S_RETRY}, 0
        s_cbranch_scc1 L_attn_done
        s_mov_b32 s{S_RETRY}, 1''')
        e(f'''
        v_mov_b32 v{self.vMa}, 0xff800000
        v_mov_b32 v{self.vMb}, 0xff800000
        s_mov_b32 s{S_J}, 0
        L_truemax:''')
        e(self.tile_off(S_T0, S_J))
        e(self.kv_loads(0, f's{S_T0}')[:2])
        e('s_waitcnt vmcnt(0)')
        e(mf32(Sa, K0, Qa, 'z')); e(mf32(Sb, K0, Qb, 'z'))
        e(mf32(Sa, K0 + 4, Qa + 4)); e(mf32(Sb, K0 + 4, Qb + 4))
        for S, M in ((Sa, self.vMa), (Sb, self.vMb)):
            for i in range(0, 16, 2):
                e(f'v_max3_f32 v{M}, v{M}, v{S+i}, v{S+i+1}')
        e(f'''
        s_add_u32 s{S_J}, s{S_J}, 1
        s_cmp_lt_u32 s{S_J}, 32
        s_cbranch_scc1 L_truemax''')
        self.cross_half_max(self.vMa, tA)
        self.cross_half_max(self.vMb, tA)
        self.first_loads()
        e('''
        s_waitcnt vmcnt(10)
        s_branch L_attn_go
        L_attn_done:''')

    def finalize_attn(self):
        e = self.emit
        Oa, Ob, la, lb = self.Oa, self.Ob, self.la, self.lb
        tA = self.vA
        I0 = 240
        ACC = 224
        ZL = 208
        vAd = 216
        bufs = list(range(0, 64, 4)) + list(range(140, 204, 4))
        e(f'''
        v_and_b32 v{vAd}, 15, v{self.vL}
        v_lshlrev_b32 v{vAd}, 2, v{vAd}
        s_lshl_b32 s{S_T0}, s{S_HP}, 7
        v_add_u32 v{vAd}, s{S_T0}, v{vAd}''')
        self.poll(vAd, F1B_OFF, vAd + 1)
        self.stamp(7)
        e(f'''
        s_lshl_b32 s{S_T0}, s{S_HP}, 6
        s_lshl_b32 s{S_T1}, s{S_HD}, 1
        s_add_u32 s{S_T1}, s{S_T1}, s{S_BR}
        s_add_u32 s{S_T0}, s{S_T0}, s{S_T1}
        s_lshl_b32 s{S_T0}, s{S_T0}, 11
        s_add_u32 s{S_T0}, s{S_T0}, {hx(KVP_OFF)}''')
        for m in range(16):
            for s in range(2):
                b = bufs[m * 2 + s]
                e(f'buffer_load_dwordx4 {vr(b)}, v{self.vL16}, {srd(sWS)}, s{S_T0} offen' +
                  (f' offset:{s * 1024}' if s else '') + ' sc1')
            e(f's_add_u32 s{S_T0}, s{S_T0}, 8192')
        e(f'''
        s_lshl_b32 s{S_T0}, s{S_HP}, 2
        s_add_u32 s{S_T0}, s{S_T0}, s{S_T1}
        s_lshl_b32 s{S_T0}, s{S_T0}, 11
        s_add_u32 s{S_T0}, s{S_T0}, {hx(ZP_OFF)}
        v_and_b32 v{vAd}, 31, v{self.vL}
        v_lshlrev_b32 v{vAd}, 2, v{vAd}
        v_lshl_add_u32 v{vAd}, v{self.vHf}, 7, v{vAd}''')
        for i in range(8):
            e(f'buffer_load_dword v{ZL + i}, v{vAd}, {srd(sWS)}, s{S_T0} offen' +
              (f' offset:{i * 256}' if i else '') + ' sc1')
        self.make_ident(I0, vAd + 1)
        PH = 112
        e(f'''
        s_lshl_b32 s{S_T0}, s{S_HD}, 1
        s_add_u32 s{S_T0}, s{S_T0}, s{S_TT}
        s_lshl_b32 s{S_T0}, s{S_T0}, 13
        s_add_u32 s{S_T0}, s{S_T0}, {hx(PHI)}
        s_mul_i32 s{S_T1}, s{S_BR}, 6144
        s_add_u32 s{S_T0}, s{S_T0}, s{S_T1}
        v_add_u32 v{vAd}, s{S_T0}, v{self.vL16}
        s_lshl_b32 s{S_T1}, s{S_BR}, 13
        s_sub_u32 s{S_T0}, s{S_T0}, s{S_T1}
        s_add_u32 s{S_T0}, s{S_T0}, 4096
        v_add_u32 v{vAd+1}, s{S_T0}, v{self.vL16}
        ds_read_b128 {vr(PH)}, v{vAd}
        ds_read_b128 {vr(PH+4)}, v{vAd} offset:1024
        ds_read_b128 {vr(PH+8)}, v{vAd+1}
        ds_read_b128 {vr(PH+12)}, v{vAd+1} offset:1024''')
        e(f'''
        s_lshl_b32 s{S_T0}, s{S_TT}, 6
        s_lshl_b32 s{S_T1}, s{S_BR}, 5
        s_add_u32 s{S_T0}, s{S_T0}, s{S_T1}
        s_lshl_b32 s{S_T0}, s{S_T0}, 2
        s_add_u32 s{S_T0}, s{S_T0}, {hx(LOG)}
        v_and_b32 v{vAd+2}, 31, v{self.vL}
        v_lshlrev_b32 v{vAd+2}, 2, v{vAd+2}
        v_add_u32 v{vAd+2}, s{S_T0}, v{vAd+2}
        ds_read_b32 v{vAd+3}, v{vAd+2}''')
        vG = vAd + 3
        for O, l, M in ((Oa, la, self.vMa), (Ob, lb, self.vMb)):
            e(f'v_rcp_f32 v{l+1}, v{l}')
            e(f'v_log_f32 v{l+2}, v{l}')
            e(f'v_add_f32 v{l+2}, v{l+2}, v{M}')
            for r in range(16):
                e(f'v_mul_f32 v{O+r}, v{O+r}, v{l+1}')
        La, Lb = la + 2, lb + 2
        for n in range(32):
            e(f's_waitcnt vmcnt({8 + 31 - n})')
            e(mf32(ACC, bufs[n], I0 + 4 * (n & 1), 'z' if n == 0 else None))
        e('s_waitcnt vmcnt(0)')
        e(f'v_add_f32 v{ZL}, v{ZL}, v{ZL+1}')
        for i in range(2, 8):
            e(f'v_add_f32 v{ZL}, v{ZL}, v{ZL+i}')
        e(f'''
        v_mov_b32 v{ZL+1}, v{ZL}
        v_permlane32_swap_b32 v{ZL}, v{ZL+1}
        v_add_f32 v{ZL}, v{ZL}, v{ZL+1}
        v_cvt_pk_bf16_f32 v{ZL}, v{ZL}, v{ZL}
        s_lshl_b32 s{S_T0}, s{S_W}, 7
        s_add_u32 s{S_T0}, s{S_T0}, {hx(ZT)}
        v_and_b32 v{ZL+1}, 31, v{self.vL}
        v_lshlrev_b32 v{ZL+1}, 1, v{ZL+1}
        v_add_u32 v{ZL+1}, s{S_T0}, v{ZL+1}
        ds_write_b16 v{ZL+1}, v{ZL}
        v_lshlrev_b32 v{ZL+2}, 3, v{self.vHf}
        v_add_u32 v{ZL+2}, s{S_T0}, v{ZL+2}
        s_waitcnt lgkmcnt(0)''')
        ZF = 0
        for s in range(2):
            e(f'ds_read_b64 {vr(ZF + 4 * s, 2)}, v{ZL+2} offset:{s * 32}')
            e(f'ds_read_b64 {vr(ZF + 4 * s + 2, 2)}, v{ZL+2} offset:{s * 32 + 16}')
        KT = 8
        for i in range(8):
            e(cvt(KT + i, ACC + 2 * i, ACC + 2 * i + 1))
        e(f'''
        v_cmp_ne_u32 vcc, 0, v{self.ONES}
        s_waitcnt lgkmcnt(0)''')
        for i in range(8):
            e(f'v_cndmask_b32 v{ZF+i}, 0, v{ZF+i}, vcc')
        Na, Nb, Da, Db = 16, 32, 48, 52
        for N, D, P in ((Nb, Db, PH + 8), (Na, Da, PH)):
            e(mf32(N, KT, P, 'z')); e(mf32(N, KT + 4, P + 4))
            e(mf16(D, ZF, P, 'z')); e(mf16(D, ZF + 4, P + 4))
        e(f'''
        s_mul_i32 s{S_T0}, s{S_W}, {MRG_STRIDE}
        s_add_u32 s{S_T0}, s{S_T0}, {hx(MRG)}
        v_add_u32 v{vAd}, s{S_T0}, v{self.vL16}
        v_lshlrev_b32 v{vAd+1}, 3, v{self.vL}
        v_add_u32 v{vAd+1}, s{S_T0}, v{vAd+1}
        s_xor_b32 s{S_T1}, s{S_W}, 4
        s_mul_i32 s{S_T0}, s{S_T1}, {MRG_STRIDE}
        s_add_u32 s{S_T0}, s{S_T0}, {hx(MRG)}
        v_add_u32 v{vAd+4}, s{S_T0}, v{self.vL16}
        v_lshlrev_b32 v{vAd+5}, 3, v{self.vL}
        v_add_u32 v{vAd+5}, s{S_T0}, v{vAd+5}''')
        for q in range(4):
            e(f'ds_write_b128 v{vAd}, {vr(Ob + 4 * q)} offset:{q * 1024}')
        for q in range(4):
            e(f'ds_write_b128 v{vAd}, {vr(Nb + 4 * q)} offset:{4096 + q * 1024}')
        e(f'''
        v_mov_b32 v56, v{Lb}
        v_mov_b32 v57, v{Db}
        ds_write_b64 v{vAd+1}, v[56:57] offset:8192''')
        e(f'''
        v_mul_f32 v{vG}, s{S_L2E}, v{vG}
        v_exp_f32 v58, -v{vG}
        v_add_f32 v58, 1.0, v58
        v_rcp_f32 v58, v58
        v_sub_f32 v59, 1.0, v58
        s_waitcnt lgkmcnt(0)
        s_barrier''')
        self.stamp(8)
        RO, RN = 140, 156
        for q in range(4):
            e(f'ds_read_b128 {vr(RO + 4 * q)}, v{vAd+4} offset:{q * 1024}')
        e(f'ds_read_b64 v[56:57], v{vAd+5} offset:8192')
        for q in range(4):
            e(f'ds_read_b128 {vr(RN + 4 * q)}, v{vAd+4} offset:{4096 + q * 1024}')
        e(f'''
        s_waitcnt lgkmcnt(4)
        v_max_f32 v60, v{La}, v56
        v_sub_f32 v61, v{La}, v60
        v_sub_f32 v62, v56, v60
        v_exp_f32 v61, v61
        v_exp_f32 v62, v62
        v_add_f32 v63, v61, v62
        v_rcp_f32 v63, v63
        v_mul_f32 v63, v63, v59
        v_mul_f32 v61, v61, v63
        v_mul_f32 v62, v62, v63
        v_add_f32 v57, v57, v{Da}
        v_add_f32 v57, {hx(f2u(1e-6))}, v57
        v_rcp_f32 v57, v57
        v_mul_f32 v57, v57, v58''')
        for r in range(16):
            e(f'v_mul_f32 v{Oa+r}, v{Oa+r}, v61')
            e(f'v_fma_f32 v{Oa+r}, v{RO+r}, v62, v{Oa+r}')
        OBF, OAF = 96, 104
        for i in range(8):
            e(cvt(OBF + i, Oa + 2 * i, Oa + 2 * i + 1))
        e(f'''
        s_lshl_b32 s{S_T0}, s{S_MB}, 2
        s_lshl_b32 s{S_T1}, s{S_TT}, 1
        s_add_u32 s{S_T0}, s{S_T0}, s{S_T1}
        s_add_u32 s{S_T0}, s{S_T0}, s{S_BR}
        s_lshl_b32 s{S_T0}, s{S_T0}, 17
        s_lshl_b32 s{S_T1}, s{S_HEAD}, 11
        s_add_u32 s{S_T0}, s{S_T0}, s{S_T1}
        s_add_u32 s{S_T0}, s{S_T0}, {hx(O_OFF)}
        s_add_u32 s{S_T1}, s{S_T0}, 65536
        buffer_store_dwordx4 {vr(OBF)}, v{self.vL16}, {srd(sWS)}, s{S_T1} offen sc1
        buffer_store_dwordx4 {vr(OBF+4)}, v{self.vL16}, {srd(sWS)}, s{S_T1} offen offset:1024 sc1
        s_waitcnt lgkmcnt(0)''')
        for r in range(16):
            e(f'v_add_f32 v{Na+r}, v{Na+r}, v{RN+r}')
            e(f'v_mul_f32 v{Na+r}, v{Na+r}, v57')
        for i in range(8):
            e(cvt(OAF + i, Na + 2 * i, Na + 2 * i + 1))
        e(f'''
        buffer_store_dwordx4 {vr(OAF)}, v{self.vL16}, {srd(sWS)}, s{S_T0} offen sc1
        buffer_store_dwordx4 {vr(OAF+4)}, v{self.vL16}, {srd(sWS)}, s{S_T0} offen offset:1024 sc1''')

    def outproj(self):
        e = self.emit
        ACC0, ACC1 = 0, 16
        WB = [32, 40, 48, 56]
        OB = [64, 128]
        vD3, vR3, vR3b, vO3, vE = 200, 201, 202, 203, 204
        S_MB3, S_CT = S_MB, S_HP
        self.stamp(9)
        e('s_barrier')
        e(f'''
        s_lshl_b32 s{S_T2}, s{S_MB}, 7
        s_lshl_b32 s{S_T3}, s{S_HP}, 2
        s_add_u32 s{S_J}, s{S_T2}, s{S_T3}
        s_add_u32 s{S_J}, s{S_J}, {hx(F2_OFF)}
        s_and_b32 s{S_T0}, s2, 7
        s_lshr_b32 s{S_T1}, s2, 3
        s_and_b32 s{S_T2}, s{S_T0}, 3
        s_lshl_b32 s{S_T2}, s{S_T2}, 2
        s_and_b32 s{S_T3}, s{S_T1}, 3
        s_add_u32 s{S_MB3}, s{S_T2}, s{S_T3}
        s_lshr_b32 s{S_T2}, s{S_T0}, 2
        s_lshl_b32 s{S_T2}, s{S_T2}, 3
        s_lshr_b32 s{S_T3}, s{S_T1}, 2
        s_add_u32 s{S_CT}, s{S_T2}, s{S_T3}
        s_cmp_eq_u32 s{S_BR}, 1
        s_cselect_b32 s{sW}, s38, s34
        s_cselect_b32 s{sW+1}, s39, s35
        s_mov_b32 s{sW+2}, {hx(2 << 20)}
        s_mov_b32 s{sW+3}, 0x20000
        s_and_b32 s{S_T0}, s{S_W}, 3
        s_lshl_b32 s{S_T1}, s{S_T0}, 4
        v_bfe_u32 v{vD3}, v{self.vL}, 2, 3
        v_add_u32 v{vD3}, s{S_T1}, v{vD3}
        v_lshlrev_b32 v{vD3}, 11, v{vD3}
        v_lshl_add_u32 v{vD3}, v{self.vHf}, 6, v{vD3}
        v_and_b32 v{vE}, 3, v{self.vL}
        v_lshl_add_u32 v{vD3}, v{vE}, 4, v{vD3}
        s_lshl_b32 s{S_T1}, s{S_CT}, 7
        v_add_u32 v{vD3}, s{S_T1}, v{vD3}
        s_lshl_b32 s{S_DWL}, s{S_BR}, 13
        s_lshl_b32 s{S_T0}, s{S_T0}, 11
        s_add_u32 s{S_DWL}, s{S_DWL}, s{S_T0}''')

        def dma(stage):
            L = []
            for i in range(2):
                L += [f's_add_u32 m0, s{S_DWL}, {hx((stage % 8) * 16384 + i * 1024)}',
                      f's_mov_b32 s{S_T0}, {hx(stage * 131072 + i * 16384)}',
                      f'buffer_load_dwordx4 v{vD3}, {srd(sW)}, s{S_T0} offen lds']
            return L
        for st in range(8):
            e(dma(st))
        e('s_waitcnt vmcnt(16)')
        self.count_and_flag(2, 7, f's_mov_b32 s{S_T0}, s{S_J}', vE, vE + 1)
        e(f'''
        v_bfe_u32 v{vR3}, v{self.vL}, 2, 2
        v_lshlrev_b32 v{vR3}, 6, v{vR3}
        v_bfe_u32 v{vE}, v{self.vL}, 4, 1
        v_lshl_add_u32 v{vR3}, v{vE}, 5, v{vR3}
        v_and_b32 v{vE}, 3, v{self.vL}
        v_lshl_add_u32 v{vR3}, v{vE}, 3, v{vR3}
        v_lshl_add_u32 v{vR3}, v{self.vHf}, 8, v{vR3}
        s_lshl_b32 s{S_T0}, s{S_BR}, 13
        v_add_u32 v{vR3}, s{S_T0}, v{vR3}
        v_add_u32 v{vR3b}, 0x10000, v{vR3}
        s_lshl_b32 s{S_T0}, s{S_MB3}, 2
        s_and_b32 s{S_T1}, s{S_W}, 3
        s_add_u32 s{S_T0}, s{S_T0}, s{S_T1}
        s_lshl_b32 s{S_T0}, s{S_T0}, 17
        s_lshl_b32 s{S_T1}, s{S_BR}, 16
        s_add_u32 s{S_T0}, s{S_T0}, s{S_T1}
        s_add_u32 s{S_T0}, s{S_T0}, {hx(O_OFF)}
        v_add_u32 v{vO3}, s{S_T0}, v{self.vL16}
        v_and_b32 v{vE}, 15, v{self.vL}
        v_lshlrev_b32 v{vE}, 2, v{vE}
        s_lshl_b32 s{S_T0}, s{S_MB3}, 7
        v_add_u32 v{vE}, s{S_T0}, v{vE}''')
        self.poll(vE, F2_OFF, vE + 1)
        self.stamp(10)

        def oloads(m):
            L = []
            for g in range(4):
                L.append(f's_mov_b32 s{S_T0}, {hx((m * 16 + g * 4) * 1024)}')
                for q in range(4):
                    L.append(f'buffer_load_dwordx4 {vr(OB[m & 1] + 16 * g + 4 * q)}, v{vO3}, {srd(sWS)}, s{S_T0} offen' +
                             (f' offset:{q * 1024}' if q else '') + ' sc1')
            return L

        def wreads(m, n):
            q, h2, s = n >> 2, (n >> 1) & 1, n & 1
            slot = (4 * m + q) % 8
            base = vR3 if slot < 4 else vR3b
            o = (slot & 3) * 16384 + (h2 * 4 + 2 * s) * 1024
            b = WB[n & 3]
            return [f'ds_read_b64_tr_b16 {vr(b, 2)}, v{base} offset:{o}',
                    f'ds_read_b64_tr_b16 {vr(b + 2, 2)}, v{base} offset:{o + 1024}',
                    f'ds_read_b64_tr_b16 {vr(b + 4, 2)}, v{base} offset:{o + 512}',
                    f'ds_read_b64_tr_b16 {vr(b + 6, 2)}, v{base} offset:{o + 1536}']

        def macro(m):
            e(wreads(m, 0)); e(wreads(m, 1))
            for n in range(16):
                if n + 2 < 16:
                    e(wreads(m, n + 2))
                    e('s_waitcnt lgkmcnt(8)')
                elif n == 14:
                    e('s_waitcnt lgkmcnt(4)')
                else:
                    e('s_waitcnt lgkmcnt(0)')
                b = WB[n & 3]
                of = OB[m & 1] + 4 * n
                first = 'z' if (m == 0 and n == 0) else None
                e(mf32(ACC0, b, of, first))
                e(mf32(ACC1, b + 4, of, first))
        e(oloads(0)); e(oloads(1))
        e('s_waitcnt vmcnt(16)')
        e('s_barrier')
        macro(0)
        e('s_barrier')
        for st in range(8, 12):
            e(dma(st))
        e(oloads(2))
        e('s_waitcnt vmcnt(24)')
        macro(1)
        e('s_waitcnt vmcnt(16)')
        e('s_barrier')
        for st in range(12, 16):
            e(dma(st))
        e(oloads(3))
        e('s_waitcnt vmcnt(24)')
        macro(2)
        e('s_waitcnt vmcnt(16)')
        e('s_barrier')
        e('s_waitcnt vmcnt(0)')
        macro(3)
        self.stamp(11)
        lA = self.lab('keep1')
        lB = self.lab('kept')
        e(f'''
        s_lshl_b32 s{S_T0}, s{S_W}, 12
        s_add_u32 s{S_T0}, s{S_T0}, {hx(XCH)}
        v_add_u32 v{vE}, s{S_T0}, v{self.vL16}
        s_xor_b32 s{S_T1}, s{S_W}, 4
        s_lshl_b32 s{S_T0}, s{S_T1}, 12
        s_add_u32 s{S_T0}, s{S_T0}, {hx(XCH)}
        v_add_u32 v{vE+1}, s{S_T0}, v{self.vL16}
        s_cmp_eq_u32 s{S_BR}, 1
        s_cbranch_scc1 {lA}''')
        for q in range(4):
            e(f'ds_write_b128 v{vE}, {vr(ACC1 + 4 * q)} offset:{q * 1024}')
        e(f's_branch {lB}')
        e(f'{lA}:')
        for q in range(4):
            e(f'ds_write_b128 v{vE}, {vr(ACC0 + 4 * q)} offset:{q * 1024}')
        for r in range(16):
            e(f'v_mov_b32 v{ACC0+r}, v{ACC1+r}')
        e(f'{lB}:')
        e('''
        s_waitcnt lgkmcnt(0)
        s_barrier''')
        R = 32
        for q in range(4):
            e(f'ds_read_b128 {vr(R + 4 * q)}, v{vE+1} offset:{q * 1024}')
        e(f'''
        s_lshl_b32 s{S_T0}, s{S_MB3}, 7
        s_and_b32 s{S_T1}, s{S_W}, 3
        s_lshl_b32 s{S_T1}, s{S_T1}, 5
        s_add_u32 s{S_T0}, s{S_T0}, s{S_T1}
        v_and_b32 v{vE}, 31, v{self.vL}
        v_add_u32 v{vE}, s{S_T0}, v{vE}
        v_lshlrev_b32 v{vE}, 11, v{vE}
        v_lshl_add_u32 v{vE}, v{self.vHf}, 4, v{vE}
        s_lshl_b32 s{S_T0}, s{S_CT}, 7
        s_lshl_b32 s{S_T1}, s{S_BR}, 6
        s_add_u32 s{S_T0}, s{S_T0}, s{S_T1}
        v_add_u32 v{vE}, s{S_T0}, v{vE}
        s_waitcnt lgkmcnt(0)''')
        for r in range(16):
            e(f'v_add_f32 v{ACC0+r}, v{ACC0+r}, v{R+r}')
        P = 48
        for i in range(8):
            e(cvt(P + i, ACC0 + 2 * i, ACC0 + 2 * i + 1))
        for u in range(2):
            e(f'v_permlane32_swap_b32 v{P+4*u}, v{P+4*u+2}')
            e(f'v_permlane32_swap_b32 v{P+4*u+1}, v{P+4*u+3}')
        for u in range(2):
            e(f'buffer_store_dwordx4 {vr(P + 4 * u)}, v{vE}, {srd(sOUT)}, 0 offen' + (f' offset:{u * 32}' if u else ''))
        e('s_waitcnt vmcnt(0)')

    XACC, XB, XI, XZ = 224, 240, 248, 208
    vD3p, vO3, vR3, vR3b, vPF, vFa, vG1, vFv = 224, 225, 226, 227, 228, 229, 230, 231
    vS = 232

    def check_flags(self, vaddr, vval, off, tag):
        l = self.lab('flagok')
        self.emit(f"""
        @wait {tag}
        v_cmp_ne_u32 vcc, 1, v{vval}
        s_cbranch_vccz {l}""")
        self.poll(vaddr, off, vval, sl=self.cfg.get('ps2', 1))
        self.emit(f'{l}:')

    def kv2(self, j):
        b = self.KVB[j % 4]
        L = []
        for q in range(4):
            t = f'K{j}' if q < 2 else f'V{j}'
            x = f'buffer_load_dwordx4 {vr(b + 4 * q)}, v{self.vKV}, {srd(sWS)}, s{S_OFF} offen' + \
                (f' offset:{q * 1024}' if q else '') + f'{self.cfg.get("kvsc", " sc1")} ;@{t}'
            L.append([x])
        L[3] += [f's_add_u32 s{S_OFF}, s{S_OFF}, 4096', f's_and_b32 s{S_OFF}, s{S_OFF}, 0x1ffff']
        return L

    def wo_dma(self, stage, i, tag):
        if stage >= 8 and self.cfg.get('dyn', 0):
            idx = [f's_bfe_u32 s{S_T1}, s{S_R2}, {hx(4 * (stage - 8) | 3 << 16)}']
        else:
            idx = [f's_add_u32 s{S_T1}, s{S_R}, {stage % 8}', f's_and_b32 s{S_T1}, s{S_T1}, 7']
        return idx + [
                f's_lshl_b32 s{S_T1}, s{S_T1}, 17',
                f's_add_u32 m0, s{S_DWL}, {hx((stage % 8) * 16384 + i * 1024)}',
                f's_add_u32 s{S_T1}, s{S_T1}, {hx(i * 16384)}',
                f'buffer_load_dwordx4 v{self.vD3p}, {srd(sW)}, s{S_T1} offen lds ;@{tag}']

    def make_ident_half(self, I0, t):
        e = self.emit
        e(f"""
        v_and_b32 v{t}, 31, v{self.vL}
        v_lshlrev_b32 v{t+1}, 2, v{self.vHf}
        v_sub_u32 v{t}, v{t}, v{t+1}
        s_lshl_b32 s{S_T0}, s{S_TT}, 4
        v_subrev_u32 v{t}, s{S_T0}, v{t}
        v_and_b32 v{t+1}, 1, v{t}
        v_lshlrev_b32 v{t+1}, 4, v{t+1}
        v_mov_b32 v{t+2}, 0x3f80
        v_lshlrev_b32 v{t+1}, v{t+1}, v{t+2}
        v_ashrrev_i32 v{t}, 1, v{t}""")
        for i in range(4):
            key = (i & 1) + 4 * (i >> 1)
            e(f'v_cmp_eq_u32 vcc, {key}, v{t}')
            e(f'v_cndmask_b32 v{I0 + i}, 0, v{t+1}, vcc')

    def attention2(self):
        e = self.emit
        Sa, Sb, Ca, Cb, Oa, Ob = self.Sa, self.Sb, self.Ca, self.Cb, self.Oa, self.Ob
        Qa, Qb = self.QF, self.QF + 8
        Pa, Pb, la, lb, ONES = self.Pa, self.Pb, self.la, self.lb, self.ONES
        KVB = self.KVB
        tA = self.vA
        TF = self.cfg.get('tf', 3)
        TX0 = TF + 2
        XR = self.cfg.get('xr', 2)
        NX = 16 // XR
        TM = TX0 + NX + 1
        XBUF = [240, 244, 216, 220]
        XACC, XB, XI, XZ = self.XACC, self.XB, self.XI, self.XZ
        e('L_attn:')
        self.stamp(4)
        SMF = self.cfg.get('smf', 1)
        if SMF:
            self.make_sparse_ones(ONES, tA)
        else:
            self.make_ones16(ONES, tA)
        self.make_ident_half(XI, tA)
        e(f"""
        s_lshl_b32 s{S_T0}, s{S_HEAD}, 18
        s_lshl_b32 s{S_T1}, s{S_BR}, 17
        s_add_u32 s{S_T0}, s{S_T0}, s{S_T1}
        v_add_u32 v{self.vKV}, s{S_T0}, v{self.vL16}
        s_lshl_b32 s{S_ROT}, s{S_MB}, 1
        {'' if self.cfg.get('ea', 0) else f's_lshl_b32 s{S_OFF}, s{S_MB}, 13'}
        s_lshl_b32 s{S_T0}, s{S_HP}, 6
        s_lshl_b32 s{S_T1}, s{S_HD}, 1
        s_add_u32 s{S_T1}, s{S_T1}, s{S_BR}
        s_add_u32 s{S_T0}, s{S_T0}, s{S_T1}
        s_lshl_b32 s{S_T0}, s{S_T0}, 11
        s_lshl_b32 s{S_T2}, s{S_TT}, 10
        s_add_u32 s{S_T0}, s{S_T0}, s{S_T2}
        s_add_u32 s{S_X}, s{S_T0}, {hx(KVP_OFF)}
        s_lshl_b32 s{S_T0}, s{S_HP}, 2
        s_add_u32 s{S_T0}, s{S_T0}, s{S_T1}
        s_lshl_b32 s{S_T0}, s{S_T0}, 11
        s_add_u32 s{S_J}, s{S_T0}, {hx(ZP_OFF)}
        s_lshl_b32 s{S_T2}, s{S_MB}, {self.FG}
        s_lshl_b32 s{S_T3}, s{S_HP}, {self.FS}
        s_add_u32 s{S_FA}, s{S_T2}, s{S_T3}
        s_add_u32 s{S_FB}, s{S_FA}, {hx(F2B_OFF)}
        s_add_u32 s{S_FA}, s{S_FA}, {hx(F2A_OFF)}
        s_and_b32 s{S_T0}, s2, 7
        s_lshr_b32 s{S_T1}, s2, 3
        s_and_b32 s{S_T2}, s{S_T0}, 3
        s_lshl_b32 s{S_T2}, s{S_T2}, 2
        s_and_b32 s{S_T3}, s{S_T1}, 3
        s_add_u32 s{S_MB3}, s{S_T2}, s{S_T3}
        s_lshr_b32 s{S_T2}, s{S_T0}, 2
        s_lshl_b32 s{S_T2}, s{S_T2}, 3
        s_lshr_b32 s{S_T3}, s{S_T1}, 2
        s_add_u32 s{S_CT}, s{S_T2}, s{S_T3}
        s_and_b32 s{S_R}, s{S_CT}, {self.cfg.get('rotmask', 7)}
        s_mov_b32 s{sW}, s34
        s_mov_b32 s{sW+1}, s35
        s_mov_b32 s{sW+2}, {hx(2 << 20)}
        s_mov_b32 s{sW+3}, 0x20000
        s_mov_b32 s{sT}, s38
        s_mov_b32 s{sT+1}, s39
        s_mov_b32 s{sT+2}, {hx(2 << 20)}
        s_mov_b32 s{sT+3}, 0x20000
        s_and_b32 s{S_T0}, s{S_W}, 3
        s_lshl_b32 s{S_DWL}, s{S_BR}, 13
        s_lshl_b32 s{S_T0}, s{S_T0}, 11
        s_add_u32 s{S_DWL}, s{S_DWL}, s{S_T0}
        v_and_b32 v{tA}, 15, v{self.vL}
        v_lshlrev_b32 v{tA}, {self.FS}, v{tA}
        s_lshl_b32 s{S_T0}, s{S_HP}, {self.FG}
        v_add_u32 v{tA}, s{S_T0}, v{tA}""")
        ST = self.cfg.get('st', 3)
        Ma, Mb = (tA + 2, tA + 3) if ST else (self.vMa, self.vMb)
        if SMF and ST:
            e(self.sparse_index())
            for r in range(4):
                e(f'v_mov_b32 v{la + r}, 0')
                e(f'v_mov_b32 v{lb + r}, 0')
        if self.cfg.get('xsleep'):
            l = self.lab('xs')
            e(f's_cmp_eq_u32 s{S_BR}, 1')
            e(f's_cbranch_scc0 {l}')
            e(f's_sleep {self.cfg.get("xsleep")}')
            e(f'{l}:')
        EA = self.cfg.get('ea', 0)
        if EA:
            lsk = self.lab('aready')
            e(f's_cmp_eq_u32 s{S_BR}, 0')
            e(f's_cbranch_scc1 {lsk}')
            e(f's_lshl_b32 s{S_OFF}, s{S_MB}, 13')
        self.poll(tA, F1_OFF, tA + 1, sl=self.cfg.get('ps1', 1))
        if self.cfg.get('bhold', 0):
            l = self.lab('bh')
            e(f's_cmp_eq_u32 s{S_BR}, 1')
            e(f's_cbranch_scc0 {l}')
            e(f's_setprio {self.cfg.get("bhold") - 1}')
            e(f'{l}:')
        if self.cfg.get('inv') == 3:
            e('buffer_inv sc1 ;@skip')
        if not EA:
            self.stamp(5)
        if self.cfg.get('spinlog'):
            e(f'v_writelane_b32 v252, s{S_SPIN}, 63')
        self.tstamp3()
        e('@vmclear')
        kv = [x for j in range(3) for x in self.kv2(j)]
        n0 = 2 if ST else 0
        for x in kv[:n0]:
            e(x)
        n1 = {0: 12, 1: 6, 2: 2, 3: 4}[ST]
        if EA:
            assert ST == 3
            for x in kv[n0:n1]:
                e(x)
            e(f'{lsk}:')
            self.stamp(5)
        else:
            ln = self.lab('noF1b')
            e(f"""
            s_cmp_eq_u32 s{S_BR}, 0
            s_cbranch_scc0 {ln}""")
            self.count_and_flag(1, 3, f"""
            s_lshl_b32 s{S_T0}, s{S_HP}, {self.FG}
            s_lshl_b32 s{S_T1}, s{S_MB}, {self.FS}
            s_add_u32 s{S_T0}, s{S_T0}, s{S_T1}
            s_add_u32 s{S_T0}, s{S_T0}, {hx(F1B_OFF)}""", tA, tA + 1)
            e(f'{ln}:')
            for x in kv[n0:n1]:
                e(x)
        K0 = KVB[0]
        self.tstamp3()
        e('@wait K0')
        self.tstamp3()
        e(shadow([mf32(Sa, K0, Qa, 'z'), mf32(Sb, K0, Qb, 'z'),
                  mf32(Sa, K0 + 4, Qa + 4), mf32(Sb, K0 + 4, Qb + 4)], kv[n1:n1 + 4]))
        self.wave_rowmax(Sa, Ma, tA)
        self.wave_rowmax(Sb, Mb, tA)
        self.cross_half_max(Ma, tA)
        self.cross_half_max(Mb, tA)
        e(f'v_add_f32 v{Ma}, {hx(f2u(MOFF))}, v{Ma}')
        e(f'v_add_f32 v{Mb}, {hx(f2u(MOFF))}, v{Mb}')
        for r in range(16):
            e(f'v_sub_f32 v{Ca + r}, 0, v{Ma}')
        e(shadow([mf32(Sa, K0, Qa, Ca), mf32(Sa, K0 + 4, Qa + 4)], kv[n1 + 4:n1 + 6]))
        body = [f'v_sub_f32 v{Cb + r}, 0, v{Mb}' for r in range(16)]
        e(spread(body, kv[n1 + 6:], first=2))
        if SMF and not ST:
            e(self.sparse_index())
            for r in range(4):
                e(f'v_mov_b32 v{la + r}, 0')
                e(f'v_mov_b32 v{lb + r}, 0')
        v205, v206, v207 = 205, 206, 207
        low = set(self.cfg.get('low', [1, 4, 8, 11, 15, 18, 21, 24, 27, 30]))
        curp = -1
        if low:
            e('s_setprio 1')
        for T in range(32):
            cur, prev, nxt = KVB[T % 4], KVB[(T - 1) % 4], KVB[(T + 1) % 4]
            self.tstamp(T)
            if T in (0, 1, 2, 4, 8, 14, 15, 16, 24, 29, 31):
                self.tstamp3()
            if low:
                want = 0 if T in low else 2
                if want != curp:
                    l = self.lab('pr')
                    e(f's_cmp_eq_u32 s{S_BR}, 0')
                    e(f's_cbranch_scc0 {l}')
                    e(f's_setprio {want}')
                    e(f'{l}:')
                    curp = want
            if T == TX0:
                self.check_flags(v206, v207, F1B_OFF, 'f1b')
            if T == self.cfg.get('tca', 29) and self.cfg.get('tail', 3) == 3:
                self.check_flags(self.vFa, self.vFv, F2A_OFF, 'f2a')
            mfA = [mf32(Sb, cur, Qb, Cb), mf32(Sb, cur + 4, Qb + 4)]
            if T > 0:
                z = 'z' if T == 1 else None
                mfA += self.pv(Ob, lb, prev + 8, Pb, z)
            SH = self.cfg.get('shadow', 1)
            exA = self.kv2(T + 3)[:2] if (SH and self.cfg.get('kA', 1) and T + 3 <= 31) else []
            e(shadow(interleave(mfA, self.exp_block(Sa, Pa)), exA, skip=self.cfg.get('skipA', 1)))
            e(f'@wait K{T+1}' if T < 31 else '@wait V31')
            mfB = []
            i = T - 2 - TX0
            if 0 <= i < NX:
                e(f'@wait X{XR * i + XR - 1}')
                for m in range(XR * i, XR * i + XR):
                    mfB.append(mf32(XACC, XBUF[m % (2 * XR)], XI, 'z' if m == 0 else None))
            if T < 31:
                mfB += [mf32(Sa, nxt, Qa, Ca), mf32(Sa, nxt + 4, Qa + 4)]
            z = 'z' if T == 0 else None
            mfB += self.pv(Oa, la, cur + 8, Pa, z)
            body = interleave(mfB, self.exp_block(Sb, Pb))
            ex = []
            i = T - TX0
            if 0 <= i < NX:
                for m in range(XR * i, XR * i + XR):
                    ex.append([f'buffer_load_dwordx4 {vr(XBUF[m % (2 * XR)])}, v{self.vL16}, {srd(sWS)}, s{S_X} offen{self.cfg.get("xsc", " sc1")} ;@X{m}',
                               f's_add_u32 s{S_X}, s{S_X}, 8192'])
            if T == TX0:
                ex.append([f'v_and_b32 v{v207}, 31, v{self.vL}',
                           f'v_lshlrev_b32 v{v207}, 2, v{v207}',
                           f'v_lshl_add_u32 v{v207}, v{self.vHf}, 7, v{v207}'])
            if T in (TX0, TX0 + 1):
                for i in range(4 * (T - TX0), 4 * (T - TX0) + 4):
                    ex.append([f'buffer_load_dword v{XZ + i}, v{v207}, {srd(sWS)}, s{S_J} offen' +
                               (f' offset:{i * 256}' if i else '') + ' sc1 ;@z'])
            if T == TF:
                ex.append([f'v_and_b32 v{v206}, 15, v{self.vL}',
                           f'v_lshlrev_b32 v{v206}, {self.FS}, v{v206}',
                           f's_lshl_b32 s{S_T0}, s{S_HP}, {self.FG}',
                           f'v_add_u32 v{v206}, s{S_T0}, v{v206}',
                           f's_mov_b32 s{S_T1}, {hx(F1B_OFF)}',
                           f'buffer_load_dword v{v207}, v{v206}, {srd(sWS)}, s{S_T1} offen sc1 ;@f1b'])
            k = T - TM - 1
            t3 = self.cfg.get('tail', 3) == 3
            late = []
            if 0 <= k < (8 if t3 else 7):
                (late if self.cfg.get('dmalate', 1) else ex).append(self.wo_dma(k, 0, 'woA'))
                (late if self.cfg.get('dmalate', 1) else ex).append(self.wo_dma(k, 1, 'woA'))
            spf = self.cfg.get('spf', '')
            if k == 2 and (not self.cfg.get('wopf', 3) or 'v' in spf):
                (late if self.cfg.get('dmalate', 1) else ex).append(
                    [f'buffer_load_dword v{self.vS}, v{self.vPF}, {srd(sT)}, 0 offen'])
                (late if self.cfg.get('dmalate', 1) else ex).append(
                    [f's_mov_b32 s{S_T1}, {hx(64 * 2048)}',
                     f'buffer_load_dword v{self.vS}, v{self.vPF}, {srd(sT)}, s{S_T1} offen'])
            if self.cfg.get('wopf', 3) == 3:
                pn = self.cfg.get('spfn', 3)
                ta, tb = self.cfg.get('spfa', 0), TM + 3
                if T == ta:
                    ex.append(self.spf_base(34, 35))
                if T == tb:
                    ex.append(self.spf_base(38, 39))
                for t0_, nm in ((ta, 'A'), (tb, 'B')):
                    if nm in spf and T >= t0_ and (t0_ == tb or T < TM - 1):
                        ex += self.spf_loads((T - t0_) * pn, pn)
            if T == (self.cfg.get('tf2a', 27) if t3 else 30):
                ex.append([f's_mov_b32 s{S_T1}, {hx(F2A_OFF)}',
                           f'buffer_load_dword v{self.vFv}, v{self.vFa}, {srd(sWS)}, s{S_T1} offen sc1 ;@f2a'])
            PX = self.cfg.get('prex', 0)
            if PX:
                tx = self.cfg.get('tpx', self.cfg.get('tca', 29))
                assert self.cfg.get('tca', 29) <= tx and tx + 1 < 29 and self.cfg.get('tf2a', 27) < self.cfg.get('tca', 29)
                if T in (tx, tx + 1):
                    ex += self.oload_x(T - tx)
            if t3 and T >= 29:
                ex += self.oload_group(0, T - 29)
            if T + 3 <= 31:
                ex += self.kv2(T + 3)[len(exA):]
            ex += late
            xcons = 0 <= T - 2 - TX0 < NX
            if SH:
                e(shadow(body, ex, skip=(XR - 1 if xcons else 0)))
            else:
                e(spread(body, ex, first=(4 * XR - 2 if xcons else 2)))
            if k == 1:
                e('@wait oa')
                self.count_and_flag(2, 7, f's_mov_b32 s{S_T0}, s{S_FA}', self.vS + 1, self.vS + 2)
            if T == TM:
                self.tstamp3()
                self.midblock()
                if SMF:
                    e(self.sparse_index())
        prev = KVB[3]
        if low:
            e('s_setprio 0')
        e(self.pv(Ob, lb, prev + 8, Pb))
        self.tstamp3()
        self.sum_l()
        e(f'v_add_f32 v{tA}, v{la}, v{lb}')
        e(f'v_pk_add_f32 {vr(Sa, 2)}, {vr(Oa, 2)}, {vr(Oa + 2, 2)}')
        for r in range(4, 32, 2):
            e(f'v_pk_add_f32 {vr(Sa, 2)}, {vr(Sa, 2)}, {vr(Oa + r, 2)}')
        e(f"""
        v_add_f32 v{tA}, v{tA}, v{Sa}
        v_add_f32 v{tA}, v{tA}, v{Sa+1}
        v_mov_b32 v{tA-1}, 0x207
        v_cmp_class_f32 vcc, v{tA}, v{tA-1}
        s_cbranch_vccnz L_retry
        L_attn_done:""")
        self.tstamp3()

    def retry_path(self):
        e = self.emit
        Sa, Sb, Ca, Cb, Oa, Ob = self.Sa, self.Sb, self.Ca, self.Cb, self.Oa, self.Ob
        Qa, Qb = self.QF, self.QF + 8
        Pa, Pb, la, lb, ONES = self.Pa, self.Pb, self.la, self.lb, self.ONES
        KVB = self.KVB
        tA = self.vA
        K0 = KVB[0]
        e(f"""
        L_retry:
        s_waitcnt vmcnt(0)
        v_mov_b32 v{self.vMa}, 0xff800000
        v_mov_b32 v{self.vMb}, 0xff800000
        s_mov_b32 s{S_J}, 0
        L_truemax:""")
        e(self.tile_off(S_T0, S_J))
        e(self.kv_loads(0, f's{S_T0}')[:2])
        e('s_waitcnt vmcnt(0)')
        e(mf32(Sa, K0, Qa, 'z')); e(mf32(Sb, K0, Qb, 'z'))
        e(mf32(Sa, K0 + 4, Qa + 4)); e(mf32(Sb, K0 + 4, Qb + 4))
        for S, M in ((Sa, self.vMa), (Sb, self.vMb)):
            for i in range(0, 16, 2):
                e(f'v_max3_f32 v{M}, v{M}, v{S+i}, v{S+i+1}')
        e(f"""
        s_add_u32 s{S_J}, s{S_J}, 1
        s_cmp_lt_u32 s{S_J}, 32
        s_cbranch_scc1 L_truemax""")
        self.cross_half_max(self.vMa, tA)
        self.cross_half_max(self.vMb, tA)
        self.first_loads()
        e('s_waitcnt vmcnt(10)')
        V3 = KVB[3] + 8
        for r in range(8):
            e(f'v_mov_b32 v{V3 + r}, 0')
            e(f'v_mov_b32 v{Pb + r}, 0')
        for r in range(4):
            e(f'v_mov_b32 v{la + r}, 0')
            e(f'v_mov_b32 v{lb + r}, 0')
        for r in range(16):
            e(f'v_sub_f32 v{Ca + r}, 0, v{self.vMa}')
        e(mf32(Oa, V3, V3, 'z')); e(mf32(Ob, V3, V3, 'z'))
        for r in range(16):
            e(f'v_sub_f32 v{Cb + r}, 0, v{self.vMb}')
        e(mf32(Sa, K0, Qa, Ca)); e(mf32(Sa, K0 + 4, Qa + 4))
        if self.cfg.get('smf', 1):
            e(self.sparse_index())
        e(f's_mov_b32 s{S_IT}, 0')
        e('L_retry_loop:')
        for i4 in range(4):
            cur, prev, nxt = KVB[i4], KVB[(i4 - 1) % 4], KVB[(i4 + 1) % 4]
            mfA = [mf32(Sb, cur, Qb, Cb), mf32(Sb, cur + 4, Qb + 4)] + self.pv(Ob, lb, prev + 8, Pb)
            e(interleave(mfA, self.exp_block(Sa, Pa)))
            e(self.tile_off(S_T0, S_J))
            e(f's_add_u32 s{S_J}, s{S_J}, 1')
            e('s_waitcnt vmcnt(6)')
            mfB = [mf32(Sa, nxt, Qa, Ca), mf32(Sa, nxt + 4, Qa + 4)] + self.pv(Oa, la, cur + 8, Pa)
            body = interleave(mfB, self.exp_block(Sb, Pb))
            e(spread(body, [[x] for x in self.kv_loads((i4 + 3) % 4, f's{S_T0}')], first=4))
        e(f"""
        s_add_u32 s{S_IT}, s{S_IT}, 1
        s_cmp_lt_u32 s{S_IT}, 8
        s_cbranch_scc1 L_retry_loop""")
        prev = KVB[3]
        e(self.pv(Ob, lb, prev + 8, Pb))
        self.sum_l()
        e('s_waitcnt vmcnt(0)')
        if self.cfg.get('tail', 3) == 3:
            for g in range(3):
                for x in self.oload_group(0, g, skip=True):
                    e(x)
        e("""
        s_waitcnt vmcnt(0)
        s_branch L_attn_done""")

    def midblock(self):
        e = self.emit
        ACC, Z = self.XACC, self.XZ
        KT, PH = 208, 224
        ZF = [240, 244, 248, 116]
        N, D = self.Sb, self.Pa
        vLg, vA1, vA2, vA3 = 205, 206, 207, 113
        KP = 216
        self.stamp(7)
        self.tstamp4()
        e('@wait z')
        self.tstamp4()
        e(f'v_add_f32 v{Z}, v{Z}, v{Z+1}')
        for i in range(2, 8):
            e(f'v_add_f32 v{Z}, v{Z}, v{Z+i}')
        for i in range(8):
            e(cvt(KP + i, ACC + 2 * i, ACC + 2 * i + 1))
        e(f"""
        v_mov_b32 v{Z+1}, v{Z}
        s_lshl_b32 s{S_T0}, s{S_HD}, 1
        s_add_u32 s{S_T0}, s{S_T0}, s{S_BR}
        v_permlane32_swap_b32 v{Z}, v{Z+1}
        s_lshl_b32 s{S_T1}, s{S_T0}, 11
        s_add_u32 s{S_T1}, s{S_T1}, {hx(KTX)}
        v_add_u32 v{vA1}, s{S_T1}, v{self.vL16}
        v_add_f32 v{Z}, v{Z}, v{Z+1}
        s_lshl_b32 s{S_T1}, s{S_T0}, 6
        s_add_u32 s{S_T1}, s{S_T1}, {hx(ZT2)}
        v_and_b32 v{vA2}, 31, v{self.vL}
        v_lshlrev_b32 v{Z+1}, 1, v{vA2}
        v_add_u32 v{Z+1}, s{S_T1}, v{Z+1}
        v_cvt_pk_bf16_f32 v{Z}, v{Z}, v{Z}
        s_lshl_b32 s{S_T1}, s{S_TT}, 4
        s_lshl_b32 s{S_T1}, 0xffff, s{S_T1}
        ds_write_b16 v{Z+1}, v{Z}
        s_mov_b32 exec_lo, s{S_T1}
        s_mov_b32 exec_hi, s{S_T1}
        ds_write_b128 v{vA1}, {vr(KP)}
        ds_write_b128 v{vA1}, {vr(KP + 4)} offset:1024
        s_mov_b64 exec, -1
        s_lshl_b32 s{S_T0}, s{S_TT}, 6
        s_lshl_b32 s{S_T1}, s{S_BR}, 5
        s_add_u32 s{S_T0}, s{S_T0}, s{S_T1}
        s_lshl_b32 s{S_T0}, s{S_T0}, 2
        s_add_u32 s{S_T0}, s{S_T0}, {hx(LOGP)}
        v_lshlrev_b32 v{vA2}, 2, v{vA2}
        v_add_u32 v{vA2}, s{S_T0}, v{vA2}
        ds_read_b32 v{vLg}, v{vA2}
        ds_read_b32 v{vA3}, v{vA2} offset:512
        ds_read_b32 v{vA3+1}, v{vA2} offset:1024
        ds_read_b32 v{vA3+2}, v{vA2} offset:1536
        s_lshl_b32 s{S_T0}, s{S_HD}, 1
        s_add_u32 s{S_T0}, s{S_T0}, s{S_TT}
        s_lshl_b32 s{S_T0}, s{S_T0}, 13
        s_lshl_b32 s{S_T1}, s{S_BR}, 12
        s_add_u32 s{S_T0}, s{S_T0}, s{S_T1}
        s_add_u32 s{S_T0}, s{S_T0}, {hx(PHI)}
        v_add_u32 v{vA2}, s{S_T0}, v{self.vL16}""")
        for q in range(4):
            e(f'ds_read_b128 {vr(PH + 4 * q)}, v{vA2} offset:{(q >> 1) * 2048 + (q & 1) * 1024}')
        e(f"""
        s_waitcnt lgkmcnt(4)
        v_add_f32 v{vLg}, v{vLg}, v{vA3}
        v_add_f32 v{vA3+1}, v{vA3+1}, v{vA3+2}
        s_lshl_b32 s{S_T0}, s{S_HD}, 12
        s_add_u32 s{S_T0}, s{S_T0}, {hx(KTX)}
        v_add_f32 v{vLg}, v{vLg}, v{vA3+1}
        v_add_u32 v{vA1}, s{S_T0}, v{self.vL16}
        s_lshl_b32 s{S_T0}, s{S_HD}, 7
        s_add_u32 s{S_T0}, s{S_T0}, {hx(ZT2)}
        v_lshl_add_u32 v{vA3}, v{self.vHf}, 3, s{S_T0}
        v_mov_b32 v{vA3+1}, {hx(ZT0)}
        v_lshrrev_b32 v{vA3+2}, 2, v{self.vL}
        v_lshrrev_b32 v{vA2}, 4, v{self.vL}
        v_xor_b32 v{vA3+2}, v{vA3+2}, v{vA2}
        v_and_b32 v{vA3+2}, 1, v{vA3+2}
        v_cmp_eq_u32 vcc, 0, v{vA3+2}
        v_cndmask_b32 v{vA3}, v{vA3+1}, v{vA3}, vcc
        s_waitcnt lgkmcnt(0)""")
        if self.cfg.get('dbgphi'):
            l = self.lab('dbgphi')
            e(f'''
            s_cmp_eq_u32 s{S_BR}, 0
            s_cbranch_scc0 {l}
            s_lshl_b32 s{S_T0}, s2, 2
            s_add_u32 s{S_T0}, s{S_T0}, s{S_W}
            s_lshl_b32 s{S_T0}, s{S_T0}, 13
            s_add_u32 s{S_T0}, s{S_T0}, {hx((40 << 20) + 4096)}''')
            for q in range(4):
                e(f'buffer_store_dwordx4 {vr(PH + 4 * q)}, v{self.vL16}, {srd(sWS)}, s{S_T0} offen offset:{q * 1024} ;@skip')
            e(f'{l}:')
        self.tstamp4()
        e('s_barrier')
        self.tstamp4()
        for q in range(4):
            e(f'ds_read_b128 {vr(KT + 4 * q)}, v{vA1} offset:{(q >> 1) * 2048 + (q & 1) * 1024}')
        for q in range(4):
            o = (q >> 1) * 64 + (q & 1) * 32
            e(f'ds_read_b64 {vr(ZF[q], 2)}, v{vA3} offset:{o}')
            e(f'ds_read_b64 {vr(ZF[q] + 2, 2)}, v{vA3} offset:{o + 16}')
        e(f"""
        v_mul_f32 v{vLg}, s{S_L2E}, v{vLg}
        v_exp_f32 v{vLg}, -v{vLg}
        v_add_f32 v{vLg}, 1.0, v{vLg}
        v_rcp_f32 v{vLg}, v{vLg}
        s_waitcnt lgkmcnt(0)""")
        if self.cfg.get('b2', 0):
            e('s_barrier')
        self.tstamp4()
        for q in range(4):
            z = 'z' if q == 0 else None
            e(mf32(N, KT + 4 * q, PH + 4 * q, z))
            e(mf16(D, ZF[q], PH + 4 * q, z))
        t = self.vS
        assert t >= 232
        e(f"""
        s_and_b32 s{S_T0}, s{S_W}, 3
        s_lshl_b32 s{S_T1}, s{S_T0}, 4
        v_bfe_u32 v{self.vD3p}, v{self.vL}, 2, 3
        v_add_u32 v{self.vD3p}, s{S_T1}, v{self.vD3p}
        v_lshlrev_b32 v{self.vD3p}, 11, v{self.vD3p}
        v_lshl_add_u32 v{self.vD3p}, v{self.vHf}, 6, v{self.vD3p}
        v_and_b32 v{self.vO3}, 3, v{self.vL}
        v_lshl_add_u32 v{self.vD3p}, v{self.vO3}, 4, v{self.vD3p}
        s_lshl_b32 s{S_T1}, s{S_CT}, 7
        s_lshl_b32 s{S_T2}, s{S_BR}, 20
        s_add_u32 s{S_T2}, s{S_T2}, s{S_T1}
        v_add_u32 v{self.vD3p}, s{S_T2}, v{self.vD3p}
        v_bfe_u32 v{self.vR3}, v{self.vL}, 2, 2
        v_lshlrev_b32 v{self.vR3}, 6, v{self.vR3}
        v_bfe_u32 v{self.vR3b}, v{self.vL}, 4, 1
        v_lshl_add_u32 v{self.vR3}, v{self.vR3b}, 5, v{self.vR3}
        v_lshl_add_u32 v{self.vR3}, v{self.vO3}, 3, v{self.vR3}
        v_lshl_add_u32 v{self.vR3}, v{self.vHf}, 8, v{self.vR3}
        s_mul_i32 s{S_T2}, s{S_BR}, {8192 + (512 if self.cfg.get('fin2', 0) else 0)}
        v_add_u32 v{self.vR3}, s{S_T2}, v{self.vR3}
        v_add_u32 v{self.vR3b}, 0x10000, v{self.vR3}
        s_lshl_b32 s{S_T2}, s{S_MB3}, 2
        s_add_u32 s{S_T2}, s{S_T2}, s{S_T0}
        s_lshl_b32 s{S_T2}, s{S_T2}, 17
        s_lshl_b32 s{S_T3}, s{S_BR}, 15
        s_add_u32 s{S_T2}, s{S_T2}, s{S_T3}
        s_add_u32 s{S_T2}, s{S_T2}, {hx(O_OFF)}
        v_add_u32 v{self.vO3}, s{S_T2}, v{self.vL16}
        s_lshl_b32 s{S_T2}, s{S_W}, 7
        v_add_u32 v{self.vPF}, s{S_T2}, v{self.vL}
        v_lshlrev_b32 v{self.vPF}, 11, v{self.vPF}
        v_add_u32 v{self.vPF}, s{S_T1}, v{self.vPF}
        v_and_b32 v{self.vFa}, 15, v{self.vL}
        v_lshlrev_b32 v{self.vFa}, {self.FS}, v{self.vFa}
        s_lshl_b32 s{S_T2}, s{S_MB3}, {self.FG}
        v_add_u32 v{self.vFa}, s{S_T2}, v{self.vFa}
        v_sub_f32 v{self.vG1}, 1.0, v{vLg}
        v_add_f32 v{vA1}, {hx(f2u(1e-6))}, v{D}
        v_rcp_f32 v{vA1}, v{vA1}
        s_lshl_b32 s{S_T0}, s{S_MB}, 2
        s_lshl_b32 s{S_T1}, s{S_TT}, 1
        s_add_u32 s{S_T0}, s{S_T0}, s{S_T1}
        s_add_u32 s{S_T0}, s{S_T0}, s{S_BR}
        s_lshl_b32 s{S_T0}, s{S_T0}, 17
        s_lshl_b32 s{S_T1}, s{S_HEAD}, 11
        s_add_u32 s{S_T0}, s{S_T0}, s{S_T1}
        s_add_u32 s{S_X}, s{S_T0}, {hx(O_OFF)}
        v_mul_f32 v{vA1}, v{vA1}, v{vLg}""")
        self.tstamp4()
        for r in range(16):
            e(f'v_mul_f32 v{N+r}, v{N+r}, v{vA1}')
        for i in range(8):
            e(cvt(KT + i, N + 2 * i, N + 2 * i + 1))
        e(f"""
        buffer_store_dwordx4 {vr(KT)}, v{self.vL16}, {srd(sWS)}, s{S_X} offen sc1 ;@oa
        buffer_store_dwordx4 {vr(KT + 4)}, v{self.vL16}, {srd(sWS)}, s{S_X} offen offset:1024 sc1 ;@oa
        s_add_u32 s{S_X}, s{S_X}, 65536""")
        self.tstamp4()
        self.stamp(8)

    def tail2(self):
        e = self.emit
        Oa, Ob, la, lb = self.Oa, self.Ob, self.la, self.lb
        ACC0, ACC1 = 0, 16
        WB = [32, 40, 48, 56]
        OB = [140, 64]
        vR3, vR3b, vO3, vE = self.vR3, self.vR3b, self.vO3, self.vS
        t = self.vS

        def oloads(m):
            L = []
            for g in range(4):
                L += [f's_add_u32 s{S_T0}, s{S_R}, {(m & 1) * 4 + g}',
                      f's_and_b32 s{S_T0}, s{S_T0}, 7',
                      f's_lshl_b32 s{S_T0}, s{S_T0}, 12']
                if m >> 1:
                    L.append(f's_add_u32 s{S_T0}, s{S_T0}, 65536')
                for q in range(4):
                    L.append(f'buffer_load_dwordx4 {vr(OB[m & 1] + 16 * g + 4 * q)}, v{vO3}, {srd(sWS)}, s{S_T0} offen' +
                             (f' offset:{q * 1024}' if q else '') + f' sc1 ;@o{m}_{4 * g + q}')
            return L

        def wreads(m, n):
            q, h2, s = n >> 2, (n >> 1) & 1, n & 1
            slot = (4 * m + q) % 8
            base = vR3 if slot < 4 else vR3b
            o = (slot & 3) * 16384 + (h2 * 4 + 2 * s) * 1024
            b = WB[n & 3]
            return [f'ds_read_b64_tr_b16 {vr(b, 2)}, v{base} offset:{o}',
                    f'ds_read_b64_tr_b16 {vr(b + 2, 2)}, v{base} offset:{o + 1024}',
                    f'ds_read_b64_tr_b16 {vr(b + 4, 2)}, v{base} offset:{o + 512}',
                    f'ds_read_b64_tr_b16 {vr(b + 6, 2)}, v{base} offset:{o + 1536}']

        def macro(m):
            e(wreads(m, 0)); e(wreads(m, 1))
            for n in range(16):
                if n + 2 < 16:
                    e(wreads(m, n + 2))
                    e('s_waitcnt lgkmcnt(8)')
                elif n == 14:
                    e('s_waitcnt lgkmcnt(4)')
                else:
                    e('s_waitcnt lgkmcnt(0)')
                e(f'@wait o{m}_{n}')
                b = WB[n & 3]
                of = OB[m & 1] + 4 * n
                first = 'z' if (m == 0 and n == 0) else None
                e(mf32(ACC0, b, of, first))
                e(mf32(ACC1, b + 4, of, first))

        self.stamp(6)
        self.tstamp2()
        e(f"""
        v_sub_f32 v{self.vMa}, 0, v{self.Ca}
        v_sub_f32 v{self.vMb}, 0, v{self.Cb}""")
        self.check_flags(self.vFa, self.vFv, F2A_OFF, 'f2a')
        self.tstamp2()
        e(oloads(0))
        self.tstamp2()
        e(f"""
        v_rcp_f32 v{lb+1}, v{lb}
        v_log_f32 v{lb+2}, v{lb}
        s_mul_i32 s{S_T0}, s{S_W}, {MRG2_STRIDE}
        s_add_u32 s{S_T0}, s{S_T0}, {hx(MRG2)}
        v_add_u32 v{t}, s{S_T0}, v{self.vL16}
        v_lshlrev_b32 v{t+1}, 2, v{self.vL}
        v_add_u32 v{t+2}, s{S_T0}, v{t+1}
        v_add_f32 v{lb+2}, v{lb+2}, v{self.vMb}""")
        for q in range(4):
            for r in range(4):
                e(f'v_mul_f32 v{Ob+4*q+r}, v{Ob+4*q+r}, v{lb+1}')
            e(f'ds_write_b128 v{t}, {vr(Ob + 4 * q)} offset:{q * 1024}')
        e(f"""
        ds_write_b32 v{t+2}, v{lb+2} offset:4096
        v_rcp_f32 v{la+1}, v{la}
        v_log_f32 v{la+2}, v{la}
        s_xor_b32 s{S_T1}, s{S_W}, 4
        s_mul_i32 s{S_T0}, s{S_T1}, {MRG2_STRIDE}
        s_add_u32 s{S_T0}, s{S_T0}, {hx(MRG2)}
        v_add_u32 v{t}, s{S_T0}, v{self.vL16}
        v_add_u32 v{t+2}, s{S_T0}, v{t+1}
        v_add_f32 v{la+2}, v{la+2}, v{self.vMa}""")
        for r in range(16):
            e(f'v_mul_f32 v{Oa+r}, v{Oa+r}, v{la+1}')
        self.tstamp2()
        e("""
        s_waitcnt lgkmcnt(0)
        @wait woA
        s_barrier""")
        self.tstamp2()
        RO, RL = 0, 16
        e(f'ds_read_b32 v{RL}, v{t+2} offset:4096')
        for q in range(4):
            e(f'ds_read_b128 {vr(RO + 4 * q)}, v{t} offset:{q * 1024}')
        La = la + 2
        e(f"""
        s_waitcnt lgkmcnt(4)
        v_max_f32 v20, v{La}, v{RL}
        v_sub_f32 v21, v{La}, v20
        v_sub_f32 v22, v{RL}, v20
        v_exp_f32 v21, v21
        v_exp_f32 v22, v22
        v_add_f32 v23, v21, v22
        v_rcp_f32 v23, v23
        v_mul_f32 v23, v23, v{self.vG1}
        v_mul_f32 v21, v21, v23
        v_mul_f32 v22, v22, v23
        s_waitcnt lgkmcnt(0)
        s_barrier""")
        self.tstamp2()
        e(self.wo_dma(7, 0, 'wo7')); e(self.wo_dma(7, 1, 'wo7'))
        for r in range(16):
            e(f'v_mul_f32 v{Oa+r}, v{Oa+r}, v21')
            e(f'v_fma_f32 v{Oa+r}, v{RO+r}, v22, v{Oa+r}')
        OBF = 128
        for i in range(8):
            e(cvt(OBF + i, Oa + 2 * i, Oa + 2 * i + 1))
        e(f"""
        buffer_store_dwordx4 {vr(OBF)}, v{self.vL16}, {srd(sWS)}, s{S_X} offen sc1 ;@ob
        buffer_store_dwordx4 {vr(OBF+4)}, v{self.vL16}, {srd(sWS)}, s{S_X} offen offset:1024 sc1 ;@ob""")
        e(oloads(1))
        self.stamp(9)
        self.tstamp2()
        macro(0)
        self.tstamp2()
        e('@wait ob')
        self.tstamp2()
        self.count_and_flag(3, 7, f's_mov_b32 s{S_T0}, s{S_FB}', t, t + 1)
        e(f"""
        s_mov_b32 s{sW}, s38
        s_mov_b32 s{sW+1}, s39
        s_barrier""")
        self.tstamp2()
        for st in range(8, 12):
            e(self.wo_dma(st, 0, 'wo8')); e(self.wo_dma(st, 1, 'wo8'))
        self.tstamp2()
        macro(1)
        self.tstamp2()
        self.poll(self.vFa, F2B_OFF, self.vFv)
        e('@vmclear')
        self.stamp(10)
        self.tstamp2()
        e(oloads(2)); e(oloads(3))
        self.tstamp2()
        e('s_barrier')
        self.tstamp2()
        for st in range(12, 16):
            e(self.wo_dma(st, 0, 'wo12')); e(self.wo_dma(st, 1, 'wo12'))
        macro(2)
        self.tstamp2()
        e('@wait wo12')
        e('s_barrier')
        self.tstamp2()
        macro(3)
        self.tstamp2()
        self.stamp(11)
        self.final_store()

    OBK = [140, 64]

    def oload_group(self, m, g, skip=False):
        L = []
        for q in range(4):
            x = []
            if q == 0:
                x += [f's_add_u32 s{S_OO}, s{S_R}, {(m & 1) * 4 + g}',
                      f's_and_b32 s{S_OO}, s{S_OO}, 7',
                      f's_lshl_b32 s{S_OO}, s{S_OO}, 12']
                if m >> 1:
                    x.append(f's_add_u32 s{S_OO}, s{S_OO}, 65536')
            tag = 'skip' if skip else f'o{m}_{4 * g + q}'
            x.append(f'buffer_load_dwordx4 {vr(self.OBK[m & 1] + 16 * g + 4 * q)}, v{self.vO3}, {srd(sWS)}, s{S_OO} offen' +
                     (f' offset:{q * 1024}' if q else '') + f'{self.cfg.get("osc", " sc1")} ;@{tag}')
            L.append(x)
        return L

    XO = [208, 212, 216, 220, 240, 244, 248]

    def oload_x(self, g):
        L = []
        for q, x in enumerate(self.oload_group(1, g)):
            n = 4 * g + q
            if n < self.cfg.get('prex', 0):
                old = vr(self.OBK[1] + 4 * n)
                L.append([y.replace(old, vr(self.XO[n])) for y in x])
        return L

    def tail3(self):
        e = self.emit
        cfg = self.cfg
        Oa, Ob, la, lb = self.Oa, self.Ob, self.la, self.lb
        ACC0, ACC1 = 0, 16
        WB = [32, 40, 48, 56]
        OB = self.OBK
        vR3, vR3b = self.vR3, self.vR3b
        t = self.vS
        FIN = cfg.get('fin2', 0)
        vSn, vSnb = 208, 209

        def hread(s, send, b):
            st, h2, k = s >> 2, (s >> 1) & 1, s & 1
            slot = st % 8
            base = ((vSn, vSnb) if send else (vR3, vR3b))[slot >= 4]
            o = (slot & 3) * 16384 + (h2 * 4 + 2 * k) * 1024
            return [f'ds_read_b64_tr_b16 {vr(b, 2)}, v{base} offset:{o}',
                    f'ds_read_b64_tr_b16 {vr(b + 2, 2)}, v{base} offset:{o + 1024}']

        def wreads(s):
            st, h2, k = s >> 2, (s >> 1) & 1, s & 1
            slot = st % 8
            base = vR3 if slot < 4 else vR3b
            o = (slot & 3) * 16384 + (h2 * 4 + 2 * k) * 1024
            b = WB[s & 3]
            if FIN:
                return hread(s, False, b) + hread(s, True, b + 4)
            return [f'ds_read_b64_tr_b16 {vr(b, 2)}, v{base} offset:{o}',
                    f'ds_read_b64_tr_b16 {vr(b + 2, 2)}, v{base} offset:{o + 1024}',
                    f'ds_read_b64_tr_b16 {vr(b + 4, 2)}, v{base} offset:{o + 512}',
                    f'ds_read_b64_tr_b16 {vr(b + 6, 2)}, v{base} offset:{o + 1536}']

        ol = lambda m: [x for g in range(4) for x in self.oload_group(m, g)]
        o1, o2, o3 = ol(1), ol(2), ol(3)
        pre1 = cfg.get('pre1', 2)

        self.stamp(6)
        self.tstamp2()
        for x in self.oload_group(0, 3):
            e(x)
        if FIN:
            assert not cfg.get('prex', 0) and FIN % 4 == 0 and not cfg.get('dyn', 0)
            e(f'v_xor_b32 v{vSn}, 512, v{vR3}')
            e(f'v_xor_b32 v{vSnb}, 512, v{vR3b}')
        if cfg.get('dyn', 0):
            self.dyn_setup()
        early = o1[16 - 4 * pre1:]
        body = f"""
        v_sub_f32 v{self.vMa}, 0, v{self.Ca}
        v_sub_f32 v{self.vMb}, 0, v{self.Cb}
        v_rcp_f32 v{lb+1}, v{lb}
        v_log_f32 v{lb+2}, v{lb}
        s_mul_i32 s{S_T0}, s{S_W}, {MRG3_STRIDE}
        s_add_u32 s{S_T0}, s{S_T0}, {hx(MRG3)}
        v_add_u32 v{t}, s{S_T0}, v{self.vL16}
        v_lshlrev_b32 v{t+1}, 2, v{self.vL}
        v_add_u32 v{t+2}, s{S_T0}, v{t+1}
        v_add_f32 v{lb+2}, v{lb+2}, v{self.vMb}
        s_mov_b32 s{sW}, s38
        s_mov_b32 s{sW+1}, s39""".split('\n')
        for h in range(2):
            for r in range(8):
                body.append(f'v_mul_f32 v{Ob+8*h+r}, v{Ob+8*h+r}, v{lb+1}')
            for i in range(4):
                body.append(cvt(4 * h + i, Ob + 8 * h + 2 * i, Ob + 8 * h + 2 * i + 1))
            body.append(f'ds_write_b128 v{t}, {vr(4 * h)} offset:{h * 1024}')
        body += f"""
        ds_write_b32 v{t+2}, v{lb+2} offset:2048
        v_rcp_f32 v{la+1}, v{la}
        v_log_f32 v{la+2}, v{la}
        s_xor_b32 s{S_T1}, s{S_W}, 4
        s_mul_i32 s{S_T0}, s{S_T1}, {MRG3_STRIDE}
        s_add_u32 s{S_T0}, s{S_T0}, {hx(MRG3)}
        v_add_u32 v{t}, s{S_T0}, v{self.vL16}
        v_add_u32 v{t+2}, s{S_T0}, v{t+1}
        v_add_f32 v{la+2}, v{la+2}, v{self.vMa}""".split('\n')
        n0 = len(body)
        for r in range(16):
            body.append(f'v_mul_f32 v{Oa+r}, v{Oa+r}, v{la+1}')
        e(spread(body, early, first=n0 - 9 if cfg.get('late1', 1) else 4))
        self.tstamp2()
        e("""
        s_waitcnt lgkmcnt(0)
        @wait woA
        s_barrier""")
        self.tstamp2()
        RO, RL = 8, 16
        e(f'ds_read_b32 v{RL}, v{t+2} offset:2048')
        for q in range(2):
            e(f'ds_read_b128 {vr(RO + 4 * q)}, v{t} offset:{q * 1024}')
        e(wreads(0)); e(wreads(1))
        La = la + 2
        e(f"""
        s_waitcnt lgkmcnt(10)
        v_max_f32 v20, v{La}, v{RL}
        v_sub_f32 v21, v{La}, v20
        v_sub_f32 v22, v{RL}, v20
        v_exp_f32 v21, v21
        v_exp_f32 v22, v22
        v_mov_b32 v24, 0xffff0000
        v_add_f32 v23, v21, v22
        v_rcp_f32 v23, v23
        v_mul_f32 v23, v23, v{self.vG1}
        v_mul_f32 v21, v21, v23
        v_mul_f32 v22, v22, v23
        s_waitcnt lgkmcnt(8)""")
        OBF = 128
        for i in range(8):
            e(f'v_lshlrev_b32 v25, 16, v{RO+i}')
            e(f'v_and_b32 v26, v24, v{RO+i}')
            e(f'v_mul_f32 v{Oa+2*i}, v{Oa+2*i}, v21')
            e(f'v_mul_f32 v{Oa+2*i+1}, v{Oa+2*i+1}, v21')
            e(f'v_fma_f32 v{Oa+2*i}, v25, v22, v{Oa+2*i}')
            e(f'v_fma_f32 v{Oa+2*i+1}, v26, v22, v{Oa+2*i+1}')
            e(cvt(OBF + i, Oa + 2 * i, Oa + 2 * i + 1))
            if i in (3, 7):
                h = i >> 2
                e(f'buffer_store_dwordx4 {vr(OBF + 4 * h)}, v{self.vL16}, {srd(sWS)}, s{S_X} offen' +
                  (' offset:1024' if h else '') + ' sc1 ;@ob')
        self.stamp(9)
        self.tstamp2()
        post = {s: [] for s in range(64)}
        pre = {s: [] for s in range(64)}
        rest1 = o1[:16 - 4 * pre1]
        PX = cfg.get('prex', 0)
        if PX:
            pref = o1[PX & ~3][:-1] if PX & 3 else []
            rest1 = rest1[PX:]
            if rest1:
                rest1[0] = pref + rest1[0]
        for n, x in enumerate(rest1):
            post[n].append(x)
        nf = cfg.get('nf', 4)
        lnf = self.lab('noflagB')
        post[nf].insert(0, ['@wait ob', 's_mov_b64 exec, 1', f'v_mov_b32 v{t}, {hx(CNT + 12)}', f'v_mov_b32 v{t+1}, 1',
                            f'ds_add_rtn_u32 v{t+1}, v{t}, v{t+1}', 's_mov_b64 exec, -1'])
        post[nf + 2].insert(0, ['s_mov_b64 exec, 1', f'v_cmp_ne_u32 vcc, 7, v{t+1}', f's_cbranch_vccnz {lnf}',
                                f'v_mov_b32 v{t+1}, 1', f'v_mov_b32 v{t}, 0',
                                f'buffer_store_dword v{t+1}, v{t}, {srd(sWS)}, s{S_FB} offen sc1 ;@skip',
                                f'{lnf}:', 's_mov_b64 exec, -1'])
        bar = {}
        for j in range(6):
            s0 = 8 * j + 7
            bar[s0] = None if j < 2 else f'wo{8 + 2 * (j - 2)}'
            if j < 4:
                w = [self.wo_dma(st, i, f'wo{8 + 2 * j}') for st in (8 + 2 * j, 9 + 2 * j) for i in range(2)]
                for n, x in enumerate(w):
                    post[s0 + cfg.get('woff', 0) + n * cfg.get('wstep', 1)].append(x)
        nc = cfg.get('nc', 28)
        DYN = cfg.get('dyn', 0)
        if not DYN:
            nb = nc - cfg.get('nbd', 4)
            post[nb].append([f's_mov_b32 s{S_T1}, {hx(F2B_OFF)}',
                             f'buffer_load_dword v{self.vFv}, v{self.vFa}, {srd(sWS)}, s{S_T1} offen sc1 ;@f2b'])
            for n, x in enumerate(o2):
                post[min(nc + (n * cfg.get('o2n', 8)) // 16, 63)].append(x)
            s3 = cfg.get('s3', 36)
            for n, x in enumerate(o3):
                post[max(s3 + (n * cfg.get('o3n', 16)) // 16, nc if n < cfg.get('prex', 0) else 16 + n)].append(x)
        else:
            nc = -1
            self.dyn_schedule(post)
        marks = set(cfg.get('marks', [15, 19, 31, 47]))
        S0 = 64 - FIN
        HB = [32 + 4 * i for i in range(8)]
        hs = lambda h: (S0 + h, True) if h < FIN else (S0 + h - FIN, False)
        hr = lambda h: hread(*hs(h), HB[h % 8])
        for s in range(S0):
            m, n = s >> 4, s & 15
            if DYN and s == 28:
                self.tstamp2()
                self.stamp(10)
                self.tstamp2()
            if s == nc:
                self.tstamp2()
                self.check_flags(self.vFa, self.vFv, F2B_OFF, 'f2b')
                self.stamp(10)
                self.tstamp2()
            if s + 2 < S0:
                e(wreads(s + 2))
                e('s_waitcnt lgkmcnt(8)')
            elif FIN:
                h = 2 * (s + 2 - S0)
                e(hr(h)); e(hr(h + 1))
                e('s_waitcnt lgkmcnt(8)')
            elif s == 62:
                e('s_waitcnt lgkmcnt(4)')
            else:
                e('s_waitcnt lgkmcnt(0)')
            e(f'@wait o{m}_{n}')
            b = WB[s & 3]
            of = self.XO[n] if (m == 1 and n < cfg.get('prex', 0)) else OB[m & 1] + 4 * n
            first = 'z' if s == 0 else None
            e(mf32(ACC0, b, of, first))
            e(mf32(ACC1, b + 4, of, first))
            if s in bar:
                if bar[s]:
                    e(f'@wait {bar[s]}')
                e('s_barrier')
            for x in post[s]:
                e(x)
            if s in marks:
                self.tstamp2()
        if FIN:
            assert not any(post[s] for s in range(S0, 64))
            self.final_halves(FIN, hs, hr, HB)
            return
        self.tstamp2()
        self.stamp(11)
        self.final_store()

    def final_halves(self, FIN, hs, hr, HB):
        e = self.emit
        cfg = self.cfg
        ACC0, ACC1 = 0, 16
        OB = self.OBK
        vE = self.vS
        R = 140
        ds = ['h0', 'h0', 'h1', 'h1', 'h2', 'h2', 'h3', 'h3']

        def dswait(tag):
            i = max(k for k, x in enumerate(ds) if x == tag)
            e(f's_waitcnt lgkmcnt({len(ds) - 1 - i})')

        w0 = FIN + cfg.get('fw0', 2)
        nb = w0 + 3 + cfg.get('fwb', 2)
        assert nb < 2 * FIN
        e(f"""
        s_lshl_b32 s{S_T0}, s{S_W}, 12
        s_add_u32 s{S_T0}, s{S_T0}, {hx(XCH2)}
        v_add_u32 v{vE}, s{S_T0}, v{self.vL16}
        s_xor_b32 s{S_T1}, s{S_W}, 4
        s_lshl_b32 s{S_T0}, s{S_T1}, 12
        s_add_u32 s{S_T0}, s{S_T0}, {hx(XCH2)}
        v_add_u32 v{vE+1}, s{S_T0}, v{self.vL16}
        s_lshl_b32 s{S_T0}, s{S_MB3}, 7
        s_and_b32 s{S_T1}, s{S_W}, 3
        s_lshl_b32 s{S_T1}, s{S_T1}, 5
        s_add_u32 s{S_T0}, s{S_T0}, s{S_T1}
        v_and_b32 v{vE+2}, 31, v{self.vL}
        v_add_u32 v{vE+2}, s{S_T0}, v{vE+2}
        v_lshlrev_b32 v{vE+2}, 11, v{vE+2}
        v_lshl_add_u32 v{vE+2}, v{self.vHf}, 4, v{vE+2}
        s_lshl_b32 s{S_T0}, s{S_CT}, 7
        s_lshl_b32 s{S_T1}, s{S_BR}, 6
        s_add_u32 s{S_T0}, s{S_T0}, s{S_T1}
        v_add_u32 v{vE+2}, s{S_T0}, v{vE+2}""")
        for h in range(2 * FIN):
            s, send = hs(h)
            if h + 4 < 2 * FIN:
                e(hr(h + 4))
                ds += [f'h{h + 4}'] * 2
            dswait(f'h{h}')
            if send:
                e(f'@wait o{s >> 4}_{s & 15}')
            e(mf32(ACC1 if send else ACC0, HB[h % 8], OB[(s >> 4) & 1] + 4 * (s & 15)))
            if w0 <= h < w0 + 4:
                q = h - w0
                e(f'ds_write_b128 v{vE}, {vr(ACC1 + 4 * q)} offset:{q * 1024}')
                ds.append('w')
            if h == nb:
                dswait('w')
                e('s_barrier')
                for q in range(4):
                    e(f'ds_read_b128 {vr(R + 4 * q)}, v{vE+1} offset:{q * 1024}')
                    ds.append('r')
        self.tstamp2()
        self.stamp(11)
        dswait('r')
        for r in range(16):
            e(f'v_add_f32 v{ACC0+r}, v{ACC0+r}, v{R+r}')
        P = 48
        for i in range(8):
            e(cvt(P + i, ACC0 + 2 * i, ACC0 + 2 * i + 1))
        for u in range(2):
            e(f'v_permlane32_swap_b32 v{P+4*u}, v{P+4*u+2}')
            e(f'v_permlane32_swap_b32 v{P+4*u+1}, v{P+4*u+3}')
        for u in range(2):
            e(f'buffer_store_dwordx4 {vr(P + 4 * u)}, v{vE+2}, {srd(sOUT)}, 0 offen' + (f' offset:{u * 32}' if u else '') +
              self.cfg.get('ost', ''))

    def dyn_setup(self):
        fa = self.vFa
        m = self.cfg.get('r2m', 2)
        if m == 2:
            self.emit(f"""
            s_and_b32 s{S_T0}, s{S_CT}, 7
            s_sub_u32 s{S_T1}, s{S_T0}, 6
            s_cmp_ge_u32 s{S_T0}, 6
            s_cselect_b32 s{S_T0}, s{S_T1}, s{S_T0}
            s_lshl_b32 s{S_T0}, s{S_T0}, 2
            s_lshr_b32 s{S_T1}, 0x765432, s{S_T0}
            s_sub_u32 s{S_T0}, 24, s{S_T0}
            s_lshl_b32 s{S_T0}, 0x765432, s{S_T0}
            s_or_b32 s{S_T0}, s{S_T0}, s{S_T1}
            s_and_b32 s{S_T0}, s{S_T0}, 0xffffff
            s_or_b32 s{S_T0}, s{S_T0}, 0x10000000
            s_and_b32 s{S_T1}, s{S_HP}, 6""")
        elif m == 0:
            self.emit(f"""
            s_mov_b32 s{S_T0}, 0x10765432
            s_and_b32 s{S_T1}, s{S_HP}, 6""")
        else:
            self.emit(f"""
            s_mov_b32 s{S_T0}, 0x76543210
            s_mov_b32 s{S_T1}, s{S_R}""")
        self.emit(f"""
        s_mul_i32 s{S_T1}, s{S_T1}, 0x11111111
        s_add_u32 s{S_T0}, s{S_T0}, s{S_T1}
        s_and_b32 s{S_R2}, s{S_T0}, 0x77777777
        s_mov_b32 s{S_VAL}, 0
        s_mov_b32 s{S_FM}, 0
        v_and_b32 v{fa}, 7, v{self.vL}
        v_lshlrev_b32 v{fa}, 2, v{fa}
        v_lshrrev_b32 v{fa}, v{fa}, s{S_R2}
        v_and_b32 v{fa}, 7, v{fa}
        s_lshl_b32 s{S_T0}, s{S_BR}, 3
        v_add_u32 v{fa}, s{S_T0}, v{fa}
        v_lshlrev_b32 v{fa}, {self.FS}, v{fa}
        s_lshl_b32 s{S_T0}, s{S_MB3}, {self.FG}
        v_add_u32 v{fa}, s{S_T0}, v{fa}
        s_mov_b32 s{sT}, s46
        s_mov_b32 s{sT+1}, s47
        s_mov_b32 s{sT+2}, 0
        s_mov_b32 s{sT+3}, 0x20000""")
        if self.dyn_snaps() and self.dyn_snap_step(self.dyn_snaps()[0]) < 0:
            self.emit(self.dyn_snap(self.dyn_snaps()[0]))

    def dyn_esteps(self):
        return self.cfg.get('es') or [self.cfg.get('e0', 8) + 4 * g for g in range(8)]

    def dyn_snaps(self):
        return self.cfg.get('snaps', list(range(8)))

    def dyn_snap_step(self, g):
        return self.dyn_esteps()[g] - self.cfg.get('sl', 7)

    def dyn_snap(self, g):
        return [f's_mov_b32 s{S_T1}, {hx(F1_OFF if self.cfg.get("snapdbg") else F2B_OFF)}',
                f'buffer_load_dword v{self.vFv}, v{self.vFa}, {srd(sWS)}, s{S_T1} offen sc1 ;@fs{g}']

    def dyn_schedule(self, post):
        cfg = self.cfg
        lgap = cfg.get('lgap', 12)
        esteps = self.dyn_esteps()
        edq = cfg.get('edq', 1)
        lsteps = cfg.get('ls') or [esteps[g] + lgap for g in range(8)]
        snaps = self.dyn_snaps()
        for g in snaps:
            if self.dyn_snap_step(g) >= 0:
                post[self.dyn_snap_step(g)].append(self.dyn_snap(g))

        def offs(dst, g):
            return [f's_bfe_u32 s{dst}, s{S_R2}, {hx(4 * g | 3 << 16)}',
                    f's_lshl_b32 s{dst}, s{dst}, 12',
                    f's_add_u32 s{dst}, s{dst}, 65536']

        def load(g, q, srdb, so, tag):
            return (f'buffer_load_dwordx4 {vr(self.OBK[g >> 2] + 16 * (g & 3) + 4 * q)}, v{self.vO3}, {srd(srdb)}, s{so} offen' +
                    (f' offset:{q * 1024}' if q else '') + f' sc1 ;@{tag}')

        for g in range(8):
            assert lsteps[g] > esteps[g] + 3 * edq and esteps[g] >= 4 * g + 1 and esteps[g] >= 8
            for q in range(4):
                x = []
                if q == 0:
                    if g in snaps:
                        x += [f'@wait fs{g}',
                              f'v_cmp_eq_u32 vcc, 1, v{self.vFv}',
                              f's_mov_b32 s{S_FM}, vcc_lo']
                    if cfg.get('dynx'):
                        x += [f's_mov_b32 s{S_FM}, -1']
                    x += [f's_bitcmp1_b32 s{S_FM}, {g}',
                          f's_cselect_b32 s{sT+2}, {hx(WS_SIZE)}, 0',
                          f's_cselect_b32 s{S_T1}, {1 << g}, 0',
                          f's_or_b32 s{S_VAL}, s{S_VAL}, s{S_T1}'] + offs(S_OO, g)
                x.append(load(g, q, sT, S_OO, 'early'))
                post[esteps[g] + q * edq].append(x)
            lskip, lgo, lp = self.lab('dsk'), self.lab('dgo'), self.lab('dpl')
            x = [f's_bitcmp1_b32 s{S_VAL}, {g}',
                 f's_cbranch_scc1 {lskip}',
                 f's_bitcmp1_b32 s{S_FM}, {g}',
                 f's_cbranch_scc1 {lgo}',
                 f's_mov_b32 s{S_SPIN}, 0',
                 f's_mov_b32 s{S_T4}, {hx(F2B_OFF)}',
                 f'{lp}:',
                 f'buffer_load_dword v{self.vFv}, v{self.vFa}, {srd(sWS)}, s{S_T4} offen sc1 ;@skip',
                 's_waitcnt vmcnt(0)',
                 f'v_cmp_eq_u32 vcc, 1, v{self.vFv}',
                 f's_mov_b32 s{S_FM}, vcc_lo',
                 f's_bitcmp1_b32 s{S_FM}, {g}',
                 f's_cbranch_scc1 {lgo}',
                 f's_add_u32 s{S_SPIN}, s{S_SPIN}, 1',
                 f's_cmp_ge_u32 s{S_SPIN}, {hx(SPIN)}',
                 f's_cbranch_scc1 {lgo}',
                 f's_sleep {cfg.get("ps2", 1)}',
                 f's_branch {lp}',
                 f'{lgo}:'] + offs(S_OL, g)
            for q in range(4):
                m, n = 2 + (g >> 2), 4 * (g & 3) + q
                x.append(load(g, q, sWS, S_OL, f'o{m}_{n}~L{g}'))
            x.append(f'{lskip}:')
            post[lsteps[g]].insert(0, x)

    def final_store(self):
        e = self.emit
        ACC0, ACC1 = 0, 16
        vE = self.vS
        lA = self.lab('keep1')
        lB = self.lab('kept')
        e(f"""
        s_lshl_b32 s{S_T0}, s{S_W}, 12
        s_add_u32 s{S_T0}, s{S_T0}, {hx(XCH2)}
        v_add_u32 v{vE}, s{S_T0}, v{self.vL16}
        s_xor_b32 s{S_T1}, s{S_W}, 4
        s_lshl_b32 s{S_T0}, s{S_T1}, 12
        s_add_u32 s{S_T0}, s{S_T0}, {hx(XCH2)}
        v_add_u32 v{vE+1}, s{S_T0}, v{self.vL16}
        s_cmp_eq_u32 s{S_BR}, 1
        s_cbranch_scc1 {lA}""")
        for q in range(4):
            e(f'ds_write_b128 v{vE}, {vr(ACC1 + 4 * q)} offset:{q * 1024}')
        e(f's_branch {lB}')
        e(f'{lA}:')
        for q in range(4):
            e(f'ds_write_b128 v{vE}, {vr(ACC0 + 4 * q)} offset:{q * 1024}')
        for r in range(16):
            e(f'v_mov_b32 v{ACC0+r}, v{ACC1+r}')
        e(f'{lB}:')
        e("""
        s_waitcnt lgkmcnt(0)
        s_barrier""")
        R = 32
        for q in range(4):
            e(f'ds_read_b128 {vr(R + 4 * q)}, v{vE+1} offset:{q * 1024}')
        e(f"""
        s_lshl_b32 s{S_T0}, s{S_MB3}, 7
        s_and_b32 s{S_T1}, s{S_W}, 3
        s_lshl_b32 s{S_T1}, s{S_T1}, 5
        s_add_u32 s{S_T0}, s{S_T0}, s{S_T1}
        v_and_b32 v{vE}, 31, v{self.vL}
        v_add_u32 v{vE}, s{S_T0}, v{vE}
        v_lshlrev_b32 v{vE}, 11, v{vE}
        v_lshl_add_u32 v{vE}, v{self.vHf}, 4, v{vE}
        s_lshl_b32 s{S_T0}, s{S_CT}, 7
        s_lshl_b32 s{S_T1}, s{S_BR}, 6
        s_add_u32 s{S_T0}, s{S_T0}, s{S_T1}
        v_add_u32 v{vE}, s{S_T0}, v{vE}
        s_waitcnt lgkmcnt(0)""")
        for r in range(16):
            e(f'v_add_f32 v{ACC0+r}, v{ACC0+r}, v{R+r}')
        P = 48
        for i in range(8):
            e(cvt(P + i, ACC0 + 2 * i, ACC0 + 2 * i + 1))
        for u in range(2):
            e(f'v_permlane32_swap_b32 v{P+4*u}, v{P+4*u+2}')
            e(f'v_permlane32_swap_b32 v{P+4*u+1}, v{P+4*u+3}')
        for u in range(2):
            e(f'buffer_store_dwordx4 {vr(P + 4 * u)}, v{vE}, {srd(sOUT)}, 0 offen' + (f' offset:{u * 32}' if u else '') +
              self.cfg.get('ost', ''))

    def build(self):
        e = self.emit
        stop = self.cfg.get('stop', 'full')
        self.prologue()
        self.gemm_loop()
        e(f'''
        s_cmp_eq_u32 s{S_BR}, 1
        s_cbranch_scc1 L_epiB''')
        self.epi_A()
        e('s_branch L_attn')
        self.epi_B()
        if self.cfg.get('v', 2) == 1:
            self.attention()
            if stop != 'attn':
                self.finalize_attn()
                if stop != 'fin':
                    self.outproj()
        else:
            self.attention2()
            self.tail3() if self.cfg.get('tail', 3) == 3 else self.tail2()
        if self.cfg.get('endw', 1) or self.cfg.get('stamps'):
            e('s_waitcnt vmcnt(0) lgkmcnt(0)')
        self.stamp(12)
        self.dump_stamps()
        if self.cfg.get('endw', 1) or self.cfg.get('stamps'):
            e('s_waitcnt vmcnt(0) lgkmcnt(0)')
        e('''
        L_end:
        s_endpgm''')
        if self.cfg.get('v', 2) != 1:
            self.retry_path()
            e('s_endpgm')
        e('L_codeend:')
        body = self.a.finalize(report=self.cfg.get('report', False))
        return body


HEADER = open(os.path.join(os.path.dirname(os.path.abspath(__file__)), 'header.txt')).read()


def make(cfg):
    g = Gen(cfg)
    body = g.build()
    k = NAME + '_kernel'
    src = HEADER + f'''; @launch grid=(256,1,1) block=(512,1,1) lds={LDS_SIZE}
.amdgcn_target "amdgcn-amd-amdhsa--gfx950"
.text
.globl {k}
.p2align 8
.type {k},@function
{k}:
{body}.section .rodata,"a"
.p2align 6
.amdhsa_kernel {k}
  .amdhsa_next_free_vgpr 256
  .amdhsa_next_free_sgpr 96
  .amdhsa_accum_offset 256
  .amdhsa_group_segment_fixed_size 0
  .amdhsa_kernarg_size 88
  .amdhsa_user_sgpr_count 2
  .amdhsa_user_sgpr_kernarg_segment_ptr 1
  .amdhsa_system_sgpr_workgroup_id_x 1
  .amdhsa_float_denorm_mode_32 3
.end_amdhsa_kernel
'''
    return src, g


if __name__ == '__main__':
    import argparse, json
    ap = argparse.ArgumentParser()
    ap.add_argument('-o', default='cdna_kernels/' + NAME + '.s')
    ap.add_argument('--cfg', default='{}')
    args = ap.parse_args()
    cfg = json.loads(args.cfg)
    src, g = make(cfg)
    open(args.o, 'w').write(src)
    print('wrote', args.o, 'instructions', g.a.count, 'nops inserted', len(g.a.inserted))
```
